```python
import torch

def _softmax(x, axis=-1):
    return torch.softmax(x, dim=axis)
def _gelu(x):
    return torch.nn.functional.gelu(x, approximate="tanh")
def _silu(x):
    return torch.nn.functional.silu(x)
def _sigmoid(x):
    return torch.sigmoid(x)
def _layernorm(x, axis=-1, eps=1e-5):
    m = x.mean(dim=axis, keepdim=True)
    v = x.var(dim=axis, keepdim=True, unbiased=False)
    return (x - m) / torch.sqrt(v + eps)
def _scatter_add(tgt, idx, src, axis=0):
    return tgt.clone().index_add_(axis, idx, src)
def _segment_sum(src, seg, n):
    out = torch.zeros((n,) + src.shape[1:], dtype=src.dtype)
    return out.index_add_(0, seg, src)
def _pad(x, pw):
    flat = tuple(v for pair in reversed(pw) for v in pair)
    return torch.nn.functional.pad(x, flat)

kernel_name = 'gated_mix__compressed_kv_cla__geglu_ffn__decode'

def setup_inputs():

    _w = (lambda a: (lambda t: t.to(torch.bfloat16) if t.is_floating_point() else t)(torch.as_tensor(a)))
    def _A_setup():
        B, H, Sq, Sk, D, M = 1, 32, 1, 16384, 128, 640
        Dc = 4 * D
        return {
            "x": _w((lambda *s: torch.randn(*s, dtype=torch.bfloat16) * 0.05)(B, Sq, M)),
            "c_kv": _w((lambda *s: torch.randn(*s, dtype=torch.bfloat16) * 0.8)(B, Sk, Dc)),
            "w_q": _w((lambda *s: torch.randn(*s, dtype=torch.bfloat16) * 6.4)(M, H, D) * (M ** -0.5)),
            "w_uk": _w((lambda *s: torch.randn(*s, dtype=torch.bfloat16) * 6.4)(Dc, H, D) * (Dc ** -0.5)),
            "w_uv": _w((lambda *s: torch.randn(*s, dtype=torch.bfloat16) * 0.8)(Dc, H, D) * (Dc ** -0.5)),
            "w_o": _w((lambda *s: torch.randn(*s, dtype=torch.bfloat16) * 0.8)(H, D, M) * ((H * D) ** -0.5)),
        }
    _A_in = _A_setup()

    def _B_setup():
        B, S, D, F = 1, 1, 640, 1728
        return {
            "x": _w((lambda *s: torch.randn(*s, dtype=torch.bfloat16) * 0.05)(B, S, D)),
            "w_gate": _w((lambda *s: torch.randn(*s, dtype=torch.bfloat16) * 0.1)(D, F)),
            "w_up": _w((lambda *s: torch.randn(*s, dtype=torch.bfloat16) * 0.1)(D, F)),
            "w_down": _w((lambda *s: torch.randn(*s, dtype=torch.bfloat16) * 0.1)(F, D)),
        }
    _B_in = _B_setup()

    return {
        "A_x": _A_in["x"],
        "A_c_kv": _A_in["c_kv"],
        "A_w_q": _A_in["w_q"],
        "A_w_uk": _A_in["w_uk"],
        "A_w_uv": _A_in["w_uv"],
        "A_w_o": _A_in["w_o"],
        "B_x": _B_in["x"],
        "B_w_gate": _B_in["w_gate"],
        "B_w_up": _B_in["w_up"],
        "B_w_down": _B_in["w_down"],
        "gate_w": _w((lambda *s: torch.randn(*s, dtype=torch.bfloat16) * 0.1)(640) * 16.0),
    }

def reference(A_x, A_c_kv, A_w_q, A_w_uk, A_w_uv, A_w_o, B_x, B_w_gate, B_w_up, B_w_down, gate_w):
    def _A_ref(x, c_kv, w_q, w_uk, w_uv, w_o):
        B, Sq, M = x.shape[0], x.shape[1], x.shape[2]
        Sk = c_kv.shape[1]
        H, D = w_q.shape[1], w_q.shape[2]
        q = torch.einsum("bqm,mhd->bhqd", x, w_q)
        k = torch.einsum("bkc,chd->bhkd", c_kv, w_uk)
        v = torch.einsum("bkc,chd->bhkd", c_kv, w_uv)
        scores = torch.einsum("bhqd,bhkd->bhqk", q, k) * (D ** -0.5)
        off = Sk - Sq
        qi = torch.arange(Sq)[:, None]
        kj = torch.arange(Sk)[None, :]
        cmask = kj <= (qi + off)
        scores = torch.where(cmask[None, None], scores, -1e9)
        p = _softmax(scores, axis=-1)
        ctx = torch.einsum("bhqk,bhkd->bhqd", p, v)
        return torch.einsum("bhqd,hdm->bqm", ctx, w_o)

    def _B_ref(x, w_gate, w_up, w_down):
        return (_gelu(x @ w_gate) * (x @ w_up)) @ w_down

    x = A_x
    g = _sigmoid((x * gate_w).sum(-1, keepdims=True))
    a = _A_ref(x, A_c_kv, A_w_q, A_w_uk, A_w_uv, A_w_o)
    b = _B_ref(x, B_w_gate, B_w_up, B_w_down)
    return g * a + (1 - g) * b
```

```python
import re
def regs(tok):
    tok = tok.strip()
    m = re.fullmatch(r'-?\|?([vas])(\d+)\|?', tok)
    if m: return {(m.group(1), int(m.group(2)))}
    m = re.fullmatch(r'-?([vas])\[(\d+):(\d+)\]', tok)
    if m: return {(m.group(1), i) for i in range(int(m.group(2)), int(m.group(3)) + 1)}
    if tok in ('vcc',): return {('s', 'vcc')}
    if tok in ('vcc_lo', 'vcc_hi'): return {('s', 'vcc')}
    if tok == 'exec': return {('s', 'exec')}
    if tok == 'm0': return {('s', 'm0')}
    return set()
TRANS = ('v_exp_f32', 'v_log_f32', 'v_rcp_f32', 'v_rsq_f32', 'v_sqrt_f32')
def parse(line):
    line = line.split(';')[0].strip()
    if not line or line.endswith(':') or line.startswith('.'): return None
    parts = line.split(None, 1)
    mn = parts[0]
    rest = parts[1] if len(parts) > 1 else ''
    ops = [o.strip() for o in rest.split(',')]
    mods = ''
    if ops:
        sp = ops[-1].split(None, 1)
        if len(sp) > 1:
            ops[-1] = sp[0]; mods = sp[1]
    I = dict(mn=mn, ops=ops, mods=mods, line=line)
    d, s = set(), set()
    isv = mn.startswith('v_')
    if mn.startswith('v_mfma'):
        I['cls'] = 'mfma'; d = regs(ops[0]); I['A'] = regs(ops[1]); I['B'] = regs(ops[2]); I['C'] = regs(ops[3])
        s = I['A'] | I['B'] | I['C']
        I['passes'] = 8 if '32x32x16' in mn else 4
    elif mn.startswith('v_cmp'):
        I['cls'] = 'valu'; d = regs(ops[0]);
        for o in ops[1:]: s |= regs(o)
    elif mn.startswith('v_permlane'):
        I['cls'] = 'valu'; d = regs(ops[0]) | regs(ops[1]); s = set(d); I['perml'] = True
    elif mn.startswith('v_readfirstlane') or mn.startswith('v_readlane'):
        I['cls'] = 'valu'; d = regs(ops[0]); s = regs(ops[1]); I['rl'] = True
    elif isv:
        I['cls'] = 'valu'; d = regs(ops[0])
        k = 1
        if mn.startswith(('v_add_co', 'v_addc_co', 'v_sub_co')): d |= regs(ops[1]); k = 2
        for o in ops[k:]: s |= regs(o)
        if mn.startswith(('v_fmac', 'v_dot2c')): s |= d
        if mn.startswith('v_cndmask') and len(ops) == 3: s |= {('s', 'vcc')}
        if '_dpp' in mn or 'row_' in mods or 'quad_perm' in mods:
            I['dpp'] = True
            s |= d
    elif mn.startswith(('buffer_', 'global_')):
        I['cls'] = 'vmem'
        if 'wbl2' in mn or 'inv' in mn: pass
        elif 'store' in mn:
            if mn.startswith('buffer_'):
                I['data'] = regs(ops[0])
                for o in ops: s |= regs(o)
            else:
                I['data'] = regs(ops[1])
                for o in ops: s |= regs(o)
            I['wide'] = 'x4' in mn or 'x3' in mn
        elif ' lds' in (' ' + mods) or 'load_lds' in mn:
            for o in ops: s |= regs(o)
            s |= {('s', 'm0')}; I['dma'] = True
        else:
            d = regs(ops[0])
            for o in ops[1:]: s |= regs(o)
    elif mn.startswith('ds_'):
        I['cls'] = 'ds'
        if 'read' in mn or 'permute' in mn:
            d = regs(ops[0])
            for o in ops[1:]: s |= regs(o)
        else:
            for o in ops: s |= regs(o)
    elif mn.startswith('s_'):
        I['cls'] = 'salu'
        if mn.startswith(('s_cmp', 's_cbranch', 's_branch', 's_waitcnt', 's_barrier', 's_nop', 's_endpgm', 's_bitcmp', 's_sleep', 's_setprio')):
            for o in ops: s |= regs(o)
        else:
            d = regs(ops[0])
            for o in ops[1:]: s |= regs(o)
    else:
        raise ValueError(line)
    I['d'] = d; I['s'] = s
    I['ws'] = 1
    if mn == 's_nop': I['ws'] = int(ops[0], 0) + 1
    return I
def check(text):
    ins = []
    for n, l in enumerate(text.split('\n'), 1):
        if l.strip().startswith('.section'): break
        I = parse(l)
        if I: I['n'] = n; ins.append(I)
    probs = []
    for j, C in enumerate(ins):
        dist = 0
        for i in range(j - 1, max(-1, j - 24), -1):
            P = ins[i]
            need = 0; why = ''
            def upd(n, w):
                nonlocal need, why
                if n > need: need, why = n, w
            pv = {r for r in P['d'] if r[0] in 'va'}
            ps = {r for r in P['d'] if r[0] == 's'}
            if P['cls'] == 'valu':
                if C['cls'] == 'mfma' and pv & C['s']: upd(2, 'valu->mfma')
                if C.get('dpp') and pv & C['s']: upd(2, 'valu->dpp')
                if C.get('perml') and pv & C['s']: upd(2, 'valu->permlane')
                if C.get('rl') and pv & C['s']: upd(1, 'valu->readlane')
                if P['mn'].startswith(TRANS) and C['cls'] in ('valu',) and pv & C['s'] and not C['mn'].startswith(TRANS): upd(1, 'trans->valu')
                if P['mn'].startswith(TRANS) and C['cls'] in ('vmem', 'ds') and pv & C['s']: upd(1, 'trans->mem')
                if C['cls'] == 'valu' and ps & C['s']: upd(2, 'valu sgpr->valu')
                if C['cls'] == 'vmem' and ps & C['s']: upd(5, 'valu sgpr->vmem')
                if C['cls'] == 'salu' and ps & C['s']: upd(1, 'valu sgpr->salu(pad)')
                if P['mn'].startswith('v_dot2') and C['cls'] != 'salu' and pv & (C['s'] | C['d']):
                    if not (C['mn'] == P['mn'] and not (pv & (regs(C['ops'][1]) | regs(C['ops'][2])))): upd(3, 'dot->x')
            if P['cls'] == 'mfma':
                n = 12 if P['passes'] == 8 else 8
                if C['cls'] == 'mfma':
                    if pv & (C['A'] | C['B']): upd(n, 'mfma->mfma AB')
                    if pv & C['C'] and not (C['C'] == P['d'] and C['passes'] == P['passes']): upd(n - 2, 'mfma->mfma C overlap')
                    if pv & C['d'] and not pv & C['C'] : upd(n, 'mfma WAW mfma?')
                elif C['cls'] in ('valu', 'vmem', 'ds'):
                    if pv & (C['s'] | C['d']): upd(n, 'mfma->valu/mem')
                    if C['cls'] == 'valu' and P['C'] & C['d']: upd(7 if P['passes'] == 8 else 3, 'mfma C WAR')
            if P['cls'] == 'salu':
                if C.get('dma') and ('s', 'm0') in P['d']: upd(1, 'm0->dma')
            if P['cls'] == 'vmem' and P.get('wide'):
                if C['cls'] == 'valu' and P['data'] & C['d']: upd(2, 'store data WAR')
                elif P['data'] & C['d']: upd(1, 'store data WAR')
            if need > dist:
                probs.append(f"line {C['n']}: {C['line']}  needs {need} ws after line {P['n']}: {P['line']} ({why}), has {dist}")
            dist += P['ws']
            if dist >= 20: break
    return probs
if __name__ == '__main__':
    import sys
    for p in check(open(sys.argv[1]).read()): print(p)
```

```python
import sys
KN = "gated_mix__compressed_kv_cla__geglu_ffn__decode_kernel"

HEADER = open('gated_mix__compressed_kv_cla__geglu_ffn__decode.s.ref').read().split('; Override launch')[0]

EPOCH = 0
XC   = 0x1000
FLG  = 0x2000
QP   = 0x10000
QA   = 0x20000
ML   = 0x30000
FP   = 0x40000
OP   = 0x50000
XP   = 0xA0000
XPS  = 2176
PART = 0x200000
STAMP = 0x600000
WSSZ = 0x700000
SPIN = 1 << 17
QB = 131072
SCALE = 0.08838834764831845 * 1.4426950408889634

import struct
def f2u(f): return struct.unpack('<I', struct.pack('<f', f))[0]

class G:
    def __init__(self, **opt):
        self.o = []
        self.opt = dict(WSB=0, NPRE=24, LAG=2, LOCAL=1, PRETOUCH=1, STAMPS=0, NT='nt', CORDER='cb')
        self.opt.update(opt)
        self.nstamp = 0
        self.lab = 0
    def __call__(self, s):
        for l in s.strip('\n').split('\n'):
            self.o.append(l.strip() if l.strip().endswith(':') else '    ' + l.strip())
    def label(self, p):
        self.lab += 1
        return f"L_{p}_{self.lab}"
    def stamp(self, k):
        if self.opt['STAMPS']:
            self(f"s_memrealtime s[{64+2*k}:{65+2*k}]")
    def text(self): return '\n'.join(self.o) + '\n'

def vr(b, n=1): return f"v{b}" if n == 1 else f"v[{b}:{b+n-1}]"
def ar(b, n=1): return f"a{b}" if n == 1 else f"a[{b}:{b+n-1}]"

sWAVE = 's3'
SX, SA, SB, SC, SWS, SD, SE, SF, SG = 's[4:7]', 's[8:11]', 's[12:15]', 's[16:19]', 's[20:23]', 's[24:27]', 's[28:31]', 's[32:35]', 's[36:39]'
sT = ['s40', 's41', 's42', 's43']
sXg, sIdx, sH, sQt = 's44', 's45', 's46', 's47'
sSpin = 's48'

def srd_tail(g, base, size):
    g(f"s_mov_b32 s{base+2}, {size}\ns_mov_b32 s{base+3}, 0x20000")

def common_epoch(g):
    if g.opt['WSB']:
        g(f"s_add_u32 s20, s20, {g.opt['WSB']}\ns_addc_u32 s21, s21, 0")
    g(f"s_load_dword s40, s[20:21], {EPOCH}")

def epoch_finish(g):
    g("s_waitcnt lgkmcnt(0)")
    g("s_add_u32 s40, s40, 0x01010101\ns_lshr_b32 s41, s40, 8\ns_lshr_b32 s42, s40, 16\ns_lshr_b32 s43, s40, 24")

def spin_check(g):
    g(f"s_add_u32 {sSpin}, {sSpin}, 1\ns_cmp_gt_u32 {sSpin}, {SPIN}\ns_cbranch_scc1 L_end")

def sel_setup(g, vSel, vt):
    t0, t1, t2 = vt, vt+1, vt+2
    g(f"""
    v_bfe_u32 v{t0}, v0, 3, 1
    v_mul_u32_u24 v{t0}, 0x0202, v{t0}
    v_add_u32 v{t0}, 0x0100, v{t0}
    v_or_b32 v{t1}, 0x0c0c0000, v{t0}
    v_lshlrev_b32 v{t0}, 16, v{t0}
    v_or_b32 v{t0}, 0x0c0c, v{t0}
    v_and_b32 v{t2}, 1, v0
    v_cmp_eq_u32 vcc, 1, v{t2}
    v_bfe_u32 v{t2}, v0, 1, 2
    v_mov_b32 v{vSel+3}, 0x0c0c0c0c
    v_cndmask_b32 v{t0}, v{t1}, v{t0}, vcc
    """)
    for r in range(4):
        g(f"v_cmp_eq_u32 vcc, {r}, v{t2}\ns_nop 1\nv_cndmask_b32 v{vSel+r}, v{vSel+3}, v{t0}, vcc")

def gemv_reduce_publish(g, vacc, vt, lds_w, lds_stride, sdst, vTa, vTb, vFF, after_barrier=None):
    g(f"ds_write_b128 v{lds_w}, {vr(vacc,4)}\nds_write_b128 v{lds_w}, {vr(vacc+4,4)} offset:1024")
    g("s_waitcnt lgkmcnt(0)\ns_barrier")
    skip = g.label("skip")
    g(f"s_cmp_lg_u32 {sWAVE}, 0\ns_cbranch_scc1 {skip}")
    d = vt + 4
    for wv in range(4):
        g(f"ds_read_b128 {vr(d+4*wv,4)}, v{vt} offset:{wv*lds_stride}")
    g("s_waitcnt lgkmcnt(2)")
    for r in range(4): g(f"v_add_f32 v{d+r}, v{d+r}, v{d+4+r}")
    g("s_waitcnt lgkmcnt(0)")
    for r in range(4): g(f"v_add_f32 v{d+8+r}, v{d+8+r}, v{d+12+r}")
    for r in range(4): g(f"v_add_f32 v{d+r}, v{d+r}, v{d+8+r}")
    g(f"s_nop 0\nv_permlane32_swap_b32 v{d}, v{d+2}\nv_permlane32_swap_b32 v{d+1}, v{d+3}")
    g(f"v_add_f32 v{d}, v{d}, v{d+2}\nv_add_f32 v{d+1}, v{d+1}, v{d+3}")
    g(f"v_bfi_b32 v{d}, v{vFF}, v{vTa}, v{d}\nv_bfi_b32 v{d+1}, v{vFF}, v{vTb}, v{d+1}")
    g(f"buffer_store_dwordx2 {vr(d,2)}, v{vt+1}, {SWS}, {sdst} offen sc1")
    g(f"{skip}:")

def gemv_addr_setup(g, vt, vTa, vTb, vFF, lds_base, t):
    g(f"""
    v_lshrrev_b32 v{t}, 5, v0
    v_mul_u32_u24 v{vt}, 40*16, v{t}
    v_and_b32 v{t+1}, 1, v0
    v_lshl_add_u32 v{vt}, v{t+1}, 8, v{vt}
    v_bfe_u32 v{t+1}, v0, 1, 3
    v_lshl_add_u32 v{vt}, v{t+1}, 4, v{vt}
    v_bfe_u32 v{t+1}, v0, 4, 1
    v_lshl_add_u32 v{vt}, v{t+1}, 10, v{vt}
    v_add_u32 v{vt}, {lds_base}, v{vt}
    v_and_b32 v{t+1}, 31, v0
    v_lshlrev_b32 v{t+1}, 4, v{t+1}
    v_lshl_add_u32 v{vt+1}, v{t}, 3, v{t+1}
    v_lshlrev_b32 v{t}, 4, v{t}
    v_mov_b32 v{vFF}, 0xff
    """)

def attention(g):
    o = g.opt
    NT = o['NT']
    g("L_att:")
    g("""
    s_load_dwordx2 s[4:5], s[0:1], 0
    s_load_dwordx2 s[12:13], s[0:1], 16
    s_load_dwordx2 s[8:9], s[0:1], 8
    s_load_dwordx2 s[20:21], s[0:1], 104
    s_load_dwordx2 s[16:17], s[0:1], 88
    """)
    srd_tail(g, 4, 1280); srd_tail(g, 12, 640*8192); srd_tail(g, 8, 16384*1024); srd_tail(g, 20, WSSZ); srd_tail(g, 16, 1280)
    g(f"""
    s_and_b32 {sXg}, s2, 7
    s_lshr_b32 {sIdx}, s2, 3
    s_lshr_b32 s49, {sIdx}, 2
    s_lshl_b32 {sH}, {sXg}, 2
    s_add_u32 {sH}, {sH}, s49
    s_and_b32 {sQt}, {sIdx}, 3
    s_lshl_b32 s50, {sXg}, 4
    s_add_u32 s50, s50, {sIdx}
    """)
    vXw, vSel, vA, vQacc, vDma = 8, 16, 24, 32, 14
    vWq = 128
    g(f"""
    v_lshrrev_b32 v3, 4, v0
    v_mul_u32_u24 v1, 80, v3
    v_mul_u32_u24 v2, 40, v3
    v_bfe_u32 v3, v0, 3, 1
    v_add_u32 v2, v2, v3
    v_lshlrev_b32 v2, 13, v2
    v_and_b32 v3, 7, v0
    v_lshl_add_u32 v2, v3, 4, v2
    s_mul_i32 s51, {sQt}, 160
    s_mul_i32 s49, {sWAVE}, 10
    s_add_u32 s51, s51, s49
    s_lshl_b32 s52, s51, 13
    s_lshl_b32 s51, s51, 1
    s_lshl_b32 s49, {sH}, 8
    s_add_u32 s52, s52, s49
    s_waitcnt lgkmcnt(0)
    """)
    g.stamp(1)
    g(f"buffer_load_dwordx4 {vr(vXw,4)}, v1, {SX}, s51 offen\nbuffer_load_dword v{vXw+4}, v1, {SX}, s51 offen offset:16")
    for u in range(5):
        g(f"buffer_load_dwordx4 {vr(vWq+8*u,4)}, v2, {SB}, s52 offen {NT}")
        g(f"buffer_load_dwordx4 {vr(vWq+8*u+4,4)}, v2, {SB}, s52 offen offset:128 {NT}")
        if u < 4: g("s_add_u32 s52, s52, 16384")
    common_epoch(g)
    sel_setup(g, vSel, 3)
    g(f"""
    v_lshrrev_b32 v3, 3, v0
    v_and_b32 v4, 6, v3
    v_and_b32 v5, 7, v0
    v_xor_b32 v4, v4, v5
    v_lshlrev_b32 v4, 4, v4
    v_lshl_add_u32 v{vDma}, v3, 10, v4
    v_xor_b32 v{vDma+1}, 16, v{vDma}
    s_lshl_b32 s53, s50, 17
    s_lshl_b32 s54, {sWAVE}, 15
    s_add_u32 s53, s53, s54
    """)
    vG = 44
    vTa, vTb, vFF = 212, 213, 214
    gemv_addr_setup(g, vG, vTa, vTb, vFF, 6144, 6)
    g(f"s_lshl_b32 s49, {sWAVE}, 13\ns_add_u32 s49, s49, 6144\nv_lshl_add_u32 v13, v0, 4, s49")
    for r in range(8): g(f"v_mov_b32 v{vQacc+r}, 0")
    epoch_finish(g)
    g(f"v_mov_b32 v{vTa}, {sT[0]}\nv_lshrrev_b32 v{vTa}, v6, v{vTa}\nv_lshrrev_b32 v{vTb}, 8, v{vTa}")
    g(f"s_lshl_b32 s55, {sH}, 2\ns_add_u32 s55, s55, {sQt}\ns_lshl_b32 s55, s55, 9\ns_add_u32 s55, s55, {QP}")
    if o['CORDER'] == 'cb':
        dma = [(cb, ro) for cb in range(8) for ro in range(4)]
    else:
        dma = [(2*cp+c, ro) for cp in range(4) for ro in range(4) for c in range(2)]
    state = dict(nd=0)
    def issue_dma():
        cb, ro = dma[state['nd']]
        g(f"s_add_u32 m0, s54, {ro*8192+cb*1024}\ns_add_u32 s49, s53, {ro*8192+cb*128}")
        g(f"buffer_load_dwordx4 v{vDma+(ro&1)}, {SA}, s49 offen {NT} lds")
        state['nd'] += 1
    for u in range(5):
        a = vA + 4*(u & 1)
        if u == 0: g(f"s_waitcnt vmcnt({10})")
        for r in range(4): g(f"v_perm_b32 v{a+r}, v{vXw+u}, v{vXw+u}, v{vSel+r}")
        for m in range(2):
            k = 2*u+m
            g(f"s_waitcnt vmcnt({9-k+state['nd']})")
            if m == 0: g("s_nop 0")
            g(f"v_mfma_f32_16x16x32_bf16 {vr(vQacc+4*m,4)}, {vr(a,4)}, {vr(vWq+4*k,4)}, {vr(vQacc+4*m,4)}")
            if k >= o['LAG'] and k < 9: issue_dma()
    g.stamp(2)
    g("s_nop 7")
    gemv_reduce_publish(g, vQacc, vG, 13, 8192, 's55', vTa, vTb, vFF)
    g.stamp(3)
    if o['LOCAL']:
        sk = g.label("xc")
        g(f"""
        s_getreg_b32 s56, hwreg(HW_REG_XCC_ID, 0, 4)
        s_cmp_lg_u32 {sWAVE}, 1
        s_cbranch_scc1 {sk}
        v_mov_b32 v4, s56
        v_mov_b32 v5, {sT[0]}
        v_mov_b32 v3, 0
        s_lshl_b32 s49, s50, 3
        s_add_u32 s49, s49, {XC}
        s_mov_b64 exec, 1
        buffer_store_dwordx2 v[4:5], v3, {SWS}, s49 offen sc1
        s_mov_b64 exec, -1
        {sk}:
        """)
    NPRE = o['NPRE']
    while state['nd'] < NPRE: issue_dma()
    vQs = 64
    g(f"v_lshlrev_b32 v7, 4, v0\ns_lshl_b32 s57, {sWAVE}, 14\ns_add_u32 s57, s57, {QA}")
    def sweep():
        g("s_mov_b32 s49, s57")
        for i in range(16):
            g(f"buffer_load_dwordx4 {vr(vQs+4*i,4)}, v7, {SWS}, s49 offen offset:{(i&3)*1024} sc1")
            if i & 3 == 3 and i < 15: g("s_add_u32 s49, s49, 4096")
    sweep()
    while state['nd'] < 32: issue_dma()
    npost = 0
    vPT = 215
    g(f"""
    s_lshl_b32 s58, {sXg}, 19
    s_lshl_b32 s49, {sIdx}, 11
    s_add_u32 s58, s58, s49
    s_lshl_b32 s49, {sWAVE}, 8
    s_add_u32 s58, s58, s49
    s_add_u32 s58, s58, {PART}
    s_lshl_b32 s59, {sXg}, 13
    s_lshl_b32 s49, {sIdx}, 5
    s_add_u32 s59, s59, s49
    s_add_u32 s59, s59, {ML}
    s_lshl_b32 s60, {sXg}, 8
    s_lshl_b32 s49, {sWAVE}, 6
    s_add_u32 s60, s60, s49
    s_add_u32 s60, s60, {FLG}
    v_and_b32 v220, 15, v0
    v_lshlrev_b32 v221, 2, v220
    """)
    if o['LOCAL']:
        if o['PRETOUCH']:
            g(f"""
            v_lshrrev_b32 v3, 2, v0
            v_lshlrev_b32 v3, 15, v3
            v_bfe_u32 v4, v0, 1, 1
            v_lshl_add_u32 v3, v4, 10, v3
            v_and_b32 v4, 1, v0
            v_lshl_add_u32 v3, v4, 7, v3
            v_lshlrev_b32 v4, 9, v220
            buffer_load_dword v{vPT}, v3, {SWS}, s58 offen sc1
            buffer_load_dword v{vPT+1}, v4, {SWS}, s59 offen sc1
            buffer_load_dword v{vPT+2}, v221, {SWS}, s60 offen sc1
            """)
            npost += 3
        g(f"""
        v_lshlrev_b32 v3, 3, v220
        s_lshl_b32 s49, {sXg}, 7
        s_add_u32 s49, s49, {XC}
        buffer_load_dwordx2 v[218:219], v3, {SWS}, s49 offen sc1
        """)
        npost += 1
    g.stamp(4)
    vAa, vQa, vQw, vTr = 36, 40, 208, 192
    g(f"""
    v_and_b32 v3, 6, v0
    v_bfe_u32 v4, v0, 3, 1
    v_or_b32 v3, v3, v4
    v_lshrrev_b32 v4, 5, v0
    v_xor_b32 v3, v3, v4
    v_lshlrev_b32 v3, 4, v3
    v_and_b32 v4, 7, v0
    v_lshl_add_u32 v3, v4, 7, v3
    v_bfe_u32 v4, v0, 3, 2
    v_lshl_add_u32 v3, v4, 13, v3
    v_add_u32 v{vAa}, s54, v3
    """)
    for s in range(1, 4): g(f"v_xor_b32 v{vAa+s}, {s*32}, v{vAa}")
    g(f"""
    v_lshrrev_b32 v4, 5, v0
    v_xor_b32 v3, v0, v4
    v_lshlrev_b32 v3, 4, v3
    v_add_u32 v{vQa}, {QB}, v3
    """)
    for s in range(1, 4): g(f"v_xor_b32 v{vQa+s}, {s*32}, v{vQa}\nv_add_u32 v{vQa+s}, {s*1024}, v{vQa+s}")
    g(f"""
    v_bfe_u32 v3, v0, 1, 3
    v_lshrrev_b32 v4, 5, v0
    v_xor_b32 v3, v3, v4
    v_lshlrev_b32 v3, 4, v3
    v_bfe_u32 v4, v0, 1, 4
    v_lshl_add_u32 v3, v4, 9, v3
    v_and_b32 v4, 1, v0
    v_lshl_add_u32 v3, v4, 3, v3
    s_lshl_b32 s49, {sWAVE}, 13
    s_add_u32 s49, s49, {QB}
    v_add_u32 v{vQw}, s49, v3
    """)
    for s in range(1, 4): g(f"v_xor_b32 v{vQw+s}, {s*32}, v{vQw}")
    g(f"""
    v_bfe_u32 v3, v0, 2, 3
    v_and_b32 v4, 6, v3
    v_bfe_u32 v5, v0, 1, 1
    v_xor_b32 v4, v4, v5
    v_lshlrev_b32 v4, 4, v4
    v_lshl_add_u32 v4, v3, 7, v4
    v_and_b32 v5, 1, v0
    v_lshl_add_u32 v4, v5, 3, v4
    v_lshrrev_b32 v5, 5, v0
    v_lshl_add_u32 v4, v5, 14, v4
    s_lshl_b32 s49, {sWAVE}, 11
    v_add_u32 v{vTr}, s49, v4
    """)
    for c in range(4):
        for rho in range(2):
            if c == 0 and rho == 0: continue
            g(f"v_xor_b32 v{vTr+2*c+rho}, {c*32 + rho*16}, v{vTr}")
            if rho: g(f"v_add_u32 v{vTr+2*c+rho}, 8192, v{vTr+2*c+rho}")
    for k in range(8): g(f"v_add_u32 v{vTr+8+k}, 0x10000, v{vTr+k}")
    vMask = 16
    g(f"""
    v_and_b32 v3, 1, v0
    v_lshlrev_b32 v3, 4, v3
    v_mov_b32 v4, 0xffff
    v_lshlrev_b32 v3, v3, v4
    v_bfe_u32 v4, v0, 1, 3
    """)
    for k in range(8):
        g(f"v_cmp_eq_u32 vcc, {k}, v4\ns_nop 1\nv_cndmask_b32 v{vMask+k}, 0, v3, vcc")
    g(f"""
    v_and_b32 v3, 31, v0
    v_lshlrev_b32 v223, 4, v3
    v_add_u32 v223, {QB}, v223
    s_lshl_b32 s49, {sWAVE}, 2
    v_add_u32 v222, s49, v223
    v_lshlrev_b32 v225, 5, v3
    v_add_u32 v225, {QB+512}, v225
    v_lshrrev_b32 v4, 5, v0
    v_lshl_add_u32 v224, v4, 2, v225
    s_lshl_b32 s49, {sWAVE}, 3
    v_add_u32 v224, s49, v224
    v_lshlrev_b32 v226, 4, v220
    v_lshl_add_u32 v226, v4, 8, v226
    v_bfe_u32 v4, v0, 4, 1
    v_lshl_add_u32 v226, v4, 10, v226
    s_lshl_b32 s49, {sWAVE}, 11
    s_add_u32 s49, s49, {QB+2048}
    v_add_u32 v226, s49, v226
    v_add_u32 v227, {QB+2048}, v7
    v_lshlrev_b32 v228, 4, v3
    v_lshrrev_b32 v4, 4, v0
    v_lshlrev_b32 v229, 4, v220
    v_lshl_add_u32 v230, v4, 15, v229
    v_lshl_add_u32 v229, v4, 12, v229
    v_bfe_u32 v3, v0, 3, 1
    v_lshlrev_b32 v3, 4, v3
    v_lshl_add_u32 v231, v4, 9, v3
    """)
    nafter = (32 - NPRE) + npost
    Lq, Lqok = g.label("q"), g.label("qok")
    g(f"s_mov_b32 {sSpin}, 0\ns_waitcnt vmcnt({nafter})")
    g(f"{Lq}:")
    g(f"v_xor_b32 v3, {sT[0]}, v{vQs+2}")
    for i in range(1, 16): g(f"v_bitop3_b32 v3, v3, v{vQs+4*i+2}, {sT[0]} bitop3:0xf6")
    g(f"v_cmp_ne_u32 vcc, 0, v3\ns_cbranch_vccz {Lqok}")
    spin_check(g)
    sweep()
    g(f"s_waitcnt vmcnt(0)\ns_branch {Lq}")
    g(f"{Lqok}:")
    g.stamp(5)
    for i in range(16):
        g(f"ds_write_b64 v{vQw+(i&3)}, {vr(vQs+4*i,2)} offset:{(i>>2)*128}")
    g("s_waitcnt lgkmcnt(0)\ns_barrier")
    vS, vAf = 48, 128
    lastd = {}
    for k, (cb, ro) in enumerate(dma): lastd[cb] = k
    nb0 = len([cb for cb in range(8) if lastd[cb] < NPRE])
    def rdQ(s): g(f"ds_read_b128 {ar(4*s,4)}, v{vQa+(s&3)} offset:{(s>>2)*4096}")
    def rdA(s): g(f"ds_read_b128 {vr(vAf+4*(s%16),4)}, v{vAa+(s&3)} offset:{(s>>2)*1024}")
    def mm(s): g(f"v_mfma_f32_32x32x16_bf16 {vr(vS,16)}, {vr(vAf+4*(s%16),4)}, {ar(4*s,4)}, {'0' if s == 0 else vr(vS,16)}")
    n0 = 4*nb0
    D = 4
    qnext = 0
    for s in range(min(D, n0)): rdQ(s); rdA(s)
    qnext = min(D, n0)
    for s in range(n0):
        if s + D < n0:
            g(f"s_waitcnt lgkmcnt({2*(D-1)})"); mm(s); rdQ(s+D); rdA(s+D); qnext = s+D+1
        else:
            rem = n0 - 1 - s
            extra = qnext - n0
            g(f"s_waitcnt lgkmcnt({min(15, 2*rem + extra)})"); mm(s)
            for _ in range(2):
                if qnext < 32: rdQ(qnext); qnext += 1
    while qnext < 32: rdQ(qnext); qnext += 1
    g("s_waitcnt lgkmcnt(0)\ns_barrier")
    for cb in range(nb0, 8):
        g(f"s_waitcnt vmcnt({31 - lastd[cb] + npost})")
        for s in range(4*cb, 4*cb+4): rdA(s)
        for s in range(4*cb, 4*cb+4):
            g(f"s_waitcnt lgkmcnt({4*cb+3-s})"); mm(s)
    g.stamp(6)
    g("s_nop 15")
    g(f"v_max3_f32 v3, v{vS}, v{vS+1}, v{vS+2}")
    for k in range(3, 15, 2): g(f"v_max3_f32 v3, v3, v{vS+k}, v{vS+k+1}")
    g(f"v_max_f32 v3, v3, v{vS+15}\nv_mov_b32 v4, v3\ns_nop 1\nv_permlane32_swap_b32 v3, v4\nv_max_f32 v3, v3, v4")
    g("ds_write_b32 v222, v3\ns_waitcnt lgkmcnt(0)\ns_barrier")
    g("ds_read_b128 v[24:27], v223")
    trl = [(ct, t, rho) for ct in range(8) for t in range(4) for rho in range(2)]
    tri = dict(n=0)
    def rdT(k=1):
        for _ in range(k):
            if tri['n'] >= 64: return
            ct, t, rho = trl[tri['n']]; tri['n'] += 1
            g(f"ds_read_b64_tr_b16 {ar(128+(ct*4+t)*4+2*rho,2)}, v{vTr+(t>>1)*8+(ct&3)*2+rho} offset:{(t&1)*32768+(ct>>2)*1024}")
    rdT(12)
    g("s_waitcnt lgkmcnt(12)")
    vM = 232
    g(f"v_max3_f32 v{vM}, v24, v25, v26\nv_max_f32 v{vM}, v{vM}, v27")
    for k in range(16): g(f"v_sub_f32 v{vS+k}, v{vS+k}, v{vM}")
    for k in range(16):
        g(f"v_exp_f32 v{vS+k}, v{vS+k}")
        rdT(1)
    for k in range(8): g(f"v_cvt_pk_bf16_f32 v{24+k}, v{vS+2*k}, v{vS+2*k+1}")
    g("ds_write_b128 v226, v[24:27]\nds_write_b128 v226, v[28:31] offset:512")
    for k in range(4): g(f"v_pk_add_f32 {vr(vS+2*k,2)}, {vr(vS+2*k,2)}, {vr(vS+8+2*k,2)}")
    for k in range(2): g(f"v_pk_add_f32 {vr(vS+2*k,2)}, {vr(vS+2*k,2)}, {vr(vS+4+2*k,2)}")
    g(f"v_pk_add_f32 {vr(vS,2)}, {vr(vS,2)}, {vr(vS+2,2)}\nv_add_f32 v{vS}, v{vS}, v{vS+1}")
    g(f"ds_write_b32 v224, v{vS}\ns_waitcnt lgkmcnt(0)\ns_barrier")
    vP, vAcc = 128, 64
    for t in range(4):
        for ht in range(2): g(f"ds_read_b128 {vr(vP+(t*2+ht)*4,4)}, v227 offset:{(t*2+ht)*1024}")
    g("ds_read_b128 v[48:51], v225\nds_read_b128 v[52:55], v225 offset:16")
    if o['LOCAL']:
        g(f"""
        s_waitcnt vmcnt(0)
        v_xor_b32 v3, {sT[0]}, v219
        v_bitop3_b32 v3, v3, v218, s56 bitop3:0xf6
        v_cmp_ne_u32 vcc, 0, v3
        s_nop 1
        s_cmp_eq_u64 vcc, 0
        s_cselect_b32 s61, 1, 0
        """)
    ntr0 = tri['n']
    issued_after = 10
    pend = []
    for t in range(4):
        for ht in range(2): pend.append(('P', t, ht))
    pend += [('L', 0), ('L', 1)]
    def waitfor(tag):
        if tag in pend:
            idx = pend.index(tag)
            n = len(pend) - 1 - idx
            g(f"s_waitcnt lgkmcnt({min(n,15)})")
            if n <= 15: del pend[:idx+1]
            else: del pend[:len(pend)-15]
    nm = 0
    for ct in range(8):
        for t in range(4):
            waitfor(('T', ct, t, 1))
            for ht in range(2):
                waitfor(('P', t, ht))
                acc = vAcc + (ht*8+ct)*4
                g(f"v_mfma_f32_16x16x32_bf16 {vr(acc,4)}, {vr(vP+(t*2+ht)*4,4)}, {ar(128+(ct*4+t)*4,4)}, {'0' if t == 0 else vr(acc,4)}")
                nm += 1
                if tri['n'] < 64:
                    pend.append(('T',) + trl[tri['n']]); rdT(1)
                if nm == 12:
                    waitfor(('L', 1))
                    g("v_pk_add_f32 v[48:49], v[48:49], v[52:53]")
                if nm == 13: g("v_pk_add_f32 v[50:51], v[50:51], v[54:55]")
                if nm == 14: g("v_pk_add_f32 v[48:49], v[48:49], v[50:51]")
                if nm == 15: g(f"v_add_f32 v{vM+1}, v48, v49\nv_mov_b32 v{vM+2}, {sT[0]}")
                if nm == 16:
                    g(f"v_mov_b32 v{vM+3}, {sT[0]}\ns_lshl_b32 s49, {sWAVE}, 3\ns_lshl_b32 exec_lo, 0xff, s49\ns_mov_b32 exec_hi, 0")
                    g(f"s_lshl_b32 s49, s50, 9\ns_add_u32 s49, s49, {ML}")
                    dual_store(g, f"buffer_store_dwordx4 {vr(vM,4)}, v228, {SWS}, s49 offen")
                    g("s_mov_b64 exec, -1")
    g.stamp(7)
    g(f"s_lshl_b32 s62, s50, 15\ns_lshl_b32 s49, {sWAVE}, 8\ns_add_u32 s62, s62, s49\ns_add_u32 s62, s62, {PART}\ns_add_u32 s63, s62, 16384")
    g("s_nop 3")
    vO = 160
    for ht in range(2):
        for r in range(4):
            for k in range(4):
                g(f"v_cvt_pk_bf16_f32 v{vO+(ht*4+r)*4+k}, v{vAcc+(ht*8+2*k)*4+r}, v{vAcc+(ht*8+2*k+1)*4+r}")
    st = []
    for ht in range(2):
        for r in range(4):
            st.append(f"buffer_store_dwordx4 {vr(vO+(ht*4+r)*4,4)}, v229, {SWS}, s{62+ht} offen offset:{r*1024}")
    dual_store(g, "\n".join(st))
    vML = 128
    Lm, Lmok = g.label("ml"), g.label("mlok")
    g(f"s_mov_b32 {sSpin}, 0\ns_add_u32 s49, s59, 4096")
    g(f"{Lm}:")
    for u in range(4):
        g(f"buffer_load_dwordx3 {vr(vML+4*u,3)}, v231, {SWS}, {'s59' if u < 2 else 's49'} offen offset:{(u&1)*2048} sc1")
    g("s_waitcnt vmcnt(4)")
    sk = g.label("fl")
    g(f"s_cmp_lg_u32 {sSpin}, 0\ns_cbranch_scc1 {sk}")
    g(f"s_lshl_b32 s63, {sIdx}, 2\ns_add_u32 s63, s63, s60\nv_mov_b32 v3, {sT[0]}\nv_mov_b32 v4, 0\ns_mov_b64 exec, 1")
    dual_store(g, f"buffer_store_dword v3, v4, {SWS}, s63 offen")
    g(f"s_mov_b64 exec, -1\ns_waitcnt vmcnt(1)\ns_branch {sk}_b")
    g(f"{sk}:\ns_waitcnt vmcnt(0)\n{sk}_b:")
    g.stamp(8)
    spin_check(g)
    g(f"v_xor_b32 v3, {sT[0]}, v{vML+2}")
    for u in range(1, 4): g(f"v_bitop3_b32 v3, v3, v{vML+4*u+2}, {sT[0]} bitop3:0xf6")
    g(f"v_cmp_ne_u32 vcc, 0, v3\ns_cbranch_vccnz {Lm}")
    g(f"v_not_b32 v5, {sT[0]}\nbuffer_load_dword v5, v221, {SWS}, s60 offen sc1")
    def red_g(reg, tmp, op):
        g(f"v_mov_b32 v{tmp}, v{reg}\ns_nop 1\nv_permlane16_swap_b32 v{reg}, v{tmp}\n{op} v{reg}, v{reg}, v{tmp}")
        g(f"v_mov_b32 v{tmp}, v{reg}\ns_nop 1\nv_permlane32_swap_b32 v{reg}, v{tmp}\n{op} v{reg}, v{reg}, v{tmp}")
    vX = 236
    g(f"v_max3_f32 v{vX}, v{vML}, v{vML+4}, v{vML+8}\nv_max_f32 v{vX}, v{vX}, v{vML+12}")
    red_g(vX, 3, "v_max_f32")
    for u in range(4): g(f"v_sub_f32 v{vML+4*u}, v{vML+4*u}, v{vX}")
    for u in range(4): g(f"v_exp_f32 v{vML+4*u}, v{vML+4*u}")
    g("s_nop 0")
    for u in range(4): g(f"v_cvt_pk_bf16_f32 v{vML+4*u}, v{vML+4*u}, v{vML+4*u}")
    for u in range(4): g(f"v_and_b32 v{vML+4*u+3}, 0xffff0000, v{vML+4*u}")
    g(f"v_mul_f32 v{vX+1}, v{vML+3}, v{vML+1}")
    for u in range(1, 4): g(f"v_fmac_f32 v{vX+1}, v{vML+4*u+3}, v{vML+4*u+1}")
    red_g(vX+1, 3, "v_add_f32")
    g(f"""
    v_mov_b32 v{vX+2}, {sT[0]}
    v_mov_b32 v{vX+3}, {sT[0]}
    s_lshl_b32 s62, {sIdx}, 4
    s_add_u32 s62, s62, {sXg}
    s_mul_i32 s62, s62, {XPS}
    s_add_u32 s62, s62, {XP}
    v_bfe_u32 v3, v0, 3, 1
    v_mul_u32_u24 v3, {8*XPS}, v3
    s_cmp_eq_u32 {sWAVE}, 0
    s_cselect_b32 exec_lo, 0x101, 0
    s_mov_b32 exec_hi, 0
    buffer_store_dwordx4 {vr(vX,4)}, v3, {SWS}, s62 offen offset:2048 sc1
    s_mov_b64 exec, -1
    """)
    vRA = 64
    for u in range(4):
        for k in range(8): g(f"v_and_b32 v{vRA+u*8+k}, v{vML+4*u}, v{vMask+k}")
    g(f"""
    v_lshrrev_b32 v3, 5, v0
    v_mul_u32_u24 v6, {8*XPS}, v3
    v_lshl_add_u32 v6, v220, 5, v6
    v_and_b32 v3, 16, v0
    v_add_u32 v6, v6, v3
    s_lshl_b32 s49, {sWAVE}, 9
    s_add_u32 s62, s62, s49
    """)
    Lf, Lfok = g.label("f"), g.label("fok")
    g(f"s_mov_b32 {sSpin}, 0\ns_waitcnt vmcnt(1)")
    g(f"{Lf}:\nv_cmp_ne_u32 vcc, {sT[0]}, v5\ns_cbranch_vccz {Lfok}")
    g(f"buffer_load_dword v5, v221, {SWS}, s60 offen sc1")
    spin_check(g)
    g(f"s_waitcnt vmcnt(0)\ns_branch {Lf}\n{Lfok}:")
    g.stamp(9)
    vRB = 160
    for u in range(4):
        for hs in range(2):
            g(f"buffer_load_dwordx4 {vr(vRB+(u*2+hs)*4,4)}, v230, {SWS}, s58 offen offset:{hs*1024} sc1")
        if u < 3: g("s_add_u32 s58, s58, 0x20000")
    for k in range(8):
        g(f"s_waitcnt vmcnt({7-k})")
        g(f"v_mfma_f32_16x16x32_bf16 v[32:35], {vr(vRA+4*k,4)}, {vr(vRB+4*k,4)}, {'0' if k == 0 else 'v[32:35]'}")
    g("s_nop 7")
    for r in range(4): g(f"v_bfi_b32 v{32+r}, v{vFF}, {sT[r]}, v{32+r}")
    g(f"buffer_store_dwordx4 v[32:35], v6, {SWS}, s62 offen sc1")
    g.stamp(10)
    g(f"""
    s_lshl_b32 s49, {sWAVE}, 4
    s_add_u32 s49, s49, {sIdx}
    s_and_b32 s50, s49, 0xf8
    s_add_u32 s50, s50, {sXg}
    s_cmp_ge_u32 s50, 20
    s_cbranch_scc1 L_fin
    s_and_b32 s49, s49, 7
    s_lshl_b32 s51, s50, 3
    s_add_u32 s51, s51, s49
    s_lshl_b32 s52, s51, 4
    s_add_u32 s52, s52, {OP}
    s_add_u32 s53, s52, {64*2560}
    v_mul_u32_u24 v3, 2560, v0
    s_lshr_b32 s54, s51, 4
    s_lshl_b32 s54, s54, 7
    s_and_b32 s51, s51, 15
    s_lshl_b32 s51, s51, 1
    s_add_u32 s54, s54, s51
    v_bfe_u32 v4, v0, 4, 1
    v_lshlrev_b32 v4, 6, v4
    v_lshrrev_b32 v5, 5, v0
    v_lshl_add_u32 v4, v5, 5, v4
    s_mov_b32 {sSpin}, 0
    """)
    Lo = g.label("o")
    g(f"{Lo}:")
    g(f"buffer_load_dwordx4 v[8:11], v3, {SWS}, s52 offen sc1\nbuffer_load_dwordx4 v[12:15], v3, {SWS}, s53 offen sc1")
    spin_check(g)
    g(f"s_waitcnt vmcnt(1)\nv_xor_b32 v5, {sT[0]}, v8")
    for r in range(1, 4): g(f"v_bitop3_b32 v5, v5, v{8+r}, {sT[r]} bitop3:0xf6")
    g("s_waitcnt vmcnt(0)")
    for r in range(4): g(f"v_bitop3_b32 v5, v5, v{12+r}, {sT[r]} bitop3:0xf6")
    g(f"v_and_b32 v5, 0xff, v5\nv_cmp_ne_u32 vcc, 0, v5\ns_cbranch_vccnz {Lo}")
    g.stamp(11)
    g("""
    v_pk_add_f32 v[8:9], v[8:9], v[12:13]
    v_pk_add_f32 v[10:11], v[10:11], v[14:15]
    s_nop 1
    v_permlane32_swap_b32 v8, v9
    v_permlane32_swap_b32 v10, v11
    v_add_f32 v8, v8, v9
    v_add_f32 v10, v10, v11
    s_nop 1
    v_permlane16_swap_b32 v8, v10
    v_add_f32 v8, v8, v10
    s_nop 1
    v_add_f32_dpp v8, v8, v8 row_ror:8 row_mask:0xf bank_mask:0xf
    s_nop 1
    v_add_f32_dpp v8, v8, v8 row_ror:4 row_mask:0xf bank_mask:0xf
    s_nop 1
    v_add_f32_dpp v8, v8, v8 row_ror:2 row_mask:0xf bank_mask:0xf
    s_nop 1
    v_add_f32_dpp v8, v8, v8 row_ror:1 row_mask:0xf bank_mask:0xf
    v_cvt_pk_bf16_f32 v8, v8, v8
    s_mov_b32 exec_lo, 0x00010001
    s_mov_b32 exec_hi, 0x00010001
    """)
    g(f"buffer_store_short v8, v4, {SC}, s54 offen")
    g(f"""
    s_or_b32 s49, s2, {sWAVE}
    s_cmp_lg_u32 s49, 0
    s_cbranch_scc1 L_fin
    s_mov_b64 exec, 1
    v_mov_b32 v5, {sT[0]}
    v_mov_b32 v6, 0
    buffer_store_dword v5, v6, {SWS}, 0 offen sc1
    """)
    g("s_branch L_fin")

def dual_store(g, stores):
    if not g.opt['LOCAL']:
        g("\n".join(s + " sc1" for s in stores.split("\n"))); return
    a, b = g.label("ds"), g.label("de")
    g(f"s_cmp_eq_u32 s61, 1\ns_cbranch_scc0 {a}")
    g(stores)
    g(f"s_branch {b}\n{a}:")
    g("\n".join(s + " sc1" for s in stores.split("\n")))
    g(f"{b}:")

def quad_sum(g, base, n):
    for k in range(n): g(f"v_add_f32_dpp v{base+k}, v{base+k}, v{base+k} quad_perm:[1,0,3,2] row_mask:0xf bank_mask:0xf")
    if n < 3: g("s_nop 1")
    for k in range(n): g(f"v_add_f32_dpp v{base+k}, v{base+k}, v{base+k} quad_perm:[2,3,0,1] row_mask:0xf bank_mask:0xf")

def weight(g):
    o = g.opt
    NT = o['NT']
    g("L_wgt:")
    g("""
    s_load_dwordx2 s[8:9], s[0:1], 24
    s_load_dwordx2 s[4:5], s[0:1], 0
    s_load_dwordx2 s[20:21], s[0:1], 104
    s_load_dwordx2 s[28:29], s[0:1], 80
    s_load_dwordx2 s[12:13], s[0:1], 32
    s_load_dwordx2 s[16:17], s[0:1], 40
    s_load_dwordx2 s[24:25], s[0:1], 72
    """)
    srd_tail(g, 4, 1280); srd_tail(g, 8, 512*8192); srd_tail(g, 12, 512*8192); srd_tail(g, 16, 4096*1280)
    srd_tail(g, 20, WSSZ); srd_tail(g, 24, 1728*1280); srd_tail(g, 28, 1280); srd_tail(g, 32, 640*3456); srd_tail(g, 36, 640*3456)
    g(f"""
    s_and_b32 {sXg}, s2, 7
    s_lshr_b32 {sIdx}, s2, 3
    s_sub_u32 {sIdx}, {sIdx}, 16
    s_lshr_b32 s49, {sIdx}, 2
    s_lshl_b32 {sH}, {sXg}, 2
    s_add_u32 {sH}, {sH}, s49
    s_and_b32 {sQt}, {sIdx}, 3
    s_lshl_b32 s49, s49, 3
    s_add_u32 s50, s49, {sXg}
    v_and_b32 v1, 15, v0
    v_lshrrev_b32 v2, 4, v0
    v_lshlrev_b32 v3, 13, v1
    v_lshl_add_u32 v3, v2, 4, v3
    s_lshl_b32 s51, {sQt}, 2
    s_add_u32 s51, s51, {sWAVE}
    s_lshl_b32 s51, s51, 18
    s_lshl_b32 s49, {sH}, 8
    s_add_u32 s51, s51, s49
    s_add_u32 s52, s51, {16*8192}
    v_lshlrev_b32 v7, 4, v0
    s_waitcnt lgkmcnt(0)
    """)
    g.stamp(1)
    vUk = 64
    for ct in range(2):
        for s in range(4):
            g(f"buffer_load_dwordx4 {vr(vUk+(ct*4+s)*4,4)}, v3, {SA}, s{51+ct} offen offset:{s*64} {NT}")
    g("s_load_dwordx2 s[32:33], s[0:1], 56\ns_load_dwordx2 s[36:37], s[0:1], 64")
    common_epoch(g)
    vXg, vGw, vXw = 96, 104, 8
    g(f"""
    buffer_load_dwordx4 {vr(vXg,4)}, v7, {SX}, 0 offen
    buffer_load_dwordx4 {vr(vXg+4,4)}, v7, {SX}, 0 offen offset:1024
    buffer_load_dwordx4 {vr(vGw,4)}, v7, {SE}, 0 offen
    buffer_load_dwordx4 {vr(vGw+4,4)}, v7, {SE}, 0 offen offset:1024
    v_mul_u32_u24 v4, 80, v2
    s_mul_i32 s53, {sQt}, 160
    s_mul_i32 s49, {sWAVE}, 10
    s_add_u32 s53, s53, s49
    s_lshl_b32 s49, s53, 1
    buffer_load_dwordx4 {vr(vXw,4)}, v4, {SX}, s49 offen
    buffer_load_dword v{vXw+4}, v4, {SX}, s49 offen offset:16
    """)
    vSel = 16
    sel_setup(g, vSel, 3)
    LWO, LWD, LUV, LSCR, LCX = 0, 49152, 73728, 106496, 114688
    vG = 44
    vTa, vTb, vFF = 212, 213, 214
    gemv_addr_setup(g, vG, vTa, vTb, vFF, LSCR, 5)
    g(f"s_lshl_b32 s49, {sWAVE}, 11\ns_add_u32 s49, s49, {LSCR}\nv_add_u32 v13, s49, v7")
    g(f"""
    v_and_b32 v3, 3, v0
    v_lshlrev_b32 v14, 9, v3
    v_bfe_u32 v3, v0, 2, 2
    v_lshl_add_u32 v14, v3, 7, v14
    v_lshl_add_u32 v14, v2, 5, v14
    s_lshl_b32 s54, {sH}, 11
    s_add_u32 s54, s54, {QP}
    v_lshlrev_b32 v15, 6, v1
    v_lshl_add_u32 v15, v2, 4, v15
    s_lshl_b32 s55, {sQt}, 5
    s_add_u32 s55, s55, {sH}
    s_lshl_b32 s55, s55, 9
    s_lshl_b32 s49, {sWAVE}, 7
    s_add_u32 s55, s55, s49
    s_add_u32 s55, s55, {QA}
    """)
    epoch_finish(g)
    g(f"v_mov_b32 v{vTa}, {sT[0]}\nv_lshrrev_b32 v{vTa}, v5, v{vTa}\nv_lshrrev_b32 v{vTb}, 8, v{vTa}")
    vQ = 24
    Lq = g.label("qp")
    g(f"s_mov_b32 {sSpin}, 0\n{Lq}:")
    g(f"buffer_load_dwordx4 {vr(vQ,4)}, v14, {SWS}, s54 offen sc1\nbuffer_load_dwordx4 {vr(vQ+4,4)}, v14, {SWS}, s54 offen offset:16 sc1")
    spin_check(g)
    g(f"s_waitcnt vmcnt(0)\nv_xor_b32 v3, {sT[0]}, v{vQ}")
    for k in range(1, 8): g(f"v_bitop3_b32 v3, v3, v{vQ+k}, {sT[k&3]} bitop3:0xf6")
    g(f"v_and_b32 v3, 0xff, v3\nv_cmp_ne_u32 vcc, 0, v3\ns_cbranch_vccnz {Lq}")
    g.stamp(2)
    quad_sum(g, vQ, 8)
    for k in range(4): g(f"v_cvt_pk_bf16_f32 v{vQ+k}, v{vQ+2*k}, v{vQ+2*k+1}")
    vB = 112
    g("s_nop 0")
    for s in range(4):
        for k in range(4): g(f"v_mov_b32_dpp v{vB+4*s+k}, v{vQ+k} row_newbcast:{4*s} row_mask:0xf bank_mask:0xf")
    g("s_nop 1")
    for s in range(4):
        for ct in range(2):
            g(f"v_mfma_f32_16x16x32_bf16 {vr(32+4*ct,4)}, {vr(vUk+(ct*4+s)*4,4)}, {vr(vB+4*s,4)}, {'0' if s == 0 else vr(32+4*ct,4)}")
    g(f"v_cmp_eq_u32 vcc, 1, v1\ns_mov_b32 s49, {f2u(SCALE):#x}\nv_mov_b32 v26, {sT[0]}\nv_mov_b32 v27, {sT[0]}\ns_nop 4")
    for r in range(4): g(f"v_cndmask_b32 v{32+r}, v{32+r}, v{36+r}, vcc")
    for r in range(4): g(f"v_mul_f32 v{32+r}, s49, v{32+r}")
    g("v_cvt_pk_bf16_f32 v24, v32, v33\nv_cvt_pk_bf16_f32 v25, v34, v35")
    g("s_mov_b32 exec_lo, 0x00030003\ns_mov_b32 exec_hi, 0x00030003")
    g(f"buffer_store_dwordx4 v[24:27], v15, {SWS}, s55 offen sc1\ns_mov_b64 exec, -1")
    g.stamp(3)
    vF = 128
    g(f"""
    v_mul_u32_u24 v3, 40, v2
    v_bfe_u32 v4, v0, 3, 1
    v_add_u32 v3, v3, v4
    v_mul_u32_u24 v3, 3456, v3
    v_and_b32 v4, 7, v0
    v_lshl_add_u32 v3, v4, 4, v3
    s_mul_i32 s56, s53, 3456
    s_lshl_b32 s49, s50, 7
    s_add_u32 s56, s56, s49
    s_cmp_ge_u32 s50, 27
    s_cselect_b32 s57, 0x10000000, 0
    s_add_u32 s56, s56, s57
    """)
    for u in range(5):
        g(f"buffer_load_dwordx4 {vr(vF+8*u,4)}, v3, {SF}, s56 offen {NT}\nbuffer_load_dwordx4 {vr(vF+8*u+4,4)}, v3, {SG}, s56 offen {NT}")
        if u < 4: g(f"s_add_u32 s56, s56, {2*3456}")
    g(f"""
    v_lshrrev_b32 v3, 3, v0
    v_lshrrev_b32 v4, 4, v0
    v_bfe_u32 v5, v0, 1, 2
    v_xor_b32 v4, v4, v5
    v_lshlrev_b32 v4, 5, v4
    v_and_b32 v5, 1, v0
    v_lshl_add_u32 v4, v5, 4, v4
    v_mul_u32_u24 v28, 1280, v3
    v_add_u32 v28, v28, v4
    v_lshrrev_b32 v5, 5, v0
    v_mul_u32_u24 v5, {4*1280}, v5
    v_add_u32 v29, v28, v5
    s_lshl_b32 s58, s50, 2
    s_add_u32 s58, s58, {sQt}
    s_mul_i32 s58, s58, {16*1280}
    s_lshl_b32 s49, {sWAVE}, 7
    s_add_u32 s58, s58, s49
    s_add_u32 s58, s58, s57
    s_lshl_b32 s59, {sH}, 2
    s_add_u32 s59, s59, {sQt}
    s_mul_i32 s59, s59, {32*1280}
    s_add_u32 s59, s59, s49
    s_cmp_ge_u32 {sWAVE}, 2
    s_cselect_b32 s60, 0x10000000, 0
    s_mul_i32 s61, {sWAVE}, 6144
    s_add_u32 s61, s61, {LWD}
    """)
    for gam in range(3):
        for gp in range(2):
            g(f"s_add_u32 m0, s61, {(gam*2+gp)*1024}\ns_add_u32 s49, s58, {gam*512 + gp*8*1280}")
            if gam == 2: g("s_add_u32 s49, s49, s60")
            g(f"buffer_load_dwordx4 v28, {SD}, s49 offen {NT} lds")
    g(f"""
    v_bfe_u32 v3, v0, 2, 2
    v_lshl_add_u32 v3, v3, 4, v2
    v_lshlrev_b32 v30, 13, v3
    v_bfe_u32 v3, v0, 1, 1
    v_bfe_u32 v4, v0, 4, 1
    v_xor_b32 v3, v3, v4
    v_lshl_add_u32 v30, v3, 5, v30
    v_and_b32 v3, 1, v0
    v_lshl_add_u32 v30, v3, 4, v30
    s_lshl_b32 s62, {sWAVE}, 20
    s_lshl_b32 s49, {sH}, 8
    s_add_u32 s62, s62, s49
    s_lshl_b32 s49, {sQt}, 6
    s_add_u32 s62, s62, s49
    s_lshl_b32 s63, {sWAVE}, 13
    s_add_u32 s63, s63, {LUV}
    """)
    for s in range(4):
        for rho in range(2):
            g(f"s_add_u32 m0, s63, {(s*2+rho)*1024}\ns_add_u32 s49, s62, {(4*s+64*rho)*8192}")
            g(f"buffer_load_dwordx4 v30, {SB}, s49 offen {NT} lds")
    g(f"v_dot2_f32_bf16 v3, v{vXg}, v{vGw}, 0")
    for k in range(1, 8): g(f"v_dot2_f32_bf16 v3, v{vXg+k}, v{vGw+k}, v3")
    g("s_nop 2")
    for sh in (8, 4, 2, 1): g(f"v_add_f32_dpp v3, v3, v3 row_ror:{sh} row_mask:0xf bank_mask:0xf\ns_nop 1")
    g("v_mov_b32 v4, v3\ns_nop 1\nv_permlane16_swap_b32 v3, v4\nv_add_f32 v3, v3, v4")
    g("v_mov_b32 v4, v3\ns_nop 1\nv_permlane32_swap_b32 v3, v4\nv_add_f32 v3, v3, v4")
    vGate = 215
    g(f"""
    v_mul_f32 v3, {f2u(-1.4426950408889634):#x}, v3
    v_exp_f32 v3, v3
    s_nop 0
    v_add_f32 v3, 1.0, v3
    v_rcp_f32 v{vGate}, v3
    s_nop 0
    v_sub_f32 v{vGate+1}, 1.0, v{vGate}
    """)
    vA, vFacc = 24, 32
    nafter = 6 + 8
    for u in range(5):
        a = 104 + 4*(u & 1)
        for r in range(4): g(f"v_perm_b32 v{a+r}, v{vXw+u}, v{vXw+u}, v{vSel+r}")
        for m in range(2):
            k = 2*u+m
            g(f"s_waitcnt vmcnt({9-k+nafter})")
            if m == 0: g("s_nop 0")
            g(f"v_mfma_f32_16x16x32_bf16 {vr(vFacc+4*m,4)}, {vr(a,4)}, {vr(vF+4*k,4)}, {'0' if u == 0 else vr(vFacc+4*m,4)}")
    g(f"s_lshl_b32 s56, s50, 11\ns_add_u32 s56, s56, {FP}\ns_lshl_b32 s49, {sQt}, 9\ns_add_u32 s53, s56, s49\ns_nop 4")
    gemv_reduce_publish(g, vFacc, vG, 13, 2048, 's53', vTa, vTb, vFF)
    g.stamp(4)
    g(f"s_mul_i32 s61, {sWAVE}, 12288")
    for gam in range(3):
        for rho in range(2):
            for gp in range(2):
                g(f"s_add_u32 m0, s61, {(gam*4+rho*2+gp)*1024}\ns_add_u32 s49, s59, {gam*512 + (16*gp+4*rho)*1280}")
                if gam == 2: g("s_add_u32 s49, s49, s60")
                g(f"buffer_load_dwordx4 v29, {SC}, s49 offen {NT} lds")
    vTo = 192
    g(f"""
    v_bfe_u32 v3, v0, 2, 3
    v_lshlrev_b32 v4, 7, v3
    v_lshrrev_b32 v3, 1, v3
    v_lshl_add_u32 v4, v3, 5, v4
    v_and_b32 v3, 3, v0
    v_lshl_add_u32 v4, v3, 3, v4
    v_lshrrev_b32 v3, 5, v0
    v_lshl_add_u32 v4, v3, 10, v4
    s_mul_i32 s49, {sWAVE}, 6144
    s_add_u32 s49, s49, {LWD}
    """)
    for q in range(4):
        g(f"v_xor_b32 v3, {q*32}, v4\nv_add_u32 v{vTo+q}, s61, v3\nv_add_u32 v{vTo+4+q}, s49, v3")
    g(f"""
    v_lshrrev_b32 v3, 2, v0
    v_lshlrev_b32 v4, 6, v3
    v_bfe_u32 v3, v0, 4, 1
    v_lshl_add_u32 v4, v3, 5, v4
    v_and_b32 v3, 3, v0
    v_lshl_add_u32 v4, v3, 3, v4
    v_add_u32 v200, s63, v4
    v_xor_b32 v201, 32, v200
    """)
    g(f"""
    v_and_b32 v3, 3, v0
    v_lshlrev_b32 v14, 9, v3
    v_lshl_add_u32 v14, v2, 4, v14
    s_lshl_b32 s49, {sQt}, 6
    s_add_u32 s56, s56, s49
    s_mov_b32 {sSpin}, 0
    """)
    Lf = g.label("fp")
    g(f"{Lf}:")
    g(f"buffer_load_dwordx4 v[24:27], v14, {SWS}, s56 offen sc1\nbuffer_load_dwordx4 v[28:31], v14, {SWS}, s56 offen offset:256 sc1")
    spin_check(g)
    g(f"s_waitcnt vmcnt(0)\nv_xor_b32 v3, {sT[0]}, v24")
    for k in range(1, 8): g(f"v_bitop3_b32 v3, v3, v{24+k}, {sT[k&3]} bitop3:0xf6")
    g(f"v_and_b32 v3, 0xff, v3\nv_cmp_ne_u32 vcc, 0, v3\ns_cbranch_vccnz {Lf}")
    g.stamp(5)
    aD, aO, aU = 0, 24, 72
    for gam in range(3):
        for q in range(4): g(f"ds_read_b64_tr_b16 {ar(aD+(gam*4+q)*2,2)}, v{vTo+4+q} offset:{gam*2048}")
    quad_sum(g, 24, 8)
    for k in range(4): g(f"v_cvt_pk_bf16_f32 v{32+k}, v{24+k}, v{28+k}")
    for k in range(4): g(f"v_lshlrev_b32 v{24+k}, 16, v{32+k}\nv_and_b32 v{28+k}, 0xffff0000, v{32+k}")
    c1 = -2*0.7978845608028654*1.4426950408889634
    g(f"s_mov_b32 s49, {f2u(c1*0.044715):#x}\nv_mov_b32 v3, {f2u(c1):#x}")
    for k in range(4): g(f"v_mul_f32 v{32+k}, v{24+k}, v{24+k}")
    for k in range(4): g(f"v_fma_f32 v{32+k}, v{32+k}, s49, v3")
    for k in range(4): g(f"v_mul_f32 v{32+k}, v{32+k}, v{24+k}")
    for k in range(4): g(f"v_exp_f32 v{32+k}, v{32+k}")
    g("s_nop 0")
    for k in range(4): g(f"v_add_f32 v{32+k}, 1.0, v{32+k}")
    for k in range(4): g(f"v_rcp_f32 v{32+k}, v{32+k}")
    g("s_nop 0")
    for k in range(4): g(f"v_mul_f32 v{32+k}, v{32+k}, v{24+k}")
    for k in range(4): g(f"v_cvt_pk_bf16_f32 v{32+k}, v{32+k}, v{32+k}")
    for k in range(4): g(f"v_and_b32 v{32+k}, 0xffff0000, v{32+k}\nv_mul_f32 v{32+k}, v{32+k}, v{28+k}")
    g("v_cvt_pk_bf16_f32 v24, v32, v33\nv_cvt_pk_bf16_f32 v25, v34, v35")
    for gam in range(3):
        g(f"v_cmp_eq_u32 vcc, {4*gam}, v1\ns_nop 1\nv_cndmask_b32 v{26+2*gam}, 0, v24, vcc\nv_cndmask_b32 v{27+2*gam}, 0, v25, vcc")
    for gam in range(3):
        for rho in range(2):
            for q in range(4): g(f"ds_read_b64_tr_b16 {ar(aO+(gam*4+q)*4+2*rho,2)}, v{vTo+q} offset:{gam*4096+rho*2048}")
    for s in range(4):
        for rho in range(2):
            for dt in range(2): g(f"ds_read_b64_tr_b16 {ar(aU+(dt*4+s)*4+2*rho,2)}, v{200+dt} offset:{(s*2+rho)*1024}")
    g("s_waitcnt lgkmcnt(0)")
    vOa = 176
    for gam in range(3):
        for q in range(4):
            g(f"v_mfma_f32_16x16x16_bf16 {vr(vOa+4*q,4)}, {vr(26+2*gam,2)}, {ar(aD+(gam*4+q)*2,2)}, {'0' if gam == 0 else vr(vOa+4*q,4)}")
    g(f"""
    v_and_b32 v3, 7, v0
    v_mul_u32_u24 v15, {XPS}, v3
    v_bfe_u32 v3, v0, 3, 1
    v_lshl_add_u32 v14, v3, 8, v15
    v_lshl_add_u32 v14, v2, 5, v14
    s_mul_i32 s54, {sH}, {8*XPS}
    s_add_u32 s54, s54, {XP}
    s_lshl_b32 s49, {sWAVE}, 9
    s_add_u32 s55, s54, s49
    s_mov_b32 {sSpin}, 0
    """)
    for k in range(16): g(f"v_mul_f32 v{vOa+k}, v{vGate+1}, v{vOa+k}")
    g(f"""
    s_lshl_b32 s49, {sWAVE}, 7
    s_add_u32 s49, s49, {LCX}
    v_lshlrev_b32 v40, 6, v3
    v_lshl_add_u32 v40, v2, 4, v40
    v_add_u32 v40, s49, v40
    v_and_b32 v3, 3, v0
    v_lshlrev_b32 v41, 7, v3
    v_lshl_add_u32 v41, v2, 5, v41
    v_add_u32 v41, {LCX}, v41
    v_lshrrev_b32 v42, 2, v1
    v_lshlrev_b32 v43, 10, v2
    v_lshl_add_u32 v43, v1, 4, v43
    s_lshl_b32 s56, {sXg}, 4
    s_add_u32 s56, s56, {sIdx}
    s_mul_i32 s56, s56, 2560
    s_lshl_b32 s49, {sWAVE}, 8
    s_add_u32 s56, s56, s49
    s_add_u32 s56, s56, {OP}
    v_cmp_eq_u32 s[50:51], 0, v42
    v_cmp_eq_u32 s[52:53], 1, v42
    v_cmp_eq_u32 s[58:59], 2, v42
    v_cmp_gt_u32 s[62:63], 8, v1
    """)
    g.stamp(6)
    Lm = g.label("xm")
    g(f"{Lm}:\nbuffer_load_dwordx3 v[24:26], v15, {SWS}, s54 offen offset:2048 sc1")
    spin_check(g)
    g(f"s_waitcnt vmcnt(0)\nv_cmp_ne_u32 vcc, {sT[0]}, v26\ns_cbranch_vccnz {Lm}")
    g.stamp(7)
    vD = 64
    def xp_loads():
        for s in range(2):
            for gg in range(2):
                g(f"buffer_load_dwordx4 {vr(vD+(s*2+gg)*4,4)}, v14, {SWS}, s55 offen offset:{s*128+gg*16} sc1")
    xp_loads()
    def red8(reg, op):
        g(f"{op}_dpp v{reg}, v{reg}, v{reg} quad_perm:[1,0,3,2] row_mask:0xf bank_mask:0xf\ns_nop 1")
        g(f"{op}_dpp v{reg}, v{reg}, v{reg} quad_perm:[2,3,0,1] row_mask:0xf bank_mask:0xf\ns_nop 1")
        g(f"{op}_dpp v{reg}, v{reg}, v{reg} row_half_mirror row_mask:0xf bank_mask:0xf")
    g("v_mov_b32 v27, v24\ns_nop 1")
    red8(27, "v_max_f32")
    g("v_sub_f32 v24, v24, v27\nv_exp_f32 v24, v24\ns_nop 0\nv_mul_f32 v25, v24, v25\ns_nop 1")
    red8(25, "v_add_f32")
    g(f"v_rcp_f32 v25, v25\nv_mul_f32 v24, v{vGate}, v24\nv_mul_f32 v204, v24, v25\ns_mov_b32 {sSpin}, 0")
    Lx, Lxok = g.label("xd"), g.label("xdok")
    g(f"{Lx}:\ns_waitcnt vmcnt(0)\nv_xor_b32 v3, {sT[0]}, v{vD}")
    for k in range(1, 16): g(f"v_bitop3_b32 v3, v3, v{vD+k}, {sT[k&3]} bitop3:0xf6")
    g(f"v_and_b32 v3, 0xff, v3\nv_cmp_ne_u32 vcc, 0, v3\ns_cbranch_vccz {Lxok}")
    xp_loads()
    spin_check(g)
    g(f"s_branch {Lx}\n{Lxok}:")
    g.stamp(8)
    for k in range(8): g(f"v_cvt_pk_bf16_f32 v{80+k}, v{vD+2*k}, v{vD+2*k+1}")
    g("s_nop 0")
    for s in range(2):
        for hi in range(2):
            for dt in range(2):
                acc = 96 + 8*hi + 4*dt
                g(f"v_mfma_f32_16x16x32_bf16 {vr(acc,4)}, {ar(aU+(dt*4+s+2*hi)*4,4)}, {vr(80+4*s,4)}, {'0' if s == 0 else vr(acc,4)}")
    g("s_nop 6")
    for r in range(4): g(f"v_cndmask_b32 v{28+r}, v{104+r}, v{100+r}, s[62:63]")
    for r in range(4): g(f"v_cndmask_b32 v{24+r}, v{108+r}, v{96+r}, s[62:63]")
    g("s_nop 0")
    for r in range(4): g(f"v_add_f32_dpp v{24+r}, v{28+r}, v{24+r} row_ror:8 row_mask:0xf bank_mask:0xf")
    for r in range(4): g(f"v_mul_f32 v{24+r}, v204, v{24+r}")
    quad_sum(g, 24, 4)
    for r in range(4): g(f"v_add_f32_dpp v{24+r}, v{24+r}, v{24+r} row_half_mirror row_mask:0xf bank_mask:0xf")
    g("ds_write_b128 v40, v[24:27]\ns_waitcnt lgkmcnt(0)\ns_barrier")
    g("ds_read_b128 v[24:27], v41\nds_read_b128 v[28:31], v41 offset:16\ns_waitcnt lgkmcnt(0)")
    for k in range(4): g(f"v_cvt_pk_bf16_f32 v{24+k}, v{24+2*k}, v{25+2*k}")
    msk = ['s[50:51]', 's[52:53]', 's[58:59]']
    for gam in range(3):
        for k in range(4): g(f"v_cndmask_b32 v{112+4*gam+k}, 0, v{24+k}, {msk[gam]}")
    g("s_nop 1")
    for gam in range(3):
        for q in range(4):
            g(f"v_mfma_f32_16x16x32_bf16 {vr(vOa+4*q,4)}, {vr(112+4*gam,4)}, {ar(aO+(gam*4+q)*4,4)}, {vr(vOa+4*q,4)}")
    g(f"s_cmp_ge_u32 {sWAVE}, 2\ns_cselect_b32 s49, 0, 0xffff\ns_nop 3")
    for q in range(4):
        if q == 3: g("s_nop 0")
        g(f"v_pk_add_f32 {vr(vOa+4*q,2)}, {vr(vOa+4*q,2)}, {vr(vOa+4*q+2,2)}")
    for q in range(4): g(f"v_add_f32 v{24+q}, v{vOa+4*q}, v{vOa+4*q+1}")
    for q in range(4): g(f"v_bfi_b32 v{24+q}, v{vFF}, {sT[q]}, v{24+q}")
    g(f"s_mov_b32 exec_hi, s49\nbuffer_store_dwordx4 v[24:27], v43, {SWS}, s56 offen sc1")
    g.stamp(9)

def build(**opt):
    g = G(**opt)
    g.o.append(HEADER.rstrip('\n'))
    g.o.append("; @launch grid=(256,1,1) block=(256,1,1) lds=163840")
    g.o.append('.amdgcn_target "amdgcn-amd-amdhsa--gfx950"')
    g.o.append(f".text\n.globl {KN}\n.p2align 8\n.type {KN},@function\n{KN}:")
    g.stamp(0)
    g(f"""
    v_lshrrev_b32 v1, 6, v0
    s_cmp_ge_u32 s2, 256
    s_cbranch_scc1 L_end
    v_readfirstlane_b32 {sWAVE}, v1
    v_and_b32 v0, 63, v0
    s_cmp_ge_u32 s2, 128
    s_cbranch_scc1 L_wgt
    """)
    attention(g)
    weight(g)
    g("L_fin:")
    if g.opt['STAMPS']:
        g("s_memrealtime s[88:89]\ns_waitcnt lgkmcnt(0)\ns_mov_b64 exec, 1")
        g(f"s_lshl_b32 s49, s2, 2\ns_add_u32 s49, s49, {sWAVE}\ns_lshl_b32 s49, s49, 6\ns_add_u32 s49, s49, {STAMP}\nv_mov_b32 v1, 0")
        for q in range(4):
            for k in range(4):
                idx = 4*q+k
                g(f"v_mov_b32 v{4+k}, s{64+2*idx}" if idx <= 12 else f"v_mov_b32 v{4+k}, 0")
            g(f"buffer_store_dwordx4 v[4:7], v1, {SWS}, s49 offen offset:{16*q}\ns_nop 1")
    g("L_end:\ns_endpgm")
    g.o.append(f""".section .rodata,"a"
.p2align 6
.amdhsa_kernel {KN}
  .amdhsa_next_free_vgpr 512
  .amdhsa_next_free_sgpr 96
  .amdhsa_accum_offset 256
  .amdhsa_group_segment_fixed_size 0
  .amdhsa_kernarg_size 112
  .amdhsa_user_sgpr_count 2
  .amdhsa_user_sgpr_kernarg_segment_ptr 1
  .amdhsa_system_sgpr_workgroup_id_x 1
  .amdhsa_float_denorm_mode_32 3
.end_amdhsa_kernel""")
    return g.text()

if __name__ == '__main__':
    out = sys.argv[1]
    opt = {}
    for a in sys.argv[2:]:
        k, v = a.split('=')
        try: v = int(v, 0)
        except ValueError: pass
        opt[k] = v
    t = build(**opt)
    open(out, 'w').write(t)
    import hazard
    for p in hazard.check(t): print("HAZARD", p)
```

```python
import sys
KN = "gated_mix__compressed_kv_cla__geglu_ffn__decode_kernel"

HEADER = open('gated_mix__compressed_kv_cla__geglu_ffn__decode.s.ref').read().split('; Override launch')[0]

EPOCH = 0
XC   = 0x1000
FLG  = 0x2000
QP   = 0x10000
QA   = 0x20000
ML   = 0x30000
FP   = 0x40000
OP   = 0x50000
XP   = 0xA0000
XPS  = 2176
PART = 0x200000
STAMP = 0x600000
WSSZ = 0x700000
SPIN = 1 << 17
QB = 131072
SCALE = 0.08838834764831845 * 1.4426950408889634

import struct
def f2u(f): return struct.unpack('<I', struct.pack('<f', f))[0]

class G:
    def __init__(self, **opt):
        self.o = []
        self.opt = dict(WSB=0, NPRE=24, LAG=2, LOCAL=1, PRETOUCH=1, STAMPS=0, NT='nt', CORDER='cb')
        self.opt.update(opt)
        self.names = {'att': [], 'wgt': []}; self.role = 'att'
        self.lab = 0
    def __call__(self, s):
        for l in s.strip('\n').split('\n'):
            self.o.append(l.strip() if l.strip().endswith(':') else '    ' + l.strip())
    def label(self, p):
        self.lab += 1
        return f"L_{p}_{self.lab}"
    def stamp(self, name):
        if self.opt['STAMPS']:
            k = len(self.names[self.role]); self.names[self.role].append(str(name))
            assert k < 18
            self(f"s_memrealtime s[{64+2*k}:{65+2*k}]")
    def text(self): return '\n'.join(self.o) + '\n'

def vr(b, n=1): return f"v{b}" if n == 1 else f"v[{b}:{b+n-1}]"
def ar(b, n=1): return f"a{b}" if n == 1 else f"a[{b}:{b+n-1}]"

sWAVE = 's3'
SX, SA, SB, SC, SWS, SD, SE, SF, SG = 's[4:7]', 's[8:11]', 's[12:15]', 's[16:19]', 's[20:23]', 's[24:27]', 's[28:31]', 's[32:35]', 's[36:39]'
sT = ['s40', 's41', 's42', 's43']
sXg, sIdx, sH, sQt = 's44', 's45', 's46', 's47'
sSpin = 's48'

def srd_tail(g, base, size):
    g(f"s_mov_b32 s{base+2}, {size}\ns_mov_b32 s{base+3}, 0x20000")

def common_epoch(g):
    if g.opt['WSB']:
        g(f"s_add_u32 s20, s20, {g.opt['WSB']}\ns_addc_u32 s21, s21, 0")
    g(f"s_load_dword s40, s[20:21], {EPOCH}")

def epoch_finish(g):
    g("s_waitcnt lgkmcnt(0)")
    g("s_add_u32 s40, s40, 0x01010101\ns_lshr_b32 s41, s40, 8\ns_lshr_b32 s42, s40, 16\ns_lshr_b32 s43, s40, 24")

def spin_check(g):
    g(f"s_add_u32 {sSpin}, {sSpin}, 1\ns_cmp_gt_u32 {sSpin}, {SPIN}\ns_cbranch_scc1 L_end")

def sel_setup(g, vSel, vt):
    t0, t1, t2 = vt, vt+1, vt+2
    g(f"""
    v_bfe_u32 v{t0}, v0, 3, 1
    v_mul_u32_u24 v{t0}, 0x0202, v{t0}
    v_add_u32 v{t0}, 0x0100, v{t0}
    v_or_b32 v{t1}, 0x0c0c0000, v{t0}
    v_lshlrev_b32 v{t0}, 16, v{t0}
    v_or_b32 v{t0}, 0x0c0c, v{t0}
    v_and_b32 v{t2}, 1, v0
    v_cmp_eq_u32 vcc, 1, v{t2}
    v_bfe_u32 v{t2}, v0, 1, 2
    v_mov_b32 v{vSel+3}, 0x0c0c0c0c
    v_cndmask_b32 v{t0}, v{t1}, v{t0}, vcc
    """)
    for r in range(4):
        g(f"v_cmp_eq_u32 vcc, {r}, v{t2}\ns_nop 1\nv_cndmask_b32 v{vSel+r}, v{vSel+3}, v{t0}, vcc")

def gemv_reduce_publish(g, vacc, vt, lds_w, lds_stride, sdst, vTa, vTb, vFF, after_barrier=None):
    g(f"ds_write_b128 v{lds_w}, {vr(vacc,4)}\nds_write_b128 v{lds_w}, {vr(vacc+4,4)} offset:1024")
    g("s_waitcnt lgkmcnt(0)\ns_barrier")
    skip = g.label("skip")
    g(f"s_cmp_lg_u32 {sWAVE}, 0\ns_cbranch_scc1 {skip}")
    d = vt + 4
    for wv in range(4):
        g(f"ds_read_b128 {vr(d+4*wv,4)}, v{vt} offset:{wv*lds_stride}")
    g("s_waitcnt lgkmcnt(2)")
    for r in range(4): g(f"v_add_f32 v{d+r}, v{d+r}, v{d+4+r}")
    g("s_waitcnt lgkmcnt(0)")
    for r in range(4): g(f"v_add_f32 v{d+8+r}, v{d+8+r}, v{d+12+r}")
    for r in range(4): g(f"v_add_f32 v{d+r}, v{d+r}, v{d+8+r}")
    g(f"s_nop 0\nv_permlane32_swap_b32 v{d}, v{d+2}\nv_permlane32_swap_b32 v{d+1}, v{d+3}")
    g(f"v_add_f32 v{d}, v{d}, v{d+2}\nv_add_f32 v{d+1}, v{d+1}, v{d+3}")
    g(f"v_bfi_b32 v{d}, v{vFF}, v{vTa}, v{d}\nv_bfi_b32 v{d+1}, v{vFF}, v{vTb}, v{d+1}")
    g(f"buffer_store_dwordx2 {vr(d,2)}, v{vt+1}, {SWS}, {sdst} offen sc1")
    g(f"{skip}:")

def gemv_addr_setup(g, vt, vTa, vTb, vFF, lds_base, t):
    g(f"""
    v_lshrrev_b32 v{t}, 5, v0
    v_mul_u32_u24 v{vt}, 40*16, v{t}
    v_and_b32 v{t+1}, 1, v0
    v_lshl_add_u32 v{vt}, v{t+1}, 8, v{vt}
    v_bfe_u32 v{t+1}, v0, 1, 3
    v_lshl_add_u32 v{vt}, v{t+1}, 4, v{vt}
    v_bfe_u32 v{t+1}, v0, 4, 1
    v_lshl_add_u32 v{vt}, v{t+1}, 10, v{vt}
    v_add_u32 v{vt}, {lds_base}, v{vt}
    v_and_b32 v{t+1}, 31, v0
    v_lshlrev_b32 v{t+1}, 4, v{t+1}
    v_lshl_add_u32 v{vt+1}, v{t}, 3, v{t+1}
    v_lshlrev_b32 v{t}, 4, v{t}
    v_mov_b32 v{vFF}, 0xff
    """)

def attention(g):
    o = g.opt
    NT = o['NT']
    g("L_att:")
    g("""
    s_load_dwordx2 s[4:5], s[0:1], 0
    s_load_dwordx2 s[12:13], s[0:1], 16
    s_load_dwordx2 s[8:9], s[0:1], 8
    s_load_dwordx2 s[20:21], s[0:1], 104
    s_load_dwordx2 s[16:17], s[0:1], 88
    """)
    srd_tail(g, 4, 1280); srd_tail(g, 12, 640*8192); srd_tail(g, 8, 16384*1024); srd_tail(g, 20, WSSZ); srd_tail(g, 16, 1280)
    g(f"""
    s_and_b32 {sXg}, s2, 7
    s_lshr_b32 {sIdx}, s2, 3
    s_lshr_b32 s49, {sIdx}, 2
    s_lshl_b32 {sH}, {sXg}, 2
    s_add_u32 {sH}, {sH}, s49
    s_and_b32 {sQt}, {sIdx}, 3
    s_lshl_b32 s50, {sXg}, 4
    s_add_u32 s50, s50, {sIdx}
    """)
    vXw, vSel, vA, vQacc, vDma = 8, 16, 24, 32, 14
    vWq = 128
    g(f"""
    v_lshrrev_b32 v3, 4, v0
    v_mul_u32_u24 v1, 80, v3
    v_mul_u32_u24 v2, 40, v3
    v_bfe_u32 v3, v0, 3, 1
    v_add_u32 v2, v2, v3
    v_lshlrev_b32 v2, 13, v2
    v_and_b32 v3, 7, v0
    v_lshl_add_u32 v2, v3, 4, v2
    s_mul_i32 s51, {sQt}, 160
    s_mul_i32 s49, {sWAVE}, 10
    s_add_u32 s51, s51, s49
    s_lshl_b32 s52, s51, 13
    s_lshl_b32 s51, s51, 1
    s_lshl_b32 s49, {sH}, 8
    s_add_u32 s52, s52, s49
    s_waitcnt lgkmcnt(0)
    """)
    g.stamp('karg')
    g(f"buffer_load_dwordx4 {vr(vXw,4)}, v1, {SX}, s51 offen\nbuffer_load_dword v{vXw+4}, v1, {SX}, s51 offen offset:16")
    for u in range(5):
        g(f"buffer_load_dwordx4 {vr(vWq+8*u,4)}, v2, {SB}, s52 offen {NT}")
        g(f"buffer_load_dwordx4 {vr(vWq+8*u+4,4)}, v2, {SB}, s52 offen offset:128 {NT}")
        if u < 4: g("s_add_u32 s52, s52, 16384")
    common_epoch(g)
    sel_setup(g, vSel, 3)
    g(f"""
    v_lshrrev_b32 v3, 3, v0
    v_and_b32 v4, 6, v3
    v_and_b32 v5, 7, v0
    v_xor_b32 v4, v4, v5
    v_lshlrev_b32 v4, 4, v4
    v_lshl_add_u32 v{vDma}, v3, 10, v4
    v_xor_b32 v{vDma+1}, 16, v{vDma}
    s_lshl_b32 s53, s50, 17
    s_lshl_b32 s54, {sWAVE}, 15
    s_add_u32 s53, s53, s54
    """)
    vG = 44
    vTa, vTb, vFF = 212, 213, 214
    gemv_addr_setup(g, vG, vTa, vTb, vFF, 6144, 6)
    g(f"s_lshl_b32 s49, {sWAVE}, 13\ns_add_u32 s49, s49, 6144\nv_lshl_add_u32 v13, v0, 4, s49")
    for r in range(8): g(f"v_mov_b32 v{vQacc+r}, 0")
    epoch_finish(g)
    g(f"v_mov_b32 v{vTa}, {sT[0]}\nv_lshrrev_b32 v{vTa}, v6, v{vTa}\nv_lshrrev_b32 v{vTb}, 8, v{vTa}")
    g(f"s_lshl_b32 s55, {sH}, 2\ns_add_u32 s55, s55, {sQt}\ns_lshl_b32 s55, s55, 9\ns_add_u32 s55, s55, {QP}")
    if o['CORDER'] == 'cb':
        dma = [(cb, ro) for cb in range(8) for ro in range(4)]
    else:
        dma = [(2*cp+c, ro) for cp in range(4) for ro in range(4) for c in range(2)]
    state = dict(nd=0)
    def issue_dma():
        cb, ro = dma[state['nd']]
        g(f"s_add_u32 m0, s54, {ro*8192+cb*1024}\ns_add_u32 s49, s53, {ro*8192+cb*128}")
        g(f"buffer_load_dwordx4 v{vDma+(ro&1)}, {SA}, s49 offen {NT} lds")
        state['nd'] += 1
    for u in range(5):
        a = vA + 4*(u & 1)
        if u == 0: g(f"s_waitcnt vmcnt({10})")
        for r in range(4): g(f"v_perm_b32 v{a+r}, v{vXw+u}, v{vXw+u}, v{vSel+r}")
        for m in range(2):
            k = 2*u+m
            g(f"s_waitcnt vmcnt({9-k+state['nd']})")
            if m == 0: g("s_nop 0")
            g(f"v_mfma_f32_16x16x32_bf16 {vr(vQacc+4*m,4)}, {vr(a,4)}, {vr(vWq+4*k,4)}, {vr(vQacc+4*m,4)}")
            if k >= o['LAG'] and k < 9: issue_dma()
    g.stamp('w1')
    g("s_nop 7")
    gemv_reduce_publish(g, vQacc, vG, 13, 8192, 's55', vTa, vTb, vFF)
    g.stamp('qp')
    if o['LOCAL']:
        sk = g.label("xc")
        g(f"""
        s_getreg_b32 s56, hwreg(HW_REG_XCC_ID, 0, 4)
        s_cmp_lg_u32 {sWAVE}, 1
        s_cbranch_scc1 {sk}
        v_mov_b32 v4, s56
        v_mov_b32 v5, {sT[0]}
        v_mov_b32 v3, 0
        s_lshl_b32 s49, s50, 3
        s_add_u32 s49, s49, {XC}
        s_mov_b64 exec, 1
        buffer_store_dwordx2 v[4:5], v3, {SWS}, s49 offen sc1
        s_mov_b64 exec, -1
        {sk}:
        """)
    NPRE = o['NPRE']
    while state['nd'] < NPRE: issue_dma()
    g.stamp('pre')
    vQs = 64
    g(f"v_lshlrev_b32 v7, 4, v0\ns_lshl_b32 s57, {sWAVE}, 14\ns_add_u32 s57, s57, {QA}")
    def sweep():
        g("s_mov_b32 s49, s57")
        for i in range(16):
            g(f"buffer_load_dwordx4 {vr(vQs+4*i,4)}, v7, {SWS}, s49 offen offset:{(i&3)*1024} sc1")
            if i & 3 == 3 and i < 15: g("s_add_u32 s49, s49, 4096")
    sweep()
    g.stamp('swp')
    while state['nd'] < 32: issue_dma()
    npost = 0
    vPT = 215
    g(f"""
    s_lshl_b32 s58, {sXg}, 19
    s_lshl_b32 s49, {sIdx}, 11
    s_add_u32 s58, s58, s49
    s_lshl_b32 s49, {sWAVE}, 8
    s_add_u32 s58, s58, s49
    s_add_u32 s58, s58, {PART}
    s_lshl_b32 s59, {sXg}, 13
    s_lshl_b32 s49, {sIdx}, 5
    s_add_u32 s59, s59, s49
    s_add_u32 s59, s59, {ML}
    s_lshl_b32 s60, {sXg}, 8
    s_lshl_b32 s49, {sWAVE}, 6
    s_add_u32 s60, s60, s49
    s_add_u32 s60, s60, {FLG}
    v_and_b32 v220, 15, v0
    v_lshlrev_b32 v221, 2, v220
    """)
    if o['LOCAL']:
        if o['PRETOUCH']:
            g(f"""
            v_lshrrev_b32 v3, 2, v0
            v_lshlrev_b32 v3, 15, v3
            v_bfe_u32 v4, v0, 1, 1
            v_lshl_add_u32 v3, v4, 10, v3
            v_and_b32 v4, 1, v0
            v_lshl_add_u32 v3, v4, 7, v3
            v_lshlrev_b32 v4, 9, v220
            buffer_load_dword v{vPT}, v3, {SWS}, s58 offen sc1
            buffer_load_dword v{vPT+1}, v4, {SWS}, s59 offen sc1
            buffer_load_dword v{vPT+2}, v221, {SWS}, s60 offen sc1
            """)
            npost += 3
        g(f"""
        v_lshlrev_b32 v3, 3, v220
        s_lshl_b32 s49, {sXg}, 7
        s_add_u32 s49, s49, {XC}
        buffer_load_dwordx2 v[218:219], v3, {SWS}, s49 offen sc1
        """)
        npost += 1
    g.stamp('iss')
    vAa, vQa, vQw, vTr = 36, 40, 208, 192
    g(f"""
    v_and_b32 v3, 6, v0
    v_bfe_u32 v4, v0, 3, 1
    v_or_b32 v3, v3, v4
    v_lshrrev_b32 v4, 5, v0
    v_xor_b32 v3, v3, v4
    v_lshlrev_b32 v3, 4, v3
    v_and_b32 v4, 7, v0
    v_lshl_add_u32 v3, v4, 7, v3
    v_bfe_u32 v4, v0, 3, 2
    v_lshl_add_u32 v3, v4, 13, v3
    v_add_u32 v{vAa}, s54, v3
    """)
    for s in range(1, 4): g(f"v_xor_b32 v{vAa+s}, {s*32}, v{vAa}")
    g(f"""
    v_lshrrev_b32 v4, 5, v0
    v_xor_b32 v3, v0, v4
    v_lshlrev_b32 v3, 4, v3
    v_add_u32 v{vQa}, {QB}, v3
    """)
    for s in range(1, 4): g(f"v_xor_b32 v{vQa+s}, {s*32}, v{vQa}\nv_add_u32 v{vQa+s}, {s*1024}, v{vQa+s}")
    g(f"""
    v_bfe_u32 v3, v0, 1, 3
    v_lshrrev_b32 v4, 5, v0
    v_xor_b32 v3, v3, v4
    v_lshlrev_b32 v3, 4, v3
    v_bfe_u32 v4, v0, 1, 4
    v_lshl_add_u32 v3, v4, 9, v3
    v_and_b32 v4, 1, v0
    v_lshl_add_u32 v3, v4, 3, v3
    s_lshl_b32 s49, {sWAVE}, 13
    s_add_u32 s49, s49, {QB}
    v_add_u32 v{vQw}, s49, v3
    """)
    for s in range(1, 4): g(f"v_xor_b32 v{vQw+s}, {s*32}, v{vQw}")
    g(f"""
    v_bfe_u32 v3, v0, 2, 3
    v_and_b32 v4, 6, v3
    v_bfe_u32 v5, v0, 1, 1
    v_xor_b32 v4, v4, v5
    v_lshlrev_b32 v4, 4, v4
    v_lshl_add_u32 v4, v3, 7, v4
    v_and_b32 v5, 1, v0
    v_lshl_add_u32 v4, v5, 3, v4
    v_lshrrev_b32 v5, 5, v0
    v_lshl_add_u32 v4, v5, 14, v4
    s_lshl_b32 s49, {sWAVE}, 11
    v_add_u32 v{vTr}, s49, v4
    """)
    for c in range(4):
        for rho in range(2):
            if c == 0 and rho == 0: continue
            g(f"v_xor_b32 v{vTr+2*c+rho}, {c*32 + rho*16}, v{vTr}")
            if rho: g(f"v_add_u32 v{vTr+2*c+rho}, 8192, v{vTr+2*c+rho}")
    for k in range(8): g(f"v_add_u32 v{vTr+8+k}, 0x10000, v{vTr+k}")
    vMask = 16
    g(f"""
    v_and_b32 v3, 1, v0
    v_lshlrev_b32 v3, 4, v3
    v_mov_b32 v4, 0xffff
    v_lshlrev_b32 v3, v3, v4
    v_bfe_u32 v4, v0, 1, 3
    """)
    for k in range(8):
        g(f"v_cmp_eq_u32 vcc, {k}, v4\ns_nop 1\nv_cndmask_b32 v{vMask+k}, 0, v3, vcc")
    g(f"""
    v_and_b32 v3, 31, v0
    v_lshlrev_b32 v223, 4, v3
    v_add_u32 v223, {QB}, v223
    s_lshl_b32 s49, {sWAVE}, 2
    v_add_u32 v222, s49, v223
    v_lshlrev_b32 v225, 5, v3
    v_add_u32 v225, {QB+512}, v225
    v_lshrrev_b32 v4, 5, v0
    v_lshl_add_u32 v224, v4, 2, v225
    s_lshl_b32 s49, {sWAVE}, 3
    v_add_u32 v224, s49, v224
    v_lshlrev_b32 v226, 4, v220
    v_lshl_add_u32 v226, v4, 8, v226
    v_bfe_u32 v4, v0, 4, 1
    v_lshl_add_u32 v226, v4, 10, v226
    s_lshl_b32 s49, {sWAVE}, 11
    s_add_u32 s49, s49, {QB+2048}
    v_add_u32 v226, s49, v226
    v_add_u32 v227, {QB+2048}, v7
    v_lshlrev_b32 v228, 4, v3
    v_lshrrev_b32 v4, 4, v0
    v_lshlrev_b32 v229, 4, v220
    v_lshl_add_u32 v230, v4, 15, v229
    v_lshl_add_u32 v229, v4, 12, v229
    v_bfe_u32 v3, v0, 3, 1
    v_lshlrev_b32 v3, 4, v3
    v_lshl_add_u32 v231, v4, 9, v3
    """)
    nafter = (32 - NPRE) + npost
    Lq, Lqok = g.label("q"), g.label("qok")
    g(f"s_mov_b32 {sSpin}, 0\ns_waitcnt vmcnt({nafter})")
    g.stamp('sw1')
    g(f"{Lq}:")
    g(f"v_xor_b32 v3, {sT[0]}, v{vQs+2}")
    for i in range(1, 16): g(f"v_bitop3_b32 v3, v3, v{vQs+4*i+2}, {sT[0]} bitop3:0xf6")
    g(f"v_cmp_ne_u32 vcc, 0, v3\ns_cbranch_vccz {Lqok}")
    spin_check(g)
    sweep()
    g(f"s_waitcnt vmcnt(0)\ns_branch {Lq}")
    g(f"{Lqok}:")
    g.stamp('qok')
    for i in range(16):
        g(f"ds_write_b64 v{vQw+(i&3)}, {vr(vQs+4*i,2)} offset:{(i>>2)*128}")
    g("s_waitcnt lgkmcnt(0)\ns_barrier")
    vS, vAf = 48, 128
    lastd = {}
    for k, (cb, ro) in enumerate(dma): lastd[cb] = k
    nb0 = len([cb for cb in range(8) if lastd[cb] < NPRE])
    def rdQ(s): g(f"ds_read_b128 {ar(4*s,4)}, v{vQa+(s&3)} offset:{(s>>2)*4096}")
    def rdA(s): g(f"ds_read_b128 {vr(vAf+4*(s%16),4)}, v{vAa+(s&3)} offset:{(s>>2)*1024}")
    def mm(s): g(f"v_mfma_f32_32x32x16_bf16 {vr(vS,16)}, {vr(vAf+4*(s%16),4)}, {ar(4*s,4)}, {'0' if s == 0 else vr(vS,16)}")
    n0 = 4*nb0
    D = 4
    qnext = 0
    for s in range(min(D, n0)): rdQ(s); rdA(s)
    qnext = min(D, n0)
    for s in range(n0):
        if s + D < n0:
            g(f"s_waitcnt lgkmcnt({2*(D-1)})"); mm(s); rdQ(s+D); rdA(s+D); qnext = s+D+1
        else:
            rem = n0 - 1 - s
            extra = qnext - n0
            g(f"s_waitcnt lgkmcnt({min(15, 2*rem + extra)})"); mm(s)
            for _ in range(2):
                if qnext < 32: rdQ(qnext); qnext += 1
    while qnext < 32: rdQ(qnext); qnext += 1
    g("s_waitcnt lgkmcnt(0)\ns_barrier")
    for cb in range(nb0, 8):
        g(f"s_waitcnt vmcnt({31 - lastd[cb] + npost})")
        for s in range(4*cb, 4*cb+4): rdA(s)
        for s in range(4*cb, 4*cb+4):
            g(f"s_waitcnt lgkmcnt({4*cb+3-s})"); mm(s)
    g.stamp('qk')
    g("s_nop 15")
    g(f"v_max3_f32 v3, v{vS}, v{vS+1}, v{vS+2}")
    for k in range(3, 15, 2): g(f"v_max3_f32 v3, v3, v{vS+k}, v{vS+k+1}")
    g(f"v_max_f32 v3, v3, v{vS+15}\nv_mov_b32 v4, v3\ns_nop 1\nv_permlane32_swap_b32 v3, v4\nv_max_f32 v3, v3, v4")
    g("ds_write_b32 v222, v3\ns_waitcnt lgkmcnt(0)\ns_barrier")
    g.stamp('mx')
    g("ds_read_b128 v[24:27], v223")
    trl = [(ct, t, rho) for ct in range(8) for t in range(4) for rho in range(2)]
    tri = dict(n=0)
    def rdT(k=1):
        for _ in range(k):
            if tri['n'] >= 64: return
            ct, t, rho = trl[tri['n']]; tri['n'] += 1
            g(f"ds_read_b64_tr_b16 {ar(128+(ct*4+t)*4+2*rho,2)}, v{vTr+(t>>1)*8+(ct&3)*2+rho} offset:{(t&1)*32768+(ct>>2)*1024}")
    rdT(12)
    g("s_waitcnt lgkmcnt(12)")
    vM = 232
    g(f"v_max3_f32 v{vM}, v24, v25, v26\nv_max_f32 v{vM}, v{vM}, v27")
    for k in range(16): g(f"v_sub_f32 v{vS+k}, v{vS+k}, v{vM}")
    for k in range(16):
        g(f"v_exp_f32 v{vS+k}, v{vS+k}")
        rdT(1)
    for k in range(8): g(f"v_cvt_pk_bf16_f32 v{24+k}, v{vS+2*k}, v{vS+2*k+1}")
    g("ds_write_b128 v226, v[24:27]\nds_write_b128 v226, v[28:31] offset:512")
    for k in range(4): g(f"v_pk_add_f32 {vr(vS+2*k,2)}, {vr(vS+2*k,2)}, {vr(vS+8+2*k,2)}")
    for k in range(2): g(f"v_pk_add_f32 {vr(vS+2*k,2)}, {vr(vS+2*k,2)}, {vr(vS+4+2*k,2)}")
    g(f"v_pk_add_f32 {vr(vS,2)}, {vr(vS,2)}, {vr(vS+2,2)}\nv_add_f32 v{vS}, v{vS}, v{vS+1}")
    g(f"ds_write_b32 v224, v{vS}\ns_waitcnt lgkmcnt(0)\ns_barrier")
    g.stamp('P')
    vP, vAcc = 128, 64
    for t in range(4):
        for ht in range(2): g(f"ds_read_b128 {vr(vP+(t*2+ht)*4,4)}, v227 offset:{(t*2+ht)*1024}")
    g("ds_read_b128 v[48:51], v225\nds_read_b128 v[52:55], v225 offset:16")
    if o['LOCAL']:
        g(f"""
        s_waitcnt vmcnt(0)
        v_xor_b32 v3, {sT[0]}, v219
        v_bitop3_b32 v3, v3, v218, s56 bitop3:0xf6
        v_cmp_ne_u32 vcc, 0, v3
        s_nop 1
        s_cmp_eq_u64 vcc, 0
        s_cselect_b32 s61, 1, 0
        """)
    ntr0 = tri['n']
    issued_after = 10
    pend = []
    for t in range(4):
        for ht in range(2): pend.append(('P', t, ht))
    pend += [('L', 0), ('L', 1)]
    def waitfor(tag):
        if tag in pend:
            idx = pend.index(tag)
            n = len(pend) - 1 - idx
            g(f"s_waitcnt lgkmcnt({min(n,15)})")
            if n <= 15: del pend[:idx+1]
            else: del pend[:len(pend)-15]
    nm = 0
    for ct in range(8):
        for t in range(4):
            waitfor(('T', ct, t, 1))
            for ht in range(2):
                waitfor(('P', t, ht))
                acc = vAcc + (ht*8+ct)*4
                g(f"v_mfma_f32_16x16x32_bf16 {vr(acc,4)}, {vr(vP+(t*2+ht)*4,4)}, {ar(128+(ct*4+t)*4,4)}, {'0' if t == 0 else vr(acc,4)}")
                nm += 1
                if tri['n'] < 64:
                    pend.append(('T',) + trl[tri['n']]); rdT(1)
                if nm == 12:
                    waitfor(('L', 1))
                    g("v_pk_add_f32 v[48:49], v[48:49], v[52:53]")
                if nm == 13: g("v_pk_add_f32 v[50:51], v[50:51], v[54:55]")
                if nm == 14: g("v_pk_add_f32 v[48:49], v[48:49], v[50:51]")
                if nm == 15: g(f"v_add_f32 v{vM+1}, v48, v49\nv_mov_b32 v{vM+2}, {sT[0]}")
                if nm == 16:
                    g(f"v_mov_b32 v{vM+3}, {sT[0]}\ns_lshl_b32 s49, {sWAVE}, 3\ns_lshl_b32 exec_lo, 0xff, s49\ns_mov_b32 exec_hi, 0")
                    g(f"s_lshl_b32 s49, s50, 9\ns_add_u32 s49, s49, {ML}")
                    dual_store(g, f"buffer_store_dwordx4 {vr(vM,4)}, v228, {SWS}, s49 offen")
                    g("s_mov_b64 exec, -1")
    g.stamp('pv')
    g(f"s_lshl_b32 s62, s50, 15\ns_lshl_b32 s49, {sWAVE}, 8\ns_add_u32 s62, s62, s49\ns_add_u32 s62, s62, {PART}\ns_add_u32 s63, s62, 16384")
    g("s_nop 3")
    vO = 160
    for ht in range(2):
        for r in range(4):
            for k in range(4):
                g(f"v_cvt_pk_bf16_f32 v{vO+(ht*4+r)*4+k}, v{vAcc+(ht*8+2*k)*4+r}, v{vAcc+(ht*8+2*k+1)*4+r}")
    st = []
    for ht in range(2):
        for r in range(4):
            st.append(f"buffer_store_dwordx4 {vr(vO+(ht*4+r)*4,4)}, v229, {SWS}, s{62+ht} offen offset:{r*1024}")
    dual_store(g, "\n".join(st))
    vML = 128
    Lm, Lmok = g.label("ml"), g.label("mlok")
    g(f"s_mov_b32 {sSpin}, 0\ns_add_u32 s49, s59, 4096")
    g(f"{Lm}:")
    for u in range(4):
        g(f"buffer_load_dwordx3 {vr(vML+4*u,3)}, v231, {SWS}, {'s59' if u < 2 else 's49'} offen offset:{(u&1)*2048} sc1")
    g("s_waitcnt vmcnt(4)")
    sk = g.label("fl")
    g(f"s_cmp_lg_u32 {sSpin}, 0\ns_cbranch_scc1 {sk}")
    g(f"s_lshl_b32 s63, {sIdx}, 2\ns_add_u32 s63, s63, s60\nv_mov_b32 v3, {sT[0]}\nv_mov_b32 v4, 0\ns_mov_b64 exec, 1")
    dual_store(g, f"buffer_store_dword v3, v4, {SWS}, s63 offen")
    g(f"s_mov_b64 exec, -1\ns_waitcnt vmcnt(1)\ns_branch {sk}_b")
    g(f"{sk}:\ns_waitcnt vmcnt(0)\n{sk}_b:")
    g.stamp('ml')
    spin_check(g)
    g(f"v_xor_b32 v3, {sT[0]}, v{vML+2}")
    for u in range(1, 4): g(f"v_bitop3_b32 v3, v3, v{vML+4*u+2}, {sT[0]} bitop3:0xf6")
    g(f"v_cmp_ne_u32 vcc, 0, v3\ns_cbranch_vccnz {Lm}")
    g(f"v_not_b32 v5, {sT[0]}\nbuffer_load_dword v5, v221, {SWS}, s60 offen sc1")
    def red_g(reg, tmp, op):
        g(f"v_mov_b32 v{tmp}, v{reg}\ns_nop 1\nv_permlane16_swap_b32 v{reg}, v{tmp}\n{op} v{reg}, v{reg}, v{tmp}")
        g(f"v_mov_b32 v{tmp}, v{reg}\ns_nop 1\nv_permlane32_swap_b32 v{reg}, v{tmp}\n{op} v{reg}, v{reg}, v{tmp}")
    vX = 236
    g(f"v_max3_f32 v{vX}, v{vML}, v{vML+4}, v{vML+8}\nv_max_f32 v{vX}, v{vX}, v{vML+12}")
    red_g(vX, 3, "v_max_f32")
    for u in range(4): g(f"v_sub_f32 v{vML+4*u}, v{vML+4*u}, v{vX}")
    for u in range(4): g(f"v_exp_f32 v{vML+4*u}, v{vML+4*u}")
    g("s_nop 0")
    for u in range(4): g(f"v_cvt_pk_bf16_f32 v{vML+4*u}, v{vML+4*u}, v{vML+4*u}")
    for u in range(4): g(f"v_and_b32 v{vML+4*u+3}, 0xffff0000, v{vML+4*u}")
    g(f"v_mul_f32 v{vX+1}, v{vML+3}, v{vML+1}")
    for u in range(1, 4): g(f"v_fmac_f32 v{vX+1}, v{vML+4*u+3}, v{vML+4*u+1}")
    red_g(vX+1, 3, "v_add_f32")
    g(f"""
    v_mov_b32 v{vX+2}, {sT[0]}
    v_mov_b32 v{vX+3}, {sT[0]}
    s_lshl_b32 s62, {sIdx}, 4
    s_add_u32 s62, s62, {sXg}
    s_mul_i32 s62, s62, {XPS}
    s_add_u32 s62, s62, {XP}
    v_bfe_u32 v3, v0, 3, 1
    v_mul_u32_u24 v3, {8*XPS}, v3
    s_cmp_eq_u32 {sWAVE}, 0
    s_cselect_b32 exec_lo, 0x101, 0
    s_mov_b32 exec_hi, 0
    buffer_store_dwordx4 {vr(vX,4)}, v3, {SWS}, s62 offen offset:2048 sc1
    s_mov_b64 exec, -1
    """)
    vRA = 64
    for u in range(4):
        for k in range(8): g(f"v_and_b32 v{vRA+u*8+k}, v{vML+4*u}, v{vMask+k}")
    g(f"""
    v_lshrrev_b32 v3, 5, v0
    v_mul_u32_u24 v6, {8*XPS}, v3
    v_lshl_add_u32 v6, v220, 5, v6
    v_and_b32 v3, 16, v0
    v_add_u32 v6, v6, v3
    s_lshl_b32 s49, {sWAVE}, 9
    s_add_u32 s62, s62, s49
    """)
    Lf, Lfok = g.label("f"), g.label("fok")
    g(f"s_mov_b32 {sSpin}, 0\ns_waitcnt vmcnt(1)")
    g(f"{Lf}:\nv_cmp_ne_u32 vcc, {sT[0]}, v5\ns_cbranch_vccz {Lfok}")
    g(f"buffer_load_dword v5, v221, {SWS}, s60 offen sc1")
    spin_check(g)
    g(f"s_waitcnt vmcnt(0)\ns_branch {Lf}\n{Lfok}:")
    g.stamp('flg')
    vRB = 160
    for u in range(4):
        for hs in range(2):
            g(f"buffer_load_dwordx4 {vr(vRB+(u*2+hs)*4,4)}, v230, {SWS}, s58 offen offset:{hs*1024} sc1")
        if u < 3: g("s_add_u32 s58, s58, 0x20000")
    for k in range(8):
        g(f"s_waitcnt vmcnt({7-k})")
        g(f"v_mfma_f32_16x16x32_bf16 v[32:35], {vr(vRA+4*k,4)}, {vr(vRB+4*k,4)}, {'0' if k == 0 else 'v[32:35]'}")
    g("s_nop 7")
    for r in range(4): g(f"v_bfi_b32 v{32+r}, v{vFF}, {sT[r]}, v{32+r}")
    g(f"buffer_store_dwordx4 v[32:35], v6, {SWS}, s62 offen sc1")
    g.stamp('xp')
    g(f"""
    s_lshl_b32 s49, {sWAVE}, 4
    s_add_u32 s49, s49, {sIdx}
    s_and_b32 s50, s49, 0xf8
    s_add_u32 s50, s50, {sXg}
    s_cmp_ge_u32 s50, 20
    s_cbranch_scc1 L_fin
    s_and_b32 s49, s49, 7
    s_lshl_b32 s51, s50, 3
    s_add_u32 s51, s51, s49
    s_lshl_b32 s52, s51, 4
    s_add_u32 s52, s52, {OP}
    s_add_u32 s53, s52, {64*2560}
    v_mul_u32_u24 v3, 2560, v0
    s_lshr_b32 s54, s51, 4
    s_lshl_b32 s54, s54, 7
    s_and_b32 s51, s51, 15
    s_lshl_b32 s51, s51, 1
    s_add_u32 s54, s54, s51
    v_bfe_u32 v4, v0, 4, 1
    v_lshlrev_b32 v4, 6, v4
    v_lshrrev_b32 v5, 5, v0
    v_lshl_add_u32 v4, v5, 5, v4
    s_mov_b32 {sSpin}, 0
    """)
    Lo = g.label("o")
    g(f"{Lo}:")
    g(f"buffer_load_dwordx4 v[8:11], v3, {SWS}, s52 offen sc1\nbuffer_load_dwordx4 v[12:15], v3, {SWS}, s53 offen sc1")
    spin_check(g)
    g(f"s_waitcnt vmcnt(1)\nv_xor_b32 v5, {sT[0]}, v8")
    for r in range(1, 4): g(f"v_bitop3_b32 v5, v5, v{8+r}, {sT[r]} bitop3:0xf6")
    g("s_waitcnt vmcnt(0)")
    for r in range(4): g(f"v_bitop3_b32 v5, v5, v{12+r}, {sT[r]} bitop3:0xf6")
    g(f"v_and_b32 v5, 0xff, v5\nv_cmp_ne_u32 vcc, 0, v5\ns_cbranch_vccnz {Lo}")
    g.stamp('op')
    g("""
    v_pk_add_f32 v[8:9], v[8:9], v[12:13]
    v_pk_add_f32 v[10:11], v[10:11], v[14:15]
    s_nop 1
    v_permlane32_swap_b32 v8, v9
    v_permlane32_swap_b32 v10, v11
    v_add_f32 v8, v8, v9
    v_add_f32 v10, v10, v11
    s_nop 1
    v_permlane16_swap_b32 v8, v10
    v_add_f32 v8, v8, v10
    s_nop 1
    v_add_f32_dpp v8, v8, v8 row_ror:8 row_mask:0xf bank_mask:0xf
    s_nop 1
    v_add_f32_dpp v8, v8, v8 row_ror:4 row_mask:0xf bank_mask:0xf
    s_nop 1
    v_add_f32_dpp v8, v8, v8 row_ror:2 row_mask:0xf bank_mask:0xf
    s_nop 1
    v_add_f32_dpp v8, v8, v8 row_ror:1 row_mask:0xf bank_mask:0xf
    v_cvt_pk_bf16_f32 v8, v8, v8
    s_mov_b32 exec_lo, 0x00010001
    s_mov_b32 exec_hi, 0x00010001
    """)
    g(f"buffer_store_short v8, v4, {SC}, s54 offen")
    g(f"""
    s_or_b32 s49, s2, {sWAVE}
    s_cmp_lg_u32 s49, 0
    s_cbranch_scc1 L_fin
    s_mov_b64 exec, 1
    v_mov_b32 v5, {sT[0]}
    v_mov_b32 v6, 0
    buffer_store_dword v5, v6, {SWS}, 0 offen sc1
    """)
    g("s_branch L_fin")

def dual_store(g, stores):
    if not g.opt['LOCAL']:
        g("\n".join(s + " sc1" for s in stores.split("\n"))); return
    a, b = g.label("ds"), g.label("de")
    g(f"s_cmp_eq_u32 s61, 1\ns_cbranch_scc0 {a}")
    g(stores)
    g(f"s_branch {b}\n{a}:")
    g("\n".join(s + " sc1" for s in stores.split("\n")))
    g(f"{b}:")

def quad_sum(g, base, n):
    for k in range(n): g(f"v_add_f32_dpp v{base+k}, v{base+k}, v{base+k} quad_perm:[1,0,3,2] row_mask:0xf bank_mask:0xf")
    if n < 3: g("s_nop 1")
    for k in range(n): g(f"v_add_f32_dpp v{base+k}, v{base+k}, v{base+k} quad_perm:[2,3,0,1] row_mask:0xf bank_mask:0xf")

def weight(g):
    o = g.opt
    NT = o['NT']
    g.role = "wgt"; g.names["wgt"].append("st")
    g("L_wgt:")
    g("""
    s_load_dwordx2 s[8:9], s[0:1], 24
    s_load_dwordx2 s[4:5], s[0:1], 0
    s_load_dwordx2 s[20:21], s[0:1], 104
    s_load_dwordx2 s[28:29], s[0:1], 80
    s_load_dwordx2 s[12:13], s[0:1], 32
    s_load_dwordx2 s[16:17], s[0:1], 40
    s_load_dwordx2 s[24:25], s[0:1], 72
    """)
    srd_tail(g, 4, 1280); srd_tail(g, 8, 512*8192); srd_tail(g, 12, 512*8192); srd_tail(g, 16, 4096*1280)
    srd_tail(g, 20, WSSZ); srd_tail(g, 24, 1728*1280); srd_tail(g, 28, 1280); srd_tail(g, 32, 640*3456); srd_tail(g, 36, 640*3456)
    g(f"""
    s_and_b32 {sXg}, s2, 7
    s_lshr_b32 {sIdx}, s2, 3
    s_sub_u32 {sIdx}, {sIdx}, 16
    s_lshr_b32 s49, {sIdx}, 2
    s_lshl_b32 {sH}, {sXg}, 2
    s_add_u32 {sH}, {sH}, s49
    s_and_b32 {sQt}, {sIdx}, 3
    s_lshl_b32 s49, s49, 3
    s_add_u32 s50, s49, {sXg}
    v_and_b32 v1, 15, v0
    v_lshrrev_b32 v2, 4, v0
    v_lshlrev_b32 v3, 13, v1
    v_lshl_add_u32 v3, v2, 4, v3
    s_lshl_b32 s51, {sQt}, 2
    s_add_u32 s51, s51, {sWAVE}
    s_lshl_b32 s51, s51, 18
    s_lshl_b32 s49, {sH}, 8
    s_add_u32 s51, s51, s49
    s_add_u32 s52, s51, {16*8192}
    v_lshlrev_b32 v7, 4, v0
    s_waitcnt lgkmcnt(0)
    """)
    g.stamp('karg')
    vUk = 64
    for ct in range(2):
        for s in range(4):
            g(f"buffer_load_dwordx4 {vr(vUk+(ct*4+s)*4,4)}, v3, {SA}, s{51+ct} offen offset:{s*64} {NT}")
    g("s_load_dwordx2 s[32:33], s[0:1], 56\ns_load_dwordx2 s[36:37], s[0:1], 64")
    common_epoch(g)
    vXg, vGw, vXw = 96, 104, 8
    g(f"""
    buffer_load_dwordx4 {vr(vXg,4)}, v7, {SX}, 0 offen
    buffer_load_dwordx4 {vr(vXg+4,4)}, v7, {SX}, 0 offen offset:1024
    buffer_load_dwordx4 {vr(vGw,4)}, v7, {SE}, 0 offen
    buffer_load_dwordx4 {vr(vGw+4,4)}, v7, {SE}, 0 offen offset:1024
    v_mul_u32_u24 v4, 80, v2
    s_mul_i32 s53, {sQt}, 160
    s_mul_i32 s49, {sWAVE}, 10
    s_add_u32 s53, s53, s49
    s_lshl_b32 s49, s53, 1
    buffer_load_dwordx4 {vr(vXw,4)}, v4, {SX}, s49 offen
    buffer_load_dword v{vXw+4}, v4, {SX}, s49 offen offset:16
    """)
    vSel = 16
    sel_setup(g, vSel, 3)
    LWO, LWD, LUV, LSCR, LCX = 0, 49152, 73728, 106496, 114688
    vG = 44
    vTa, vTb, vFF = 212, 213, 214
    gemv_addr_setup(g, vG, vTa, vTb, vFF, LSCR, 5)
    g(f"s_lshl_b32 s49, {sWAVE}, 11\ns_add_u32 s49, s49, {LSCR}\nv_add_u32 v13, s49, v7")
    g(f"""
    v_and_b32 v3, 3, v0
    v_lshlrev_b32 v14, 9, v3
    v_bfe_u32 v3, v0, 2, 2
    v_lshl_add_u32 v14, v3, 7, v14
    v_lshl_add_u32 v14, v2, 5, v14
    s_lshl_b32 s54, {sH}, 11
    s_add_u32 s54, s54, {QP}
    v_lshlrev_b32 v15, 6, v1
    v_lshl_add_u32 v15, v2, 4, v15
    s_lshl_b32 s55, {sQt}, 5
    s_add_u32 s55, s55, {sH}
    s_lshl_b32 s55, s55, 9
    s_lshl_b32 s49, {sWAVE}, 7
    s_add_u32 s55, s55, s49
    s_add_u32 s55, s55, {QA}
    """)
    epoch_finish(g)
    g(f"v_mov_b32 v{vTa}, {sT[0]}\nv_lshrrev_b32 v{vTa}, v5, v{vTa}\nv_lshrrev_b32 v{vTb}, 8, v{vTa}")
    vQ = 24
    Lq = g.label("qp")
    g(f"s_mov_b32 {sSpin}, 0\n{Lq}:")
    g(f"buffer_load_dwordx4 {vr(vQ,4)}, v14, {SWS}, s54 offen sc1\nbuffer_load_dwordx4 {vr(vQ+4,4)}, v14, {SWS}, s54 offen offset:16 sc1")
    spin_check(g)
    g(f"s_waitcnt vmcnt(0)\nv_xor_b32 v3, {sT[0]}, v{vQ}")
    for k in range(1, 8): g(f"v_bitop3_b32 v3, v3, v{vQ+k}, {sT[k&3]} bitop3:0xf6")
    g(f"v_and_b32 v3, 0xff, v3\nv_cmp_ne_u32 vcc, 0, v3\ns_cbranch_vccnz {Lq}")
    g.stamp('qp')
    quad_sum(g, vQ, 8)
    for k in range(4): g(f"v_cvt_pk_bf16_f32 v{vQ+k}, v{vQ+2*k}, v{vQ+2*k+1}")
    vB = 112
    g("s_nop 0")
    for s in range(4):
        for k in range(4): g(f"v_mov_b32_dpp v{vB+4*s+k}, v{vQ+k} row_newbcast:{4*s} row_mask:0xf bank_mask:0xf")
    g("s_nop 1")
    for s in range(4):
        for ct in range(2):
            g(f"v_mfma_f32_16x16x32_bf16 {vr(32+4*ct,4)}, {vr(vUk+(ct*4+s)*4,4)}, {vr(vB+4*s,4)}, {'0' if s == 0 else vr(32+4*ct,4)}")
    g(f"v_cmp_eq_u32 vcc, 1, v1\ns_mov_b32 s49, {f2u(SCALE):#x}\nv_mov_b32 v26, {sT[0]}\nv_mov_b32 v27, {sT[0]}\ns_nop 4")
    for r in range(4): g(f"v_cndmask_b32 v{32+r}, v{32+r}, v{36+r}, vcc")
    for r in range(4): g(f"v_mul_f32 v{32+r}, s49, v{32+r}")
    g("v_cvt_pk_bf16_f32 v24, v32, v33\nv_cvt_pk_bf16_f32 v25, v34, v35")
    g("s_mov_b32 exec_lo, 0x00030003\ns_mov_b32 exec_hi, 0x00030003")
    g(f"buffer_store_dwordx4 v[24:27], v15, {SWS}, s55 offen sc1\ns_mov_b64 exec, -1")
    g.stamp('qa')
    vF = 128
    g(f"""
    v_mul_u32_u24 v3, 40, v2
    v_bfe_u32 v4, v0, 3, 1
    v_add_u32 v3, v3, v4
    v_mul_u32_u24 v3, 3456, v3
    v_and_b32 v4, 7, v0
    v_lshl_add_u32 v3, v4, 4, v3
    s_mul_i32 s56, s53, 3456
    s_lshl_b32 s49, s50, 7
    s_add_u32 s56, s56, s49
    s_cmp_ge_u32 s50, 27
    s_cselect_b32 s57, 0x10000000, 0
    s_add_u32 s56, s56, s57
    """)
    for u in range(5):
        g(f"buffer_load_dwordx4 {vr(vF+8*u,4)}, v3, {SF}, s56 offen {NT}\nbuffer_load_dwordx4 {vr(vF+8*u+4,4)}, v3, {SG}, s56 offen {NT}")
        if u < 4: g(f"s_add_u32 s56, s56, {2*3456}")
    g(f"""
    v_lshrrev_b32 v3, 3, v0
    v_lshrrev_b32 v4, 4, v0
    v_bfe_u32 v5, v0, 1, 2
    v_xor_b32 v4, v4, v5
    v_lshlrev_b32 v4, 5, v4
    v_and_b32 v5, 1, v0
    v_lshl_add_u32 v4, v5, 4, v4
    v_mul_u32_u24 v28, 1280, v3
    v_add_u32 v28, v28, v4
    v_lshrrev_b32 v5, 5, v0
    v_mul_u32_u24 v5, {4*1280}, v5
    v_add_u32 v29, v28, v5
    s_lshl_b32 s58, s50, 2
    s_add_u32 s58, s58, {sQt}
    s_mul_i32 s58, s58, {16*1280}
    s_lshl_b32 s49, {sWAVE}, 7
    s_add_u32 s58, s58, s49
    s_add_u32 s58, s58, s57
    s_lshl_b32 s59, {sH}, 2
    s_add_u32 s59, s59, {sQt}
    s_mul_i32 s59, s59, {32*1280}
    s_add_u32 s59, s59, s49
    s_cmp_ge_u32 {sWAVE}, 2
    s_cselect_b32 s60, 0x10000000, 0
    s_mul_i32 s61, {sWAVE}, 6144
    s_add_u32 s61, s61, {LWD}
    """)
    for gam in range(3):
        for gp in range(2):
            g(f"s_add_u32 m0, s61, {(gam*2+gp)*1024}\ns_add_u32 s49, s58, {gam*512 + gp*8*1280}")
            if gam == 2: g("s_add_u32 s49, s49, s60")
            g(f"buffer_load_dwordx4 v28, {SD}, s49 offen {NT} lds")
    g(f"""
    v_bfe_u32 v3, v0, 2, 2
    v_lshl_add_u32 v3, v3, 4, v2
    v_lshlrev_b32 v30, 13, v3
    v_bfe_u32 v3, v0, 1, 1
    v_bfe_u32 v4, v0, 4, 1
    v_xor_b32 v3, v3, v4
    v_lshl_add_u32 v30, v3, 5, v30
    v_and_b32 v3, 1, v0
    v_lshl_add_u32 v30, v3, 4, v30
    s_lshl_b32 s62, {sWAVE}, 20
    s_lshl_b32 s49, {sH}, 8
    s_add_u32 s62, s62, s49
    s_lshl_b32 s49, {sQt}, 6
    s_add_u32 s62, s62, s49
    s_lshl_b32 s63, {sWAVE}, 13
    s_add_u32 s63, s63, {LUV}
    """)
    for s in range(4):
        for rho in range(2):
            g(f"s_add_u32 m0, s63, {(s*2+rho)*1024}\ns_add_u32 s49, s62, {(4*s+64*rho)*8192}")
            g(f"buffer_load_dwordx4 v30, {SB}, s49 offen {NT} lds")
    g.stamp('iss1')
    g(f"v_dot2_f32_bf16 v3, v{vXg}, v{vGw}, 0")
    for k in range(1, 8): g(f"v_dot2_f32_bf16 v3, v{vXg+k}, v{vGw+k}, v3")
    g("s_nop 2")
    for sh in (8, 4, 2, 1): g(f"v_add_f32_dpp v3, v3, v3 row_ror:{sh} row_mask:0xf bank_mask:0xf\ns_nop 1")
    g("v_mov_b32 v4, v3\ns_nop 1\nv_permlane16_swap_b32 v3, v4\nv_add_f32 v3, v3, v4")
    g("v_mov_b32 v4, v3\ns_nop 1\nv_permlane32_swap_b32 v3, v4\nv_add_f32 v3, v3, v4")
    vGate = 215
    g(f"""
    v_mul_f32 v3, {f2u(-1.4426950408889634):#x}, v3
    v_exp_f32 v3, v3
    s_nop 0
    v_add_f32 v3, 1.0, v3
    v_rcp_f32 v{vGate}, v3
    s_nop 0
    v_sub_f32 v{vGate+1}, 1.0, v{vGate}
    """)
    vA, vFacc = 24, 32
    nafter = 6 + 8
    for u in range(5):
        a = 104 + 4*(u & 1)
        for r in range(4): g(f"v_perm_b32 v{a+r}, v{vXw+u}, v{vXw+u}, v{vSel+r}")
        for m in range(2):
            k = 2*u+m
            g(f"s_waitcnt vmcnt({9-k+nafter})")
            if m == 0: g("s_nop 0")
            g(f"v_mfma_f32_16x16x32_bf16 {vr(vFacc+4*m,4)}, {vr(a,4)}, {vr(vF+4*k,4)}, {'0' if u == 0 else vr(vFacc+4*m,4)}")
    g(f"s_lshl_b32 s56, s50, 11\ns_add_u32 s56, s56, {FP}\ns_lshl_b32 s49, {sQt}, 9\ns_add_u32 s53, s56, s49\ns_nop 4")
    gemv_reduce_publish(g, vFacc, vG, 13, 2048, 's53', vTa, vTb, vFF)
    g.stamp('fp')
    g(f"s_mul_i32 s61, {sWAVE}, 12288")
    for gam in range(3):
        for rho in range(2):
            for gp in range(2):
                g(f"s_add_u32 m0, s61, {(gam*4+rho*2+gp)*1024}\ns_add_u32 s49, s59, {gam*512 + (16*gp+4*rho)*1280}")
                if gam == 2: g("s_add_u32 s49, s49, s60")
                g(f"buffer_load_dwordx4 v29, {SC}, s49 offen {NT} lds")
    g.stamp('iss2')
    vTo = 192
    g(f"""
    v_bfe_u32 v3, v0, 2, 3
    v_lshlrev_b32 v4, 7, v3
    v_lshrrev_b32 v3, 1, v3
    v_lshl_add_u32 v4, v3, 5, v4
    v_and_b32 v3, 3, v0
    v_lshl_add_u32 v4, v3, 3, v4
    v_lshrrev_b32 v3, 5, v0
    v_lshl_add_u32 v4, v3, 10, v4
    s_mul_i32 s49, {sWAVE}, 6144
    s_add_u32 s49, s49, {LWD}
    """)
    for q in range(4):
        g(f"v_xor_b32 v3, {q*32}, v4\nv_add_u32 v{vTo+q}, s61, v3\nv_add_u32 v{vTo+4+q}, s49, v3")
    g(f"""
    v_lshrrev_b32 v3, 2, v0
    v_lshlrev_b32 v4, 6, v3
    v_bfe_u32 v3, v0, 4, 1
    v_lshl_add_u32 v4, v3, 5, v4
    v_and_b32 v3, 3, v0
    v_lshl_add_u32 v4, v3, 3, v4
    v_add_u32 v200, s63, v4
    v_xor_b32 v201, 32, v200
    """)
    g(f"""
    v_and_b32 v3, 3, v0
    v_lshlrev_b32 v14, 9, v3
    v_lshl_add_u32 v14, v2, 4, v14
    s_lshl_b32 s49, {sQt}, 6
    s_add_u32 s56, s56, s49
    s_mov_b32 {sSpin}, 0
    """)
    Lf = g.label("fp")
    g(f"{Lf}:")
    g(f"buffer_load_dwordx4 v[24:27], v14, {SWS}, s56 offen sc1\nbuffer_load_dwordx4 v[28:31], v14, {SWS}, s56 offen offset:256 sc1")
    spin_check(g)
    g(f"s_waitcnt vmcnt(0)\nv_xor_b32 v3, {sT[0]}, v24")
    for k in range(1, 8): g(f"v_bitop3_b32 v3, v3, v{24+k}, {sT[k&3]} bitop3:0xf6")
    g(f"v_and_b32 v3, 0xff, v3\nv_cmp_ne_u32 vcc, 0, v3\ns_cbranch_vccnz {Lf}")
    g.stamp('fpok')
    aD, aO, aU = 0, 24, 72
    for gam in range(3):
        for q in range(4): g(f"ds_read_b64_tr_b16 {ar(aD+(gam*4+q)*2,2)}, v{vTo+4+q} offset:{gam*2048}")
    quad_sum(g, 24, 8)
    for k in range(4): g(f"v_cvt_pk_bf16_f32 v{32+k}, v{24+k}, v{28+k}")
    for k in range(4): g(f"v_lshlrev_b32 v{24+k}, 16, v{32+k}\nv_and_b32 v{28+k}, 0xffff0000, v{32+k}")
    c1 = -2*0.7978845608028654*1.4426950408889634
    g(f"s_mov_b32 s49, {f2u(c1*0.044715):#x}\nv_mov_b32 v3, {f2u(c1):#x}")
    for k in range(4): g(f"v_mul_f32 v{32+k}, v{24+k}, v{24+k}")
    for k in range(4): g(f"v_fma_f32 v{32+k}, v{32+k}, s49, v3")
    for k in range(4): g(f"v_mul_f32 v{32+k}, v{32+k}, v{24+k}")
    for k in range(4): g(f"v_exp_f32 v{32+k}, v{32+k}")
    g("s_nop 0")
    for k in range(4): g(f"v_add_f32 v{32+k}, 1.0, v{32+k}")
    for k in range(4): g(f"v_rcp_f32 v{32+k}, v{32+k}")
    g("s_nop 0")
    for k in range(4): g(f"v_mul_f32 v{32+k}, v{32+k}, v{24+k}")
    for k in range(4): g(f"v_cvt_pk_bf16_f32 v{32+k}, v{32+k}, v{32+k}")
    for k in range(4): g(f"v_and_b32 v{32+k}, 0xffff0000, v{32+k}\nv_mul_f32 v{32+k}, v{32+k}, v{28+k}")
    g("v_cvt_pk_bf16_f32 v24, v32, v33\nv_cvt_pk_bf16_f32 v25, v34, v35")
    for gam in range(3):
        g(f"v_cmp_eq_u32 vcc, {4*gam}, v1\ns_nop 1\nv_cndmask_b32 v{26+2*gam}, 0, v24, vcc\nv_cndmask_b32 v{27+2*gam}, 0, v25, vcc")
    for gam in range(3):
        for rho in range(2):
            for q in range(4): g(f"ds_read_b64_tr_b16 {ar(aO+(gam*4+q)*4+2*rho,2)}, v{vTo+q} offset:{gam*4096+rho*2048}")
    for s in range(4):
        for rho in range(2):
            for dt in range(2): g(f"ds_read_b64_tr_b16 {ar(aU+(dt*4+s)*4+2*rho,2)}, v{200+dt} offset:{(s*2+rho)*1024}")
    g("s_waitcnt lgkmcnt(0)")
    vOa = 176
    for gam in range(3):
        for q in range(4):
            g(f"v_mfma_f32_16x16x16_bf16 {vr(vOa+4*q,4)}, {vr(26+2*gam,2)}, {ar(aD+(gam*4+q)*2,2)}, {'0' if gam == 0 else vr(vOa+4*q,4)}")
    g(f"""
    v_and_b32 v3, 7, v0
    v_mul_u32_u24 v15, {XPS}, v3
    v_bfe_u32 v3, v0, 3, 1
    v_lshl_add_u32 v14, v3, 8, v15
    v_lshl_add_u32 v14, v2, 5, v14
    s_mul_i32 s54, {sH}, {8*XPS}
    s_add_u32 s54, s54, {XP}
    s_lshl_b32 s49, {sWAVE}, 9
    s_add_u32 s55, s54, s49
    s_mov_b32 {sSpin}, 0
    """)
    for k in range(16): g(f"v_mul_f32 v{vOa+k}, v{vGate+1}, v{vOa+k}")
    g(f"""
    s_lshl_b32 s49, {sWAVE}, 7
    s_add_u32 s49, s49, {LCX}
    v_lshlrev_b32 v40, 6, v3
    v_lshl_add_u32 v40, v2, 4, v40
    v_add_u32 v40, s49, v40
    v_and_b32 v3, 3, v0
    v_lshlrev_b32 v41, 7, v3
    v_lshl_add_u32 v41, v2, 5, v41
    v_add_u32 v41, {LCX}, v41
    v_lshrrev_b32 v42, 2, v1
    v_lshlrev_b32 v43, 10, v2
    v_lshl_add_u32 v43, v1, 4, v43
    s_lshl_b32 s56, {sXg}, 4
    s_add_u32 s56, s56, {sIdx}
    s_mul_i32 s56, s56, 2560
    s_lshl_b32 s49, {sWAVE}, 8
    s_add_u32 s56, s56, s49
    s_add_u32 s56, s56, {OP}
    v_cmp_eq_u32 s[50:51], 0, v42
    v_cmp_eq_u32 s[52:53], 1, v42
    v_cmp_eq_u32 s[58:59], 2, v42
    v_cmp_gt_u32 s[62:63], 8, v1
    """)
    g.stamp('rdy')
    Lm = g.label("xm")
    g(f"{Lm}:\nbuffer_load_dwordx3 v[24:26], v15, {SWS}, s54 offen offset:2048 sc1")
    spin_check(g)
    g(f"s_waitcnt vmcnt(0)\nv_cmp_ne_u32 vcc, {sT[0]}, v26\ns_cbranch_vccnz {Lm}")
    g.stamp('xm')
    vD = 64
    def xp_loads():
        for s in range(2):
            for gg in range(2):
                g(f"buffer_load_dwordx4 {vr(vD+(s*2+gg)*4,4)}, v14, {SWS}, s55 offen offset:{s*128+gg*16} sc1")
    xp_loads()
    def red8(reg, op):
        g(f"{op}_dpp v{reg}, v{reg}, v{reg} quad_perm:[1,0,3,2] row_mask:0xf bank_mask:0xf\ns_nop 1")
        g(f"{op}_dpp v{reg}, v{reg}, v{reg} quad_perm:[2,3,0,1] row_mask:0xf bank_mask:0xf\ns_nop 1")
        g(f"{op}_dpp v{reg}, v{reg}, v{reg} row_half_mirror row_mask:0xf bank_mask:0xf")
    g("v_mov_b32 v27, v24\ns_nop 1")
    red8(27, "v_max_f32")
    g("v_sub_f32 v24, v24, v27\nv_exp_f32 v24, v24\ns_nop 0\nv_mul_f32 v25, v24, v25\ns_nop 1")
    red8(25, "v_add_f32")
    g(f"v_rcp_f32 v25, v25\nv_mul_f32 v24, v{vGate}, v24\nv_mul_f32 v204, v24, v25\ns_mov_b32 {sSpin}, 0")
    Lx, Lxok = g.label("xd"), g.label("xdok")
    g(f"{Lx}:\ns_waitcnt vmcnt(0)\nv_xor_b32 v3, {sT[0]}, v{vD}")
    for k in range(1, 16): g(f"v_bitop3_b32 v3, v3, v{vD+k}, {sT[k&3]} bitop3:0xf6")
    g(f"v_and_b32 v3, 0xff, v3\nv_cmp_ne_u32 vcc, 0, v3\ns_cbranch_vccz {Lxok}")
    xp_loads()
    spin_check(g)
    g(f"s_branch {Lx}\n{Lxok}:")
    g.stamp('xd')
    for k in range(8): g(f"v_cvt_pk_bf16_f32 v{80+k}, v{vD+2*k}, v{vD+2*k+1}")
    g("s_nop 0")
    for s in range(2):
        for hi in range(2):
            for dt in range(2):
                acc = 96 + 8*hi + 4*dt
                g(f"v_mfma_f32_16x16x32_bf16 {vr(acc,4)}, {ar(aU+(dt*4+s+2*hi)*4,4)}, {vr(80+4*s,4)}, {'0' if s == 0 else vr(acc,4)}")
    g("s_nop 6")
    for r in range(4): g(f"v_cndmask_b32 v{28+r}, v{104+r}, v{100+r}, s[62:63]")
    for r in range(4): g(f"v_cndmask_b32 v{24+r}, v{108+r}, v{96+r}, s[62:63]")
    g("s_nop 0")
    for r in range(4): g(f"v_add_f32_dpp v{24+r}, v{28+r}, v{24+r} row_ror:8 row_mask:0xf bank_mask:0xf")
    for r in range(4): g(f"v_mul_f32 v{24+r}, v204, v{24+r}")
    quad_sum(g, 24, 4)
    for r in range(4): g(f"v_add_f32_dpp v{24+r}, v{24+r}, v{24+r} row_half_mirror row_mask:0xf bank_mask:0xf")
    g("ds_write_b128 v40, v[24:27]\ns_waitcnt lgkmcnt(0)\ns_barrier")
    g("ds_read_b128 v[24:27], v41\nds_read_b128 v[28:31], v41 offset:16\ns_waitcnt lgkmcnt(0)")
    for k in range(4): g(f"v_cvt_pk_bf16_f32 v{24+k}, v{24+2*k}, v{25+2*k}")
    msk = ['s[50:51]', 's[52:53]', 's[58:59]']
    for gam in range(3):
        for k in range(4): g(f"v_cndmask_b32 v{112+4*gam+k}, 0, v{24+k}, {msk[gam]}")
    g("s_nop 1")
    for gam in range(3):
        for q in range(4):
            g(f"v_mfma_f32_16x16x32_bf16 {vr(vOa+4*q,4)}, {vr(112+4*gam,4)}, {ar(aO+(gam*4+q)*4,4)}, {vr(vOa+4*q,4)}")
    g(f"s_cmp_ge_u32 {sWAVE}, 2\ns_cselect_b32 s49, 0, 0xffff\ns_nop 3")
    for q in range(4):
        if q == 3: g("s_nop 0")
        g(f"v_pk_add_f32 {vr(vOa+4*q,2)}, {vr(vOa+4*q,2)}, {vr(vOa+4*q+2,2)}")
    for q in range(4): g(f"v_add_f32 v{24+q}, v{vOa+4*q}, v{vOa+4*q+1}")
    for q in range(4): g(f"v_bfi_b32 v{24+q}, v{vFF}, {sT[q]}, v{24+q}")
    g(f"s_mov_b32 exec_hi, s49\nbuffer_store_dwordx4 v[24:27], v43, {SWS}, s56 offen sc1")
    g.stamp('op')

def build(**opt):
    g = G(**opt)
    g.o.append(HEADER.rstrip('\n'))
    g.o.append("; @launch grid=(256,1,1) block=(256,1,1) lds=163840")
    g.o.append('.amdgcn_target "amdgcn-amd-amdhsa--gfx950"')
    g.o.append(f".text\n.globl {KN}\n.p2align 8\n.type {KN},@function\n{KN}:")
    g.stamp('st')
    g(f"""
    v_lshrrev_b32 v1, 6, v0
    s_cmp_ge_u32 s2, 256
    s_cbranch_scc1 L_end
    v_readfirstlane_b32 {sWAVE}, v1
    v_and_b32 v0, 63, v0
    s_cmp_ge_u32 s2, 128
    s_cbranch_scc1 L_wgt
    """)
    attention(g)
    weight(g)
    g("L_fin:")
    if g.opt['STAMPS']:
        g("s_memrealtime s[100:101]\ns_waitcnt lgkmcnt(0)\ns_mov_b64 exec, 1")
        g(f"s_lshl_b32 s49, s2, 2\ns_add_u32 s49, s49, {sWAVE}\ns_lshl_b32 s49, s49, 7\ns_add_u32 s49, s49, {STAMP}\nv_mov_b32 v1, 0")
        g.o.append("; STAMPS att " + " ".join(g.names['att']))
        g.o.append("; STAMPS wgt " + " ".join(g.names['wgt']))
        for q in range(5):
            for k in range(4):
                idx = 4*q+k
                g(f"v_mov_b32 v{4+k}, s{64+2*idx}" if idx <= 18 else f"v_mov_b32 v{4+k}, {sSpin}")
            g(f"buffer_store_dwordx4 v[4:7], v1, {SWS}, s49 offen offset:{16*q}\ns_nop 1")
    if g.opt.get('DBG'):
        wg = g.opt['DBG'] - 1
        g(f"""
        s_cmp_lg_u32 s2, {wg}
        s_cbranch_scc1 L_end
        s_cmp_lg_u32 {sWAVE}, 0
        s_cbranch_scc1 L_end
        s_load_dwordx2 s[4:5], s[0:1], 96
        s_mov_b32 s6, 256
        s_mov_b32 s7, 0x20000
        s_waitcnt lgkmcnt(0)
        """)
        for q in range(4):
            for k in range(4):
                idx = 4*q+k+1
                if idx == 16: idx = 18
                g(f"s_sub_u32 s49, s{64+2*idx}, s64\nv_mov_b32 v{4+k}, s49")
            g(f"buffer_store_dwordx4 v[4:7], v1, s[4:7], 0 offen offset:{16*q}\ns_nop 1")
    g("L_end:\ns_endpgm")
    g.o.append(f""".section .rodata,"a"
.p2align 6
.amdhsa_kernel {KN}
  .amdhsa_next_free_vgpr 512
  .amdhsa_next_free_sgpr 102
  .amdhsa_accum_offset 256
  .amdhsa_group_segment_fixed_size 0
  .amdhsa_kernarg_size 112
  .amdhsa_user_sgpr_count 2
  .amdhsa_user_sgpr_kernarg_segment_ptr 1
  .amdhsa_system_sgpr_workgroup_id_x 1
  .amdhsa_float_denorm_mode_32 3
.end_amdhsa_kernel""")
    return g.text()

if __name__ == '__main__':
    out = sys.argv[1]
    opt = {}
    for a in sys.argv[2:]:
        k, v = a.split('=')
        try: v = int(v, 0)
        except ValueError: pass
        opt[k] = v
    t = build(**opt)
    open(out, 'w').write(t)
    import hazard
    for p in hazard.check(t): print("HAZARD", p)
```

```python
import sys
KN = "gated_mix__compressed_kv_cla__geglu_ffn__decode_kernel"

HEADER = open('gated_mix__compressed_kv_cla__geglu_ffn__decode.s.ref').read().split('; Override launch')[0]

EPOCH = 0
XC   = 0x1000
FLG  = 0x2000
QP   = 0x10000
QA   = 0x20000
ML   = 0x30000
FP   = 0x40000
OP   = 0x50000
XP   = 0xA0000
XPS  = 2176
PART = 0x200000
STAMP = 0x600000
WSSZ = 0x700000
SPIN = 1 << 17
QB = 131072
SCALE = 0.08838834764831845 * 1.4426950408889634

import struct
def f2u(f): return struct.unpack('<I', struct.pack('<f', f))[0]

class G:
    def __init__(self, **opt):
        self.o = []
        self.opt = dict(WSB=0, NPRE=24, LAG=2, LOCAL=1, PRETOUCH=1, STAMPS=0, NT='nt', CORDER='cb')
        self.opt.update(opt)
        self.names = {'att': [], 'wgt': []}; self.role = 'att'
        self.lab = 0
    def __call__(self, s):
        for l in s.strip('\n').split('\n'):
            self.o.append(l.strip() if l.strip().endswith(':') else '    ' + l.strip())
    def label(self, p):
        self.lab += 1
        return f"L_{p}_{self.lab}"
    def stamp(self, name):
        if self.opt['STAMPS']:
            k = len(self.names[self.role]); self.names[self.role].append(str(name))
            assert k < 18
            self(f"s_memrealtime s[{64+2*k}:{65+2*k}]")
    def text(self): return '\n'.join(self.o) + '\n'

def vr(b, n=1): return f"v{b}" if n == 1 else f"v[{b}:{b+n-1}]"
def ar(b, n=1): return f"a{b}" if n == 1 else f"a[{b}:{b+n-1}]"

sWAVE = 's3'
SX, SA, SB, SC, SWS, SD, SE, SF, SG = 's[4:7]', 's[8:11]', 's[12:15]', 's[16:19]', 's[20:23]', 's[24:27]', 's[28:31]', 's[32:35]', 's[36:39]'
sT = ['s40', 's41', 's42', 's43']
sXg, sIdx, sH, sQt = 's44', 's45', 's46', 's47'
sSpin = 's48'

def srd_tail(g, base, size):
    g(f"s_mov_b32 s{base+2}, {size}\ns_mov_b32 s{base+3}, 0x20000")

def common_epoch(g):
    if g.opt['WSB']:
        g(f"s_add_u32 s20, s20, {g.opt['WSB']}\ns_addc_u32 s21, s21, 0")
    g(f"s_load_dword s40, s[20:21], {EPOCH}")

def epoch_finish(g):
    g("s_waitcnt lgkmcnt(0)")
    g("s_add_u32 s40, s40, 0x01010101\ns_lshr_b32 s41, s40, 8\ns_lshr_b32 s42, s40, 16\ns_lshr_b32 s43, s40, 24")

def spin_check(g):
    g(f"s_add_u32 {sSpin}, {sSpin}, 1\ns_cmp_gt_u32 {sSpin}, {SPIN}\ns_cbranch_scc1 L_end")

def sel_setup(g, vSel, vt):
    t0, t1, t2 = vt, vt+1, vt+2
    g(f"""
    v_bfe_u32 v{t0}, v0, 3, 1
    v_mul_u32_u24 v{t0}, 0x0202, v{t0}
    v_add_u32 v{t0}, 0x0100, v{t0}
    v_or_b32 v{t1}, 0x0c0c0000, v{t0}
    v_lshlrev_b32 v{t0}, 16, v{t0}
    v_or_b32 v{t0}, 0x0c0c, v{t0}
    v_and_b32 v{t2}, 1, v0
    v_cmp_eq_u32 vcc, 1, v{t2}
    v_bfe_u32 v{t2}, v0, 1, 2
    v_mov_b32 v{vSel+3}, 0x0c0c0c0c
    v_cndmask_b32 v{t0}, v{t1}, v{t0}, vcc
    """)
    for r in range(4):
        g(f"v_cmp_eq_u32 vcc, {r}, v{t2}\ns_nop 1\nv_cndmask_b32 v{vSel+r}, v{vSel+3}, v{t0}, vcc")

def gemv_reduce_publish(g, vacc, vt, lds_w, lds_stride, sdst, vTa, vTb, vFF, after_barrier=None):
    g(f"ds_write_b128 v{lds_w}, {vr(vacc,4)}\nds_write_b128 v{lds_w}, {vr(vacc+4,4)} offset:1024")
    g("s_waitcnt lgkmcnt(0)\ns_barrier")
    skip = g.label("skip")
    g(f"s_cmp_lg_u32 {sWAVE}, 0\ns_cbranch_scc1 {skip}")
    d = vt + 4
    for wv in range(4):
        g(f"ds_read_b128 {vr(d+4*wv,4)}, v{vt} offset:{wv*lds_stride}")
    g("s_waitcnt lgkmcnt(2)")
    for r in range(4): g(f"v_add_f32 v{d+r}, v{d+r}, v{d+4+r}")
    g("s_waitcnt lgkmcnt(0)")
    for r in range(4): g(f"v_add_f32 v{d+8+r}, v{d+8+r}, v{d+12+r}")
    for r in range(4): g(f"v_add_f32 v{d+r}, v{d+r}, v{d+8+r}")
    g(f"s_nop 0\nv_permlane32_swap_b32 v{d}, v{d+2}\nv_permlane32_swap_b32 v{d+1}, v{d+3}")
    g(f"v_add_f32 v{d}, v{d}, v{d+2}\nv_add_f32 v{d+1}, v{d+1}, v{d+3}")
    g(f"v_bfi_b32 v{d}, v{vFF}, v{vTa}, v{d}\nv_bfi_b32 v{d+1}, v{vFF}, v{vTb}, v{d+1}")
    g(f"buffer_store_dwordx2 {vr(d,2)}, v{vt+1}, {SWS}, {sdst} offen sc1")
    g(f"{skip}:")

def gemv_addr_setup(g, vt, vTa, vTb, vFF, lds_base, t):
    g(f"""
    v_lshrrev_b32 v{t}, 5, v0
    v_mul_u32_u24 v{vt}, 40*16, v{t}
    v_and_b32 v{t+1}, 1, v0
    v_lshl_add_u32 v{vt}, v{t+1}, 8, v{vt}
    v_bfe_u32 v{t+1}, v0, 1, 3
    v_lshl_add_u32 v{vt}, v{t+1}, 4, v{vt}
    v_bfe_u32 v{t+1}, v0, 4, 1
    v_lshl_add_u32 v{vt}, v{t+1}, 10, v{vt}
    v_add_u32 v{vt}, {lds_base}, v{vt}
    v_and_b32 v{t+1}, 31, v0
    v_lshlrev_b32 v{t+1}, 4, v{t+1}
    v_lshl_add_u32 v{vt+1}, v{t}, 3, v{t+1}
    v_lshlrev_b32 v{t}, 4, v{t}
    v_mov_b32 v{vFF}, 0xff
    """)

def attention(g):
    o = g.opt
    NT = o['NT']
    g("L_att:")
    g("""
    s_load_dwordx2 s[4:5], s[0:1], 0
    s_load_dwordx2 s[12:13], s[0:1], 16
    s_load_dwordx2 s[8:9], s[0:1], 8
    s_load_dwordx2 s[20:21], s[0:1], 104
    s_load_dwordx2 s[16:17], s[0:1], 88
    """)
    srd_tail(g, 4, 1280); srd_tail(g, 12, 640*8192); srd_tail(g, 8, 16384*1024); srd_tail(g, 20, WSSZ); srd_tail(g, 16, 1280)
    g(f"""
    s_and_b32 {sXg}, s2, 7
    s_lshr_b32 {sIdx}, s2, 3
    s_lshr_b32 s49, {sIdx}, 2
    s_lshl_b32 {sH}, {sXg}, 2
    s_add_u32 {sH}, {sH}, s49
    s_and_b32 {sQt}, {sIdx}, 3
    s_lshl_b32 s50, {sXg}, 4
    s_add_u32 s50, s50, {sIdx}
    """)
    vXw, vSel, vA, vQacc, vDma = 8, 16, 24, 32, 14
    vWq = 128
    g(f"""
    v_lshrrev_b32 v3, 4, v0
    v_mul_u32_u24 v1, 80, v3
    v_mul_u32_u24 v2, 40, v3
    v_bfe_u32 v3, v0, 3, 1
    v_add_u32 v2, v2, v3
    v_lshlrev_b32 v2, 13, v2
    v_and_b32 v3, 7, v0
    v_lshl_add_u32 v2, v3, 4, v2
    s_mul_i32 s51, {sQt}, 160
    s_mul_i32 s49, {sWAVE}, 10
    s_add_u32 s51, s51, s49
    s_lshl_b32 s52, s51, 13
    s_lshl_b32 s51, s51, 1
    s_lshl_b32 s49, {sH}, 8
    s_add_u32 s52, s52, s49
    s_waitcnt lgkmcnt(0)
    """)
    g.stamp('karg')
    g(f"buffer_load_dwordx4 {vr(vXw,4)}, v1, {SX}, s51 offen\nbuffer_load_dword v{vXw+4}, v1, {SX}, s51 offen offset:16")
    for u in range(5):
        g(f"buffer_load_dwordx4 {vr(vWq+8*u,4)}, v2, {SB}, s52 offen {NT}")
        g(f"buffer_load_dwordx4 {vr(vWq+8*u+4,4)}, v2, {SB}, s52 offen offset:128 {NT}")
        if u < 4: g("s_add_u32 s52, s52, 16384")
    common_epoch(g)
    sel_setup(g, vSel, 3)
    g(f"""
    v_lshrrev_b32 v3, 3, v0
    v_and_b32 v4, 6, v3
    v_and_b32 v5, 7, v0
    v_xor_b32 v4, v4, v5
    v_lshlrev_b32 v4, 4, v4
    v_lshl_add_u32 v{vDma}, v3, 10, v4
    v_xor_b32 v{vDma+1}, 16, v{vDma}
    s_lshl_b32 s53, s50, 17
    s_lshl_b32 s54, {sWAVE}, 15
    s_add_u32 s53, s53, s54
    """)
    vG = 44
    vTa, vTb, vFF = 212, 213, 214
    gemv_addr_setup(g, vG, vTa, vTb, vFF, 6144, 6)
    g(f"s_lshl_b32 s49, {sWAVE}, 13\ns_add_u32 s49, s49, 6144\nv_lshl_add_u32 v13, v0, 4, s49")
    for r in range(8): g(f"v_mov_b32 v{vQacc+r}, 0")
    epoch_finish(g)
    g(f"v_mov_b32 v{vTa}, {sT[0]}\nv_lshrrev_b32 v{vTa}, v6, v{vTa}\nv_lshrrev_b32 v{vTb}, 8, v{vTa}")
    g(f"s_lshl_b32 s55, {sH}, 2\ns_add_u32 s55, s55, {sQt}\ns_lshl_b32 s55, s55, 9\ns_add_u32 s55, s55, {QP}")
    if o['CORDER'] == 'cb':
        dma = [(cb, ro) for cb in range(8) for ro in range(4)]
    else:
        dma = [(2*cp+c, ro) for cp in range(4) for ro in range(4) for c in range(2)]
    state = dict(nd=0)
    def issue_dma():
        cb, ro = dma[state['nd']]
        g(f"s_add_u32 m0, s54, {ro*8192+cb*1024}\ns_add_u32 s49, s53, {ro*8192+cb*128}")
        g(f"buffer_load_dwordx4 v{vDma+(ro&1)}, {SA}, s49 offen {NT} lds")
        state['nd'] += 1
    for u in range(5):
        a = vA + 4*(u & 1)
        if u == 0: g(f"s_waitcnt vmcnt({10})")
        for r in range(4): g(f"v_perm_b32 v{a+r}, v{vXw+u}, v{vXw+u}, v{vSel+r}")
        for m in range(2):
            k = 2*u+m
            g(f"s_waitcnt vmcnt({9-k+state['nd']})")
            if m == 0: g("s_nop 0")
            g(f"v_mfma_f32_16x16x32_bf16 {vr(vQacc+4*m,4)}, {vr(a,4)}, {vr(vWq+4*k,4)}, {vr(vQacc+4*m,4)}")
            if k >= o['LAG'] and k < 9: issue_dma()
    g.stamp('w1')
    g("s_nop 7")
    gemv_reduce_publish(g, vQacc, vG, 13, 8192, 's55', vTa, vTb, vFF)
    g.stamp('qp')
    if o['LOCAL']:
        sk = g.label("xc")
        g(f"""
        s_getreg_b32 s56, hwreg(HW_REG_XCC_ID, 0, 4)
        s_cmp_lg_u32 {sWAVE}, 1
        s_cbranch_scc1 {sk}
        v_mov_b32 v4, s56
        v_mov_b32 v5, {sT[0]}
        v_mov_b32 v3, 0
        s_lshl_b32 s49, s50, 3
        s_add_u32 s49, s49, {XC}
        s_mov_b64 exec, 1
        buffer_store_dwordx2 v[4:5], v3, {SWS}, s49 offen sc1
        s_mov_b64 exec, -1
        {sk}:
        """)
    NPRE = o['NPRE']
    while state['nd'] < NPRE: issue_dma()
    g.stamp('pre')
    vQs = 64
    g(f"v_lshlrev_b32 v7, 4, v0\ns_lshl_b32 s57, {sWAVE}, 14\ns_add_u32 s57, s57, {QA}")
    def sweep():
        g("s_mov_b32 s49, s57")
        for i in range(16):
            g(f"buffer_load_dwordx4 {vr(vQs+4*i,4)}, v7, {SWS}, s49 offen offset:{(i&3)*1024} sc1")
            if i & 3 == 3 and i < 15: g("s_add_u32 s49, s49, 4096")
    sweep()
    g.stamp('swp')
    while state['nd'] < 32: issue_dma()
    npost = 0
    vPT = 215
    g(f"""
    s_lshl_b32 s58, {sXg}, 19
    s_lshl_b32 s49, {sIdx}, 11
    s_add_u32 s58, s58, s49
    s_lshl_b32 s49, {sWAVE}, 8
    s_add_u32 s58, s58, s49
    s_add_u32 s58, s58, {PART}
    s_lshl_b32 s59, {sXg}, 13
    s_lshl_b32 s49, {sIdx}, 5
    s_add_u32 s59, s59, s49
    s_add_u32 s59, s59, {ML}
    s_lshl_b32 s60, {sXg}, 8
    s_lshl_b32 s49, {sWAVE}, 6
    s_add_u32 s60, s60, s49
    s_add_u32 s60, s60, {FLG}
    v_and_b32 v220, 15, v0
    v_lshlrev_b32 v221, 2, v220
    """)
    if o['LOCAL']:
        if o['PRETOUCH']:
            g(f"""
            v_lshrrev_b32 v3, 2, v0
            v_lshlrev_b32 v3, 15, v3
            v_bfe_u32 v4, v0, 1, 1
            v_lshl_add_u32 v3, v4, 10, v3
            v_and_b32 v4, 1, v0
            v_lshl_add_u32 v3, v4, 7, v3
            v_lshlrev_b32 v4, 9, v220
            buffer_load_dword v{vPT}, v3, {SWS}, s58 offen sc1
            buffer_load_dword v{vPT+1}, v4, {SWS}, s59 offen sc1
            buffer_load_dword v{vPT+2}, v221, {SWS}, s60 offen sc1
            """)
            npost += 3
        g(f"""
        v_lshlrev_b32 v3, 3, v220
        s_lshl_b32 s49, {sXg}, 7
        s_add_u32 s49, s49, {XC}
        buffer_load_dwordx2 v[218:219], v3, {SWS}, s49 offen sc1
        """)
        npost += 1
    g.stamp('iss')
    vAa, vQa, vQw, vTr = 36, 40, 208, 192
    g(f"""
    v_and_b32 v3, 6, v0
    v_bfe_u32 v4, v0, 3, 1
    v_or_b32 v3, v3, v4
    v_lshrrev_b32 v4, 5, v0
    v_xor_b32 v3, v3, v4
    v_lshlrev_b32 v3, 4, v3
    v_and_b32 v4, 7, v0
    v_lshl_add_u32 v3, v4, 7, v3
    v_bfe_u32 v4, v0, 3, 2
    v_lshl_add_u32 v3, v4, 13, v3
    v_add_u32 v{vAa}, s54, v3
    """)
    for s in range(1, 4): g(f"v_xor_b32 v{vAa+s}, {s*32}, v{vAa}")
    g(f"""
    v_lshrrev_b32 v4, 5, v0
    v_xor_b32 v3, v0, v4
    v_lshlrev_b32 v3, 4, v3
    v_add_u32 v{vQa}, {QB}, v3
    """)
    for s in range(1, 4): g(f"v_xor_b32 v{vQa+s}, {s*32}, v{vQa}\nv_add_u32 v{vQa+s}, {s*1024}, v{vQa+s}")
    g(f"""
    v_bfe_u32 v3, v0, 1, 3
    v_lshrrev_b32 v4, 5, v0
    v_xor_b32 v3, v3, v4
    v_lshlrev_b32 v3, 4, v3
    v_bfe_u32 v4, v0, 1, 4
    v_lshl_add_u32 v3, v4, 9, v3
    v_and_b32 v4, 1, v0
    v_lshl_add_u32 v3, v4, 3, v3
    s_lshl_b32 s49, {sWAVE}, 13
    s_add_u32 s49, s49, {QB}
    v_add_u32 v{vQw}, s49, v3
    """)
    for s in range(1, 4): g(f"v_xor_b32 v{vQw+s}, {s*32}, v{vQw}")
    g(f"""
    v_bfe_u32 v3, v0, 2, 3
    v_and_b32 v4, 6, v3
    v_bfe_u32 v5, v0, 1, 1
    v_xor_b32 v4, v4, v5
    v_lshlrev_b32 v4, 4, v4
    v_lshl_add_u32 v4, v3, 7, v4
    v_and_b32 v5, 1, v0
    v_lshl_add_u32 v4, v5, 3, v4
    v_lshrrev_b32 v5, 5, v0
    v_lshl_add_u32 v4, v5, 14, v4
    s_lshl_b32 s49, {sWAVE}, 11
    v_add_u32 v{vTr}, s49, v4
    """)
    for c in range(4):
        for rho in range(2):
            if c == 0 and rho == 0: continue
            g(f"v_xor_b32 v{vTr+2*c+rho}, {c*32 + rho*16}, v{vTr}")
            if rho: g(f"v_add_u32 v{vTr+2*c+rho}, 8192, v{vTr+2*c+rho}")
    for k in range(8): g(f"v_add_u32 v{vTr+8+k}, 0x10000, v{vTr+k}")
    vMask = 16
    g(f"""
    v_and_b32 v3, 1, v0
    v_lshlrev_b32 v3, 4, v3
    v_mov_b32 v4, 0xffff
    v_lshlrev_b32 v3, v3, v4
    v_bfe_u32 v4, v0, 1, 3
    """)
    for k in range(8):
        g(f"v_cmp_eq_u32 vcc, {k}, v4\ns_nop 1\nv_cndmask_b32 v{vMask+k}, 0, v3, vcc")
    g(f"""
    v_and_b32 v3, 31, v0
    v_lshlrev_b32 v223, 4, v3
    v_add_u32 v223, {QB}, v223
    s_lshl_b32 s49, {sWAVE}, 2
    v_add_u32 v222, s49, v223
    v_lshlrev_b32 v225, 5, v3
    v_add_u32 v225, {QB+512}, v225
    v_lshrrev_b32 v4, 5, v0
    v_lshl_add_u32 v224, v4, 2, v225
    s_lshl_b32 s49, {sWAVE}, 3
    v_add_u32 v224, s49, v224
    v_lshlrev_b32 v226, 4, v220
    v_lshl_add_u32 v226, v4, 8, v226
    v_bfe_u32 v4, v0, 4, 1
    v_lshl_add_u32 v226, v4, 10, v226
    s_lshl_b32 s49, {sWAVE}, 11
    s_add_u32 s49, s49, {QB+2048}
    v_add_u32 v226, s49, v226
    v_add_u32 v227, {QB+2048}, v7
    v_lshlrev_b32 v228, 4, v3
    v_lshrrev_b32 v4, 4, v0
    v_lshlrev_b32 v229, 4, v220
    v_lshl_add_u32 v230, v4, 15, v229
    v_lshl_add_u32 v229, v4, 12, v229
    v_bfe_u32 v3, v0, 3, 1
    v_lshlrev_b32 v3, 4, v3
    v_lshl_add_u32 v231, v4, 9, v3
    """)
    nafter = (32 - NPRE) + npost
    Lq, Lqok = g.label("q"), g.label("qok")
    g(f"s_mov_b32 {sSpin}, 0\ns_waitcnt vmcnt({nafter})")
    g.stamp('sw1')
    g(f"{Lq}:")
    g(f"v_xor_b32 v3, {sT[0]}, v{vQs+2}")
    for i in range(1, 16): g(f"v_bitop3_b32 v3, v3, v{vQs+4*i+2}, {sT[0]} bitop3:0xf6")
    g(f"v_cmp_ne_u32 vcc, 0, v3\ns_cbranch_vccz {Lqok}")
    spin_check(g)
    sweep()
    g(f"s_waitcnt vmcnt(0)\ns_branch {Lq}")
    g(f"{Lqok}:")
    g.stamp('qok')
    for i in range(16):
        g(f"ds_write_b64 v{vQw+(i&3)}, {vr(vQs+4*i,2)} offset:{(i>>2)*128}")
    g("s_waitcnt lgkmcnt(0)\ns_barrier")
    vS, vAf = 48, 128
    lastd = {}
    for k, (cb, ro) in enumerate(dma): lastd[cb] = k
    nb0 = len([cb for cb in range(8) if lastd[cb] < NPRE])
    def rdQ(s): g(f"ds_read_b128 {ar(4*s,4)}, v{vQa+(s&3)} offset:{(s>>2)*4096}")
    def rdA(s): g(f"ds_read_b128 {vr(vAf+4*(s%16),4)}, v{vAa+(s&3)} offset:{(s>>2)*1024}")
    def mm(s): g(f"v_mfma_f32_32x32x16_bf16 {vr(vS,16)}, {vr(vAf+4*(s%16),4)}, {ar(4*s,4)}, {'0' if s == 0 else vr(vS,16)}")
    n0 = 4*nb0
    D = 4
    qnext = 0
    for s in range(min(D, n0)): rdQ(s); rdA(s)
    qnext = min(D, n0)
    for s in range(n0):
        if s + D < n0:
            g(f"s_waitcnt lgkmcnt({2*(D-1)})"); mm(s); rdQ(s+D); rdA(s+D); qnext = s+D+1
        else:
            rem = n0 - 1 - s
            extra = qnext - n0
            g(f"s_waitcnt lgkmcnt({min(15, 2*rem + extra)})"); mm(s)
            for _ in range(2):
                if qnext < 32: rdQ(qnext); qnext += 1
    while qnext < 32: rdQ(qnext); qnext += 1
    g("s_waitcnt lgkmcnt(0)\ns_barrier")
    for cb in range(nb0, 8):
        g(f"s_waitcnt vmcnt({31 - lastd[cb] + npost})")
        for s in range(4*cb, 4*cb+4): rdA(s)
        for s in range(4*cb, 4*cb+4):
            g(f"s_waitcnt lgkmcnt({4*cb+3-s})"); mm(s)
    g.stamp('qk')
    g("s_nop 15")
    g(f"v_max3_f32 v3, v{vS}, v{vS+1}, v{vS+2}")
    for k in range(3, 15, 2): g(f"v_max3_f32 v3, v3, v{vS+k}, v{vS+k+1}")
    g(f"v_max_f32 v3, v3, v{vS+15}\nv_mov_b32 v4, v3\ns_nop 1\nv_permlane32_swap_b32 v3, v4\nv_max_f32 v3, v3, v4")
    g("ds_write_b32 v222, v3\ns_waitcnt lgkmcnt(0)\ns_barrier")
    g.stamp('mx')
    g("ds_read_b128 v[24:27], v223")
    trl = [(ct, t, rho) for ct in range(8) for t in range(4) for rho in range(2)]
    tri = dict(n=0)
    def rdT(k=1):
        for _ in range(k):
            if tri['n'] >= 64: return
            ct, t, rho = trl[tri['n']]; tri['n'] += 1
            g(f"ds_read_b64_tr_b16 {ar(128+(ct*4+t)*4+2*rho,2)}, v{vTr+(t>>1)*8+(ct&3)*2+rho} offset:{(t&1)*32768+(ct>>2)*1024}")
    rdT(12)
    g("s_waitcnt lgkmcnt(12)")
    vM = 232
    g(f"v_max3_f32 v{vM}, v24, v25, v26\nv_max_f32 v{vM}, v{vM}, v27")
    for k in range(16): g(f"v_sub_f32 v{vS+k}, v{vS+k}, v{vM}")
    for k in range(16):
        g(f"v_exp_f32 v{vS+k}, v{vS+k}")
        rdT(1)
    for k in range(8): g(f"v_cvt_pk_bf16_f32 v{24+k}, v{vS+2*k}, v{vS+2*k+1}")
    g("ds_write_b128 v226, v[24:27]\nds_write_b128 v226, v[28:31] offset:512")
    for k in range(4): g(f"v_pk_add_f32 {vr(vS+2*k,2)}, {vr(vS+2*k,2)}, {vr(vS+8+2*k,2)}")
    for k in range(2): g(f"v_pk_add_f32 {vr(vS+2*k,2)}, {vr(vS+2*k,2)}, {vr(vS+4+2*k,2)}")
    g(f"v_pk_add_f32 {vr(vS,2)}, {vr(vS,2)}, {vr(vS+2,2)}\nv_add_f32 v{vS}, v{vS}, v{vS+1}")
    g(f"ds_write_b32 v224, v{vS}\ns_waitcnt lgkmcnt(0)\ns_barrier")
    g.stamp('P')
    vP, vAcc = 128, 64
    for t in range(4):
        for ht in range(2): g(f"ds_read_b128 {vr(vP+(t*2+ht)*4,4)}, v227 offset:{(t*2+ht)*1024}")
    g("ds_read_b128 v[48:51], v225\nds_read_b128 v[52:55], v225 offset:16")
    if o['LOCAL']:
        g(f"""
        s_waitcnt vmcnt(0)
        v_xor_b32 v3, {sT[0]}, v219
        v_bitop3_b32 v3, v3, v218, s56 bitop3:0xf6
        v_cmp_ne_u32 vcc, 0, v3
        s_nop 1
        s_cmp_eq_u64 vcc, 0
        s_cselect_b32 s61, 1, 0
        """)
    ntr0 = tri['n']
    issued_after = 10
    pend = []
    for t in range(4):
        for ht in range(2): pend.append(('P', t, ht))
    pend += [('L', 0), ('L', 1)]
    def waitfor(tag):
        if tag in pend:
            idx = pend.index(tag)
            n = len(pend) - 1 - idx
            g(f"s_waitcnt lgkmcnt({min(n,15)})")
            if n <= 15: del pend[:idx+1]
            else: del pend[:len(pend)-15]
    nm = 0
    for ct in range(8):
        for t in range(4):
            waitfor(('T', ct, t, 1))
            for ht in range(2):
                waitfor(('P', t, ht))
                acc = vAcc + (ht*8+ct)*4
                g(f"v_mfma_f32_16x16x32_bf16 {vr(acc,4)}, {vr(vP+(t*2+ht)*4,4)}, {ar(128+(ct*4+t)*4,4)}, {'0' if t == 0 else vr(acc,4)}")
                nm += 1
                if tri['n'] < 64:
                    pend.append(('T',) + trl[tri['n']]); rdT(1)
                if nm == 12:
                    waitfor(('L', 1))
                    g("v_pk_add_f32 v[48:49], v[48:49], v[52:53]")
                if nm == 13: g("v_pk_add_f32 v[50:51], v[50:51], v[54:55]")
                if nm == 14: g("v_pk_add_f32 v[48:49], v[48:49], v[50:51]")
                if nm == 15: g(f"v_add_f32 v{vM+1}, v48, v49\nv_mov_b32 v{vM+2}, {sT[0]}")
                if nm == 16:
                    g(f"v_mov_b32 v{vM+3}, {sT[0]}\ns_lshl_b32 s49, {sWAVE}, 3\ns_lshl_b32 exec_lo, 0xff, s49\ns_mov_b32 exec_hi, 0")
                    g(f"s_lshl_b32 s49, s50, 9\ns_add_u32 s49, s49, {ML}")
                    dual_store(g, f"buffer_store_dwordx4 {vr(vM,4)}, v228, {SWS}, s49 offen")
                    g("s_mov_b64 exec, -1")
    g.stamp('pv')
    g(f"s_lshl_b32 s62, s50, 15\ns_lshl_b32 s49, {sWAVE}, 8\ns_add_u32 s62, s62, s49\ns_add_u32 s62, s62, {PART}\ns_add_u32 s63, s62, 16384")
    g("s_nop 3")
    vO = 160
    for ht in range(2):
        for r in range(4):
            for k in range(4):
                g(f"v_cvt_pk_bf16_f32 v{vO+(ht*4+r)*4+k}, v{vAcc+(ht*8+2*k)*4+r}, v{vAcc+(ht*8+2*k+1)*4+r}")
    st = []
    for ht in range(2):
        for r in range(4):
            st.append(f"buffer_store_dwordx4 {vr(vO+(ht*4+r)*4,4)}, v229, {SWS}, s{62+ht} offen offset:{r*1024}")
    dual_store(g, "\n".join(st))
    vML = 128
    Lm, Lmok = g.label("ml"), g.label("mlok")
    g(f"s_mov_b32 {sSpin}, 0\ns_add_u32 s49, s59, 4096")
    g(f"{Lm}:")
    for u in range(4):
        g(f"buffer_load_dwordx3 {vr(vML+4*u,3)}, v231, {SWS}, {'s59' if u < 2 else 's49'} offen offset:{(u&1)*2048} sc1")
    g("s_waitcnt vmcnt(4)")
    sk = g.label("fl")
    g(f"s_cmp_lg_u32 {sSpin}, 0\ns_cbranch_scc1 {sk}")
    g(f"s_lshl_b32 s63, {sIdx}, 2\ns_add_u32 s63, s63, s60\nv_mov_b32 v3, {sT[0]}\nv_mov_b32 v4, 0\ns_mov_b64 exec, 1")
    dual_store(g, f"buffer_store_dword v3, v4, {SWS}, s63 offen")
    g(f"s_mov_b64 exec, -1\ns_waitcnt vmcnt(1)\ns_branch {sk}_b")
    g(f"{sk}:\ns_waitcnt vmcnt(0)\n{sk}_b:")
    g.stamp('ml')
    spin_check(g)
    g(f"v_xor_b32 v3, {sT[0]}, v{vML+2}")
    for u in range(1, 4): g(f"v_bitop3_b32 v3, v3, v{vML+4*u+2}, {sT[0]} bitop3:0xf6")
    g(f"v_cmp_ne_u32 vcc, 0, v3\ns_cbranch_vccnz {Lm}")
    g(f"v_not_b32 v5, {sT[0]}\nbuffer_load_dword v5, v221, {SWS}, s60 offen sc1")
    def red_g(reg, tmp, op):
        g(f"v_mov_b32 v{tmp}, v{reg}\ns_nop 1\nv_permlane16_swap_b32 v{reg}, v{tmp}\n{op} v{reg}, v{reg}, v{tmp}")
        g(f"v_mov_b32 v{tmp}, v{reg}\ns_nop 1\nv_permlane32_swap_b32 v{reg}, v{tmp}\n{op} v{reg}, v{reg}, v{tmp}")
    vX = 236
    g(f"v_max3_f32 v{vX}, v{vML}, v{vML+4}, v{vML+8}\nv_max_f32 v{vX}, v{vX}, v{vML+12}")
    red_g(vX, 3, "v_max_f32")
    for u in range(4): g(f"v_sub_f32 v{vML+4*u}, v{vML+4*u}, v{vX}")
    for u in range(4): g(f"v_exp_f32 v{vML+4*u}, v{vML+4*u}")
    g("s_nop 0")
    for u in range(4): g(f"v_cvt_pk_bf16_f32 v{vML+4*u}, v{vML+4*u}, v{vML+4*u}")
    for u in range(4): g(f"v_and_b32 v{vML+4*u+3}, 0xffff0000, v{vML+4*u}")
    g(f"v_mul_f32 v{vX+1}, v{vML+3}, v{vML+1}")
    for u in range(1, 4): g(f"v_fmac_f32 v{vX+1}, v{vML+4*u+3}, v{vML+4*u+1}")
    red_g(vX+1, 3, "v_add_f32")
    g(f"""
    v_mov_b32 v{vX+2}, {sT[0]}
    v_mov_b32 v{vX+3}, {sT[0]}
    s_lshl_b32 s62, {sIdx}, 4
    s_add_u32 s62, s62, {sXg}
    s_mul_i32 s62, s62, {XPS}
    s_add_u32 s62, s62, {XP}
    v_bfe_u32 v3, v0, 3, 1
    v_mul_u32_u24 v3, {8*XPS}, v3
    s_cmp_eq_u32 {sWAVE}, 0
    s_cselect_b32 exec_lo, 0x101, 0
    s_mov_b32 exec_hi, 0
    buffer_store_dwordx4 {vr(vX,4)}, v3, {SWS}, s62 offen offset:2048 sc1
    s_mov_b64 exec, -1
    """)
    vRA = 64
    for u in range(4):
        for k in range(8): g(f"v_and_b32 v{vRA+u*8+k}, v{vML+4*u}, v{vMask+k}")
    g(f"""
    v_lshrrev_b32 v3, 5, v0
    v_mul_u32_u24 v6, {8*XPS}, v3
    v_lshl_add_u32 v6, v220, 5, v6
    v_and_b32 v3, 16, v0
    v_add_u32 v6, v6, v3
    s_lshl_b32 s49, {sWAVE}, 9
    s_add_u32 s62, s62, s49
    """)
    Lf, Lfok = g.label("f"), g.label("fok")
    g(f"s_mov_b32 {sSpin}, 0\ns_waitcnt vmcnt(1)")
    g(f"{Lf}:\nv_cmp_ne_u32 vcc, {sT[0]}, v5\ns_cbranch_vccz {Lfok}")
    g(f"buffer_load_dword v5, v221, {SWS}, s60 offen sc1")
    spin_check(g)
    g(f"s_waitcnt vmcnt(0)\ns_branch {Lf}\n{Lfok}:")
    g.stamp('flg')
    vRB = 160
    for u in range(4):
        for hs in range(2):
            g(f"buffer_load_dwordx4 {vr(vRB+(u*2+hs)*4,4)}, v230, {SWS}, s58 offen offset:{hs*1024} sc1")
        if u < 3: g("s_add_u32 s58, s58, 0x20000")
    for k in range(8):
        g(f"s_waitcnt vmcnt({7-k})")
        g(f"v_mfma_f32_16x16x32_bf16 v[32:35], {vr(vRA+4*k,4)}, {vr(vRB+4*k,4)}, {'0' if k == 0 else 'v[32:35]'}")
    g("s_nop 7")
    for r in range(4): g(f"v_bfi_b32 v{32+r}, v{vFF}, {sT[r]}, v{32+r}")
    g(f"buffer_store_dwordx4 v[32:35], v6, {SWS}, s62 offen sc1")
    g.stamp('xp')
    g(f"""
    s_lshl_b32 s49, {sWAVE}, 4
    s_add_u32 s49, s49, {sIdx}
    s_and_b32 s50, s49, 0xf8
    s_add_u32 s50, s50, {sXg}
    s_cmp_ge_u32 s50, 20
    s_cbranch_scc1 L_fin
    s_and_b32 s49, s49, 7
    s_lshl_b32 s51, s50, 3
    s_add_u32 s51, s51, s49
    s_lshl_b32 s52, s51, 4
    s_add_u32 s52, s52, {OP}
    s_add_u32 s53, s52, {64*2560}
    v_mul_u32_u24 v3, 2560, v0
    s_lshr_b32 s54, s51, 4
    s_lshl_b32 s54, s54, 7
    s_and_b32 s51, s51, 15
    s_lshl_b32 s51, s51, 1
    s_add_u32 s54, s54, s51
    v_bfe_u32 v4, v0, 4, 1
    v_lshlrev_b32 v4, 6, v4
    v_lshrrev_b32 v5, 5, v0
    v_lshl_add_u32 v4, v5, 5, v4
    s_mov_b32 {sSpin}, 0
    """)
    Lo = g.label("o")
    g(f"{Lo}:")
    g(f"buffer_load_dwordx4 v[8:11], v3, {SWS}, s52 offen sc1\nbuffer_load_dwordx4 v[12:15], v3, {SWS}, s53 offen sc1")
    spin_check(g)
    g(f"s_waitcnt vmcnt(1)\nv_xor_b32 v5, {sT[0]}, v8")
    for r in range(1, 4): g(f"v_bitop3_b32 v5, v5, v{8+r}, {sT[r]} bitop3:0xf6")
    g("s_waitcnt vmcnt(0)")
    for r in range(4): g(f"v_bitop3_b32 v5, v5, v{12+r}, {sT[r]} bitop3:0xf6")
    g(f"v_and_b32 v5, 0xff, v5\nv_cmp_ne_u32 vcc, 0, v5\ns_cbranch_vccnz {Lo}")
    g.stamp('op')
    g("""
    v_pk_add_f32 v[8:9], v[8:9], v[12:13]
    v_pk_add_f32 v[10:11], v[10:11], v[14:15]
    s_nop 1
    v_permlane32_swap_b32 v8, v9
    v_permlane32_swap_b32 v10, v11
    v_add_f32 v8, v8, v9
    v_add_f32 v10, v10, v11
    s_nop 1
    v_permlane16_swap_b32 v8, v10
    v_add_f32 v8, v8, v10
    s_nop 1
    v_add_f32_dpp v8, v8, v8 row_ror:8 row_mask:0xf bank_mask:0xf
    s_nop 1
    v_add_f32_dpp v8, v8, v8 row_ror:4 row_mask:0xf bank_mask:0xf
    s_nop 1
    v_add_f32_dpp v8, v8, v8 row_ror:2 row_mask:0xf bank_mask:0xf
    s_nop 1
    v_add_f32_dpp v8, v8, v8 row_ror:1 row_mask:0xf bank_mask:0xf
    v_cvt_pk_bf16_f32 v8, v8, v8
    s_mov_b32 exec_lo, 0x00010001
    s_mov_b32 exec_hi, 0x00010001
    """)
    g(f"buffer_store_short v8, v4, {SC}, s54 offen")
    g(f"""
    s_or_b32 s49, s2, {sWAVE}
    s_cmp_lg_u32 s49, 0
    s_cbranch_scc1 L_fin
    s_mov_b64 exec, 1
    v_mov_b32 v5, {sT[0]}
    v_mov_b32 v6, 0
    buffer_store_dword v5, v6, {SWS}, 0 offen sc1
    """)
    g("s_branch L_fin")

def dual_store(g, stores):
    if not g.opt['LOCAL']:
        g("\n".join(s + " sc1" for s in stores.split("\n"))); return
    a, b = g.label("ds"), g.label("de")
    g(f"s_cmp_eq_u32 s61, 1\ns_cbranch_scc0 {a}")
    g(stores)
    g(f"s_branch {b}\n{a}:")
    g("\n".join(s + " sc1" for s in stores.split("\n")))
    g(f"{b}:")

def quad_sum(g, base, n):
    for k in range(n): g(f"v_add_f32_dpp v{base+k}, v{base+k}, v{base+k} quad_perm:[1,0,3,2] row_mask:0xf bank_mask:0xf")
    if n < 3: g("s_nop 1")
    for k in range(n): g(f"v_add_f32_dpp v{base+k}, v{base+k}, v{base+k} quad_perm:[2,3,0,1] row_mask:0xf bank_mask:0xf")

def weight(g):
    o = g.opt
    NT = o['NT']
    g.role = "wgt"; g.names["wgt"].append("st")
    g("L_wgt:")
    g("""
    s_load_dwordx2 s[8:9], s[0:1], 24
    s_load_dwordx2 s[4:5], s[0:1], 0
    s_load_dwordx2 s[20:21], s[0:1], 104
    s_load_dwordx2 s[28:29], s[0:1], 80
    s_load_dwordx2 s[12:13], s[0:1], 32
    s_load_dwordx2 s[16:17], s[0:1], 40
    s_load_dwordx2 s[24:25], s[0:1], 72
    """)
    srd_tail(g, 4, 1280); srd_tail(g, 8, 512*8192); srd_tail(g, 12, 512*8192); srd_tail(g, 16, 4096*1280)
    srd_tail(g, 20, WSSZ); srd_tail(g, 24, 1728*1280); srd_tail(g, 28, 1280); srd_tail(g, 32, 640*3456); srd_tail(g, 36, 640*3456)
    g(f"""
    s_and_b32 {sXg}, s2, 7
    s_lshr_b32 {sIdx}, s2, 3
    s_sub_u32 {sIdx}, {sIdx}, 16
    s_lshr_b32 s49, {sIdx}, 2
    s_lshl_b32 {sH}, {sXg}, 2
    s_add_u32 {sH}, {sH}, s49
    s_and_b32 {sQt}, {sIdx}, 3
    s_lshl_b32 s49, s49, 3
    s_add_u32 s50, s49, {sXg}
    v_and_b32 v1, 15, v0
    v_lshrrev_b32 v2, 4, v0
    v_lshlrev_b32 v3, 13, v1
    v_lshl_add_u32 v3, v2, 4, v3
    s_lshl_b32 s51, {sQt}, 2
    s_add_u32 s51, s51, {sWAVE}
    s_lshl_b32 s51, s51, 18
    s_lshl_b32 s49, {sH}, 8
    s_add_u32 s51, s51, s49
    s_add_u32 s52, s51, {16*8192}
    v_lshlrev_b32 v7, 4, v0
    s_waitcnt lgkmcnt(0)
    """)
    g.stamp('karg')
    vUk = 64
    for ct in range(2):
        for s in range(4):
            g(f"buffer_load_dwordx4 {vr(vUk+(ct*4+s)*4,4)}, v3, {SA}, s{51+ct} offen offset:{s*64} {NT}")
    g("s_load_dwordx2 s[32:33], s[0:1], 56\ns_load_dwordx2 s[36:37], s[0:1], 64")
    common_epoch(g)
    vXg, vGw, vXw = 96, 104, 8
    g(f"""
    buffer_load_dwordx4 {vr(vXg,4)}, v7, {SX}, 0 offen
    buffer_load_dwordx4 {vr(vXg+4,4)}, v7, {SX}, 0 offen offset:1024
    buffer_load_dwordx4 {vr(vGw,4)}, v7, {SE}, 0 offen
    buffer_load_dwordx4 {vr(vGw+4,4)}, v7, {SE}, 0 offen offset:1024
    v_mul_u32_u24 v4, 80, v2
    s_mul_i32 s53, {sQt}, 160
    s_mul_i32 s49, {sWAVE}, 10
    s_add_u32 s53, s53, s49
    s_lshl_b32 s49, s53, 1
    buffer_load_dwordx4 {vr(vXw,4)}, v4, {SX}, s49 offen
    buffer_load_dword v{vXw+4}, v4, {SX}, s49 offen offset:16
    """)
    vSel = 16
    sel_setup(g, vSel, 3)
    LWO, LWD, LUV, LSCR, LCX = 0, 49152, 73728, 106496, 114688
    vG = 44
    vTa, vTb, vFF = 212, 213, 214
    gemv_addr_setup(g, vG, vTa, vTb, vFF, LSCR, 5)
    g(f"s_lshl_b32 s49, {sWAVE}, 11\ns_add_u32 s49, s49, {LSCR}\nv_add_u32 v13, s49, v7")
    g(f"""
    v_and_b32 v3, 3, v0
    v_lshlrev_b32 v14, 9, v3
    v_bfe_u32 v3, v0, 2, 2
    v_lshl_add_u32 v14, v3, 7, v14
    v_lshl_add_u32 v14, v2, 5, v14
    s_lshl_b32 s54, {sH}, 11
    s_add_u32 s54, s54, {QP}
    v_lshlrev_b32 v15, 6, v1
    v_lshl_add_u32 v15, v2, 4, v15
    s_lshl_b32 s55, {sQt}, 5
    s_add_u32 s55, s55, {sH}
    s_lshl_b32 s55, s55, 9
    s_lshl_b32 s49, {sWAVE}, 7
    s_add_u32 s55, s55, s49
    s_add_u32 s55, s55, {QA}
    """)
    epoch_finish(g)
    g(f"v_mov_b32 v{vTa}, {sT[0]}\nv_lshrrev_b32 v{vTa}, v5, v{vTa}\nv_lshrrev_b32 v{vTb}, 8, v{vTa}")
    vQ = 24
    Lq = g.label("qp")
    g(f"s_mov_b32 {sSpin}, 0\n{Lq}:")
    g(f"buffer_load_dwordx4 {vr(vQ,4)}, v14, {SWS}, s54 offen sc1\nbuffer_load_dwordx4 {vr(vQ+4,4)}, v14, {SWS}, s54 offen offset:16 sc1")
    spin_check(g)
    g(f"s_waitcnt vmcnt(0)\nv_xor_b32 v3, {sT[0]}, v{vQ}")
    for k in range(1, 8): g(f"v_bitop3_b32 v3, v3, v{vQ+k}, {sT[k&3]} bitop3:0xf6")
    g(f"v_and_b32 v3, 0xff, v3\nv_cmp_ne_u32 vcc, 0, v3\ns_cbranch_vccnz {Lq}")
    g.stamp('qp')
    quad_sum(g, vQ, 8)
    for k in range(4): g(f"v_cvt_pk_bf16_f32 v{vQ+k}, v{vQ+2*k}, v{vQ+2*k+1}")
    vB = 112
    g("s_nop 0")
    for s in range(4):
        for k in range(4): g(f"v_mov_b32_dpp v{vB+4*s+k}, v{vQ+k} row_newbcast:{4*s} row_mask:0xf bank_mask:0xf")
    g("s_nop 1")
    for s in range(4):
        for ct in range(2):
            g(f"v_mfma_f32_16x16x32_bf16 {vr(32+4*ct,4)}, {vr(vUk+(ct*4+s)*4,4)}, {vr(vB+4*s,4)}, {'0' if s == 0 else vr(32+4*ct,4)}")
    g(f"v_cmp_eq_u32 vcc, 1, v1\ns_mov_b32 s49, {f2u(SCALE):#x}\nv_mov_b32 v26, {sT[0]}\nv_mov_b32 v27, {sT[0]}\ns_nop 4")
    for r in range(4): g(f"v_cndmask_b32 v{32+r}, v{32+r}, v{36+r}, vcc")
    for r in range(4): g(f"v_mul_f32 v{32+r}, s49, v{32+r}")
    g("v_cvt_pk_bf16_f32 v24, v32, v33\nv_cvt_pk_bf16_f32 v25, v34, v35")
    g("s_mov_b32 exec_lo, 0x00030003\ns_mov_b32 exec_hi, 0x00030003")
    g(f"buffer_store_dwordx4 v[24:27], v15, {SWS}, s55 offen sc1\ns_mov_b64 exec, -1")
    g.stamp('qa')
    vF = 128
    g(f"""
    v_mul_u32_u24 v3, 40, v2
    v_bfe_u32 v4, v0, 3, 1
    v_add_u32 v3, v3, v4
    v_mul_u32_u24 v3, 3456, v3
    v_and_b32 v4, 7, v0
    v_lshl_add_u32 v3, v4, 4, v3
    s_mul_i32 s56, s53, 3456
    s_lshl_b32 s49, s50, 7
    s_add_u32 s56, s56, s49
    s_cmp_ge_u32 s50, 27
    s_cselect_b32 s57, 0x10000000, 0
    s_add_u32 s56, s56, s57
    """)
    for u in range(5):
        g(f"buffer_load_dwordx4 {vr(vF+8*u,4)}, v3, {SF}, s56 offen {NT}\nbuffer_load_dwordx4 {vr(vF+8*u+4,4)}, v3, {SG}, s56 offen {NT}")
        if u < 4: g(f"s_add_u32 s56, s56, {2*3456}")
    g(f"""
    v_lshrrev_b32 v3, 3, v0
    v_lshrrev_b32 v4, 4, v0
    v_bfe_u32 v5, v0, 1, 2
    v_xor_b32 v4, v4, v5
    v_lshlrev_b32 v4, 5, v4
    v_and_b32 v5, 1, v0
    v_lshl_add_u32 v4, v5, 4, v4
    v_mul_u32_u24 v28, 1280, v3
    v_add_u32 v28, v28, v4
    v_lshrrev_b32 v5, 5, v0
    v_mul_u32_u24 v5, {4*1280}, v5
    v_add_u32 v29, v28, v5
    s_lshl_b32 s58, s50, 2
    s_add_u32 s58, s58, {sQt}
    s_mul_i32 s58, s58, {16*1280}
    s_lshl_b32 s49, {sWAVE}, 7
    s_add_u32 s58, s58, s49
    s_add_u32 s58, s58, s57
    s_lshl_b32 s59, {sH}, 2
    s_add_u32 s59, s59, {sQt}
    s_mul_i32 s59, s59, {32*1280}
    s_add_u32 s59, s59, s49
    s_cmp_ge_u32 {sWAVE}, 2
    s_cselect_b32 s60, 0x10000000, 0
    s_mul_i32 s61, {sWAVE}, 6144
    s_add_u32 s61, s61, {LWD}
    """)
    for gam in range(3):
        for gp in range(2):
            g(f"s_add_u32 m0, s61, {(gam*2+gp)*1024}\ns_add_u32 s49, s58, {gam*512 + gp*8*1280}")
            if gam == 2: g("s_add_u32 s49, s49, s60")
            g(f"buffer_load_dwordx4 v28, {SD}, s49 offen {NT} lds")
    g(f"""
    v_bfe_u32 v3, v0, 2, 2
    v_lshl_add_u32 v3, v3, 4, v2
    v_lshlrev_b32 v30, 13, v3
    v_bfe_u32 v3, v0, 1, 1
    v_bfe_u32 v4, v0, 4, 1
    v_xor_b32 v3, v3, v4
    v_lshl_add_u32 v30, v3, 5, v30
    v_and_b32 v3, 1, v0
    v_lshl_add_u32 v30, v3, 4, v30
    s_lshl_b32 s62, {sWAVE}, 20
    s_lshl_b32 s49, {sH}, 8
    s_add_u32 s62, s62, s49
    s_lshl_b32 s49, {sQt}, 6
    s_add_u32 s62, s62, s49
    s_lshl_b32 s63, {sWAVE}, 13
    s_add_u32 s63, s63, {LUV}
    """)
    for s in range(4):
        for rho in range(2):
            g(f"s_add_u32 m0, s63, {(s*2+rho)*1024}\ns_add_u32 s49, s62, {(4*s+64*rho)*8192}")
            g(f"buffer_load_dwordx4 v30, {SB}, s49 offen {NT} lds")
    g.stamp('iss1')
    g(f"v_dot2_f32_bf16 v3, v{vXg}, v{vGw}, 0")
    for k in range(1, 8): g(f"v_dot2_f32_bf16 v3, v{vXg+k}, v{vGw+k}, v3")
    g("s_nop 2")
    for sh in (8, 4, 2, 1): g(f"v_add_f32_dpp v3, v3, v3 row_ror:{sh} row_mask:0xf bank_mask:0xf\ns_nop 1")
    g("v_mov_b32 v4, v3\ns_nop 1\nv_permlane16_swap_b32 v3, v4\nv_add_f32 v3, v3, v4")
    g("v_mov_b32 v4, v3\ns_nop 1\nv_permlane32_swap_b32 v3, v4\nv_add_f32 v3, v3, v4")
    vGate = 215
    g(f"""
    v_mul_f32 v3, {f2u(-1.4426950408889634):#x}, v3
    v_exp_f32 v3, v3
    s_nop 0
    v_add_f32 v3, 1.0, v3
    v_rcp_f32 v{vGate}, v3
    s_nop 0
    v_sub_f32 v{vGate+1}, 1.0, v{vGate}
    """)
    vA, vFacc = 24, 32
    nafter = 6 + 8
    for u in range(5):
        a = 104 + 4*(u & 1)
        for r in range(4): g(f"v_perm_b32 v{a+r}, v{vXw+u}, v{vXw+u}, v{vSel+r}")
        for m in range(2):
            k = 2*u+m
            g(f"s_waitcnt vmcnt({9-k+nafter})")
            if m == 0: g("s_nop 0")
            g(f"v_mfma_f32_16x16x32_bf16 {vr(vFacc+4*m,4)}, {vr(a,4)}, {vr(vF+4*k,4)}, {'0' if u == 0 else vr(vFacc+4*m,4)}")
    g(f"s_lshl_b32 s56, s50, 11\ns_add_u32 s56, s56, {FP}\ns_lshl_b32 s49, {sQt}, 9\ns_add_u32 s53, s56, s49\ns_nop 4")
    gemv_reduce_publish(g, vFacc, vG, 13, 2048, 's53', vTa, vTb, vFF)
    g.stamp('fp')
    g(f"s_mul_i32 s61, {sWAVE}, 12288")
    for gam in range(3):
        for rho in range(2):
            for gp in range(2):
                g(f"s_add_u32 m0, s61, {(gam*4+rho*2+gp)*1024}\ns_add_u32 s49, s59, {gam*512 + (16*gp+4*rho)*1280}")
                if gam == 2: g("s_add_u32 s49, s49, s60")
                g(f"buffer_load_dwordx4 v29, {SC}, s49 offen {NT} lds")
    g.stamp('iss2')
    vTo = 192
    g(f"""
    v_bfe_u32 v3, v0, 2, 3
    v_lshlrev_b32 v4, 7, v3
    v_lshrrev_b32 v3, 1, v3
    v_lshl_add_u32 v4, v3, 5, v4
    v_and_b32 v3, 3, v0
    v_lshl_add_u32 v4, v3, 3, v4
    v_lshrrev_b32 v3, 5, v0
    v_lshl_add_u32 v4, v3, 10, v4
    s_mul_i32 s49, {sWAVE}, 6144
    s_add_u32 s49, s49, {LWD}
    """)
    for q in range(4):
        g(f"v_xor_b32 v3, {q*32}, v4\nv_add_u32 v{vTo+q}, s61, v3\nv_add_u32 v{vTo+4+q}, s49, v3")
    g(f"""
    v_lshrrev_b32 v3, 2, v0
    v_lshlrev_b32 v4, 6, v3
    v_bfe_u32 v3, v0, 4, 1
    v_lshl_add_u32 v4, v3, 5, v4
    v_and_b32 v3, 3, v0
    v_lshl_add_u32 v4, v3, 3, v4
    v_add_u32 v200, s63, v4
    v_xor_b32 v201, 32, v200
    """)
    g(f"""
    v_and_b32 v3, 3, v0
    v_lshlrev_b32 v14, 9, v3
    v_lshl_add_u32 v14, v2, 4, v14
    s_lshl_b32 s49, {sQt}, 6
    s_add_u32 s56, s56, s49
    s_mov_b32 {sSpin}, 0
    """)
    Lf = g.label("fp")
    g(f"{Lf}:")
    g(f"buffer_load_dwordx4 v[24:27], v14, {SWS}, s56 offen sc1\nbuffer_load_dwordx4 v[28:31], v14, {SWS}, s56 offen offset:256 sc1")
    spin_check(g)
    g(f"s_waitcnt vmcnt(0)\nv_xor_b32 v3, {sT[0]}, v24")
    for k in range(1, 8): g(f"v_bitop3_b32 v3, v3, v{24+k}, {sT[k&3]} bitop3:0xf6")
    g(f"v_and_b32 v3, 0xff, v3\nv_cmp_ne_u32 vcc, 0, v3\ns_cbranch_vccnz {Lf}")
    g.stamp('fpok')
    aD, aO, aU = 0, 24, 72
    for gam in range(3):
        for q in range(4): g(f"ds_read_b64_tr_b16 {ar(aD+(gam*4+q)*2,2)}, v{vTo+4+q} offset:{gam*2048}")
    quad_sum(g, 24, 8)
    for k in range(4): g(f"v_cvt_pk_bf16_f32 v{32+k}, v{24+k}, v{28+k}")
    for k in range(4): g(f"v_lshlrev_b32 v{24+k}, 16, v{32+k}\nv_and_b32 v{28+k}, 0xffff0000, v{32+k}")
    c1 = -2*0.7978845608028654*1.4426950408889634
    g(f"s_mov_b32 s49, {f2u(c1*0.044715):#x}\nv_mov_b32 v3, {f2u(c1):#x}")
    for k in range(4): g(f"v_mul_f32 v{32+k}, v{24+k}, v{24+k}")
    for k in range(4): g(f"v_fma_f32 v{32+k}, v{32+k}, s49, v3")
    for k in range(4): g(f"v_mul_f32 v{32+k}, v{32+k}, v{24+k}")
    for k in range(4): g(f"v_exp_f32 v{32+k}, v{32+k}")
    g("s_nop 0")
    for k in range(4): g(f"v_add_f32 v{32+k}, 1.0, v{32+k}")
    for k in range(4): g(f"v_rcp_f32 v{32+k}, v{32+k}")
    g("s_nop 0")
    for k in range(4): g(f"v_mul_f32 v{32+k}, v{32+k}, v{24+k}")
    for k in range(4): g(f"v_cvt_pk_bf16_f32 v{32+k}, v{32+k}, v{32+k}")
    for k in range(4): g(f"v_and_b32 v{32+k}, 0xffff0000, v{32+k}\nv_mul_f32 v{32+k}, v{32+k}, v{28+k}")
    g("v_cvt_pk_bf16_f32 v24, v32, v33\nv_cvt_pk_bf16_f32 v25, v34, v35")
    for gam in range(3):
        g(f"v_cmp_eq_u32 vcc, {4*gam}, v1\ns_nop 1\nv_cndmask_b32 v{26+2*gam}, 0, v24, vcc\nv_cndmask_b32 v{27+2*gam}, 0, v25, vcc")
    for gam in range(3):
        for rho in range(2):
            for q in range(4): g(f"ds_read_b64_tr_b16 {ar(aO+(gam*4+q)*4+2*rho,2)}, v{vTo+q} offset:{gam*4096+rho*2048}")
    for s in range(4):
        for rho in range(2):
            for dt in range(2): g(f"ds_read_b64_tr_b16 {ar(aU+(dt*4+s)*4+2*rho,2)}, v{200+dt} offset:{(s*2+rho)*1024}")
    g("s_waitcnt lgkmcnt(0)")
    vOa = 176
    for gam in range(3):
        for q in range(4):
            g(f"v_mfma_f32_16x16x16_bf16 {vr(vOa+4*q,4)}, {vr(26+2*gam,2)}, {ar(aD+(gam*4+q)*2,2)}, {'0' if gam == 0 else vr(vOa+4*q,4)}")
    g(f"""
    v_and_b32 v3, 7, v0
    v_mul_u32_u24 v15, {XPS}, v3
    v_bfe_u32 v3, v0, 3, 1
    v_lshl_add_u32 v14, v3, 8, v15
    v_lshl_add_u32 v14, v2, 5, v14
    s_mul_i32 s54, {sH}, {8*XPS}
    s_add_u32 s54, s54, {XP}
    s_lshl_b32 s49, {sWAVE}, 9
    s_add_u32 s55, s54, s49
    s_mov_b32 {sSpin}, 0
    """)
    for k in range(16): g(f"v_mul_f32 v{vOa+k}, v{vGate+1}, v{vOa+k}")
    g(f"""
    s_lshl_b32 s49, {sWAVE}, 7
    s_add_u32 s49, s49, {LCX}
    v_lshlrev_b32 v40, 6, v3
    v_lshl_add_u32 v40, v2, 4, v40
    v_add_u32 v40, s49, v40
    v_and_b32 v3, 3, v0
    v_lshlrev_b32 v41, 7, v3
    v_lshl_add_u32 v41, v2, 5, v41
    v_add_u32 v41, {LCX}, v41
    v_lshrrev_b32 v42, 2, v1
    v_lshlrev_b32 v43, 10, v2
    v_lshl_add_u32 v43, v1, 4, v43
    s_lshl_b32 s56, {sXg}, 4
    s_add_u32 s56, s56, {sIdx}
    s_mul_i32 s56, s56, 2560
    s_lshl_b32 s49, {sWAVE}, 8
    s_add_u32 s56, s56, s49
    s_add_u32 s56, s56, {OP}
    v_cmp_eq_u32 s[50:51], 0, v42
    v_cmp_eq_u32 s[52:53], 1, v42
    v_cmp_eq_u32 s[58:59], 2, v42
    v_cmp_gt_u32 s[62:63], 8, v1
    """)
    g.stamp('rdy')
    Lm = g.label("xm")
    g(f"{Lm}:\nbuffer_load_dwordx3 v[24:26], v15, {SWS}, s54 offen offset:2048 sc1")
    spin_check(g)
    g(f"s_waitcnt vmcnt(0)\nv_cmp_ne_u32 vcc, {sT[0]}, v26\ns_cbranch_vccnz {Lm}")
    g.stamp('xm')
    vD = 64
    def xp_loads():
        for s in range(2):
            for gg in range(2):
                g(f"buffer_load_dwordx4 {vr(vD+(s*2+gg)*4,4)}, v14, {SWS}, s55 offen offset:{s*128+gg*16} sc1")
    xp_loads()
    def red8(reg, op):
        g(f"{op}_dpp v{reg}, v{reg}, v{reg} quad_perm:[1,0,3,2] row_mask:0xf bank_mask:0xf\ns_nop 1")
        g(f"{op}_dpp v{reg}, v{reg}, v{reg} quad_perm:[2,3,0,1] row_mask:0xf bank_mask:0xf\ns_nop 1")
        g(f"{op}_dpp v{reg}, v{reg}, v{reg} row_half_mirror row_mask:0xf bank_mask:0xf")
    g("v_mov_b32 v27, v24\ns_nop 1")
    red8(27, "v_max_f32")
    g("v_sub_f32 v24, v24, v27\nv_exp_f32 v24, v24\ns_nop 0\nv_mul_f32 v25, v24, v25\ns_nop 1")
    red8(25, "v_add_f32")
    g(f"v_rcp_f32 v25, v25\nv_mul_f32 v24, v{vGate}, v24\nv_mul_f32 v204, v24, v25\ns_mov_b32 {sSpin}, 0")
    Lx, Lxok = g.label("xd"), g.label("xdok")
    g(f"{Lx}:\ns_waitcnt vmcnt(0)\nv_xor_b32 v3, {sT[0]}, v{vD}")
    for k in range(1, 16): g(f"v_bitop3_b32 v3, v3, v{vD+k}, {sT[k&3]} bitop3:0xf6")
    g(f"v_and_b32 v3, 0xff, v3\nv_cmp_ne_u32 vcc, 0, v3\ns_cbranch_vccz {Lxok}")
    xp_loads()
    spin_check(g)
    g(f"s_branch {Lx}\n{Lxok}:")
    g.stamp('xd')
    for k in range(8): g(f"v_cvt_pk_bf16_f32 v{80+k}, v{vD+2*k}, v{vD+2*k+1}")
    g("s_nop 0")
    for s in range(2):
        for hi in range(2):
            for dt in range(2):
                acc = 96 + 8*hi + 4*dt
                g(f"v_mfma_f32_16x16x32_bf16 {vr(acc,4)}, {ar(aU+(dt*4+s+2*hi)*4,4)}, {vr(80+4*s,4)}, {'0' if s == 0 else vr(acc,4)}")
    g("s_nop 6")
    for r in range(4): g(f"v_cndmask_b32 v{28+r}, v{104+r}, v{100+r}, s[62:63]")
    for r in range(4): g(f"v_cndmask_b32 v{24+r}, v{108+r}, v{96+r}, s[62:63]")
    g("s_nop 0")
    for r in range(4): g(f"v_add_f32_dpp v{24+r}, v{28+r}, v{24+r} row_ror:8 row_mask:0xf bank_mask:0xf")
    for r in range(4): g(f"v_mul_f32 v{24+r}, v204, v{24+r}")
    quad_sum(g, 24, 4)
    for r in range(4): g(f"v_add_f32_dpp v{24+r}, v{24+r}, v{24+r} row_half_mirror row_mask:0xf bank_mask:0xf")
    g("ds_write_b128 v40, v[24:27]\ns_waitcnt lgkmcnt(0)\ns_barrier")
    g("ds_read_b128 v[24:27], v41\nds_read_b128 v[28:31], v41 offset:16\ns_waitcnt lgkmcnt(0)")
    for k in range(4): g(f"v_cvt_pk_bf16_f32 v{24+k}, v{24+2*k}, v{25+2*k}")
    msk = ['s[50:51]', 's[52:53]', 's[58:59]']
    for gam in range(3):
        for k in range(4): g(f"v_cndmask_b32 v{112+4*gam+k}, 0, v{24+k}, {msk[gam]}")
    g("s_nop 1")
    for gam in range(3):
        for q in range(4):
            g(f"v_mfma_f32_16x16x32_bf16 {vr(vOa+4*q,4)}, {vr(112+4*gam,4)}, {ar(aO+(gam*4+q)*4,4)}, {vr(vOa+4*q,4)}")
    g(f"s_cmp_ge_u32 {sWAVE}, 2\ns_cselect_b32 s49, 0, 0xffff\ns_nop 3")
    for q in range(4):
        if q == 3: g("s_nop 0")
        g(f"v_pk_add_f32 {vr(vOa+4*q,2)}, {vr(vOa+4*q,2)}, {vr(vOa+4*q+2,2)}")
    for q in range(4): g(f"v_add_f32 v{24+q}, v{vOa+4*q}, v{vOa+4*q+1}")
    for q in range(4): g(f"v_bfi_b32 v{24+q}, v{vFF}, {sT[q]}, v{24+q}")
    g(f"s_mov_b32 exec_hi, s49\nbuffer_store_dwordx4 v[24:27], v43, {SWS}, s56 offen sc1")
    g.stamp('op')

def build(**opt):
    g = G(**opt)
    g.o.append(HEADER.rstrip('\n'))
    g.o.append("; @launch grid=(256,1,1) block=(256,1,1) lds=163840")
    g.o.append('.amdgcn_target "amdgcn-amd-amdhsa--gfx950"')
    g.o.append(f".text\n.globl {KN}\n.p2align 8\n.type {KN},@function\n{KN}:")
    g.stamp('st')
    g(f"""
    v_lshrrev_b32 v1, 6, v0
    s_cmp_ge_u32 s2, 256
    s_cbranch_scc1 L_end
    v_readfirstlane_b32 {sWAVE}, v1
    v_and_b32 v0, 63, v0
    s_cmp_ge_u32 s2, 128
    s_cbranch_scc1 L_wgt
    """)
    attention(g)
    weight(g)
    g("L_fin:")
    if g.opt.get('PADTO'):
        g(f"""
        s_or_b32 s49, s2, {sWAVE}
        s_cmp_lg_u32 s49, 0
        s_cbranch_scc1 L_padend
        L_pad:
        s_memrealtime s[98:99]
        s_waitcnt lgkmcnt(0)
        s_sub_u32 s49, s98, s64
        s_cmp_lt_u32 s49, {g.opt['PADTO']}
        s_cbranch_scc1 L_pad
        L_padend:
        """)
    if g.opt['STAMPS']:
        g("s_memrealtime s[100:101]\ns_waitcnt lgkmcnt(0)\ns_mov_b64 exec, 1")
        g(f"s_lshl_b32 s49, s2, 2\ns_add_u32 s49, s49, {sWAVE}\ns_lshl_b32 s49, s49, 7\ns_add_u32 s49, s49, {STAMP}\nv_mov_b32 v1, 0")
        g.o.append("; STAMPS att " + " ".join(g.names['att']))
        g.o.append("; STAMPS wgt " + " ".join(g.names['wgt']))
        for q in range(5):
            for k in range(4):
                idx = 4*q+k
                g(f"v_mov_b32 v{4+k}, s{64+2*idx}" if idx <= 18 else f"v_mov_b32 v{4+k}, {sSpin}")
            g(f"buffer_store_dwordx4 v[4:7], v1, {SWS}, s49 offen offset:{16*q}\ns_nop 1")
    if g.opt.get('DBG'):
        wg = g.opt['DBG'] - 1
        g(f"""
        s_cmp_lg_u32 s2, {wg}
        s_cbranch_scc1 L_end
        s_cmp_lg_u32 {sWAVE}, 0
        s_cbranch_scc1 L_end
        s_load_dwordx2 s[4:5], s[0:1], 96
        s_mov_b32 s6, 256
        s_mov_b32 s7, 0x20000
        s_waitcnt lgkmcnt(0)
        """)
        for q in range(4):
            for k in range(4):
                idx = 4*q+k+1
                if idx == 16: idx = 18
                g(f"s_sub_u32 s49, s{64+2*idx}, s64\nv_mov_b32 v{4+k}, s49")
            g(f"buffer_store_dwordx4 v[4:7], v1, s[4:7], 0 offen offset:{16*q}\ns_nop 1")
    g("L_end:\ns_endpgm")
    g.o.append(f""".section .rodata,"a"
.p2align 6
.amdhsa_kernel {KN}
  .amdhsa_next_free_vgpr 512
  .amdhsa_next_free_sgpr 102
  .amdhsa_accum_offset 256
  .amdhsa_group_segment_fixed_size 0
  .amdhsa_kernarg_size 112
  .amdhsa_user_sgpr_count 2
  .amdhsa_user_sgpr_kernarg_segment_ptr 1
  .amdhsa_system_sgpr_workgroup_id_x 1
  .amdhsa_float_denorm_mode_32 3
.end_amdhsa_kernel""")
    return g.text()

if __name__ == '__main__':
    out = sys.argv[1]
    opt = {}
    for a in sys.argv[2:]:
        k, v = a.split('=')
        try: v = int(v, 0)
        except ValueError: pass
        opt[k] = v
    t = build(**opt)
    open(out, 'w').write(t)
    import hazard
    for p in hazard.check(t): print("HAZARD", p)
```

```python
import sys
KN = "gated_mix__compressed_kv_cla__geglu_ffn__decode_kernel"

HEADER = open('gated_mix__compressed_kv_cla__geglu_ffn__decode.s.ref').read().split('; Override launch')[0]

EPOCH = 0
XC   = 0x1000
FLG  = 0x2000
QP   = 0x10000
QA   = 0x20000
ML   = 0x30000
FP   = 0x40000
OP   = 0x50000
XP   = 0xA0000
XPS  = 2176
PART = 0x200000
STAMP = 0x600000
WSSZ = 0x700000
SPIN = 1 << 17
QB = 131072
SCALE = 0.08838834764831845 * 1.4426950408889634

import struct
def f2u(f): return struct.unpack('<I', struct.pack('<f', f))[0]

class G:
    def __init__(self, **opt):
        self.o = []
        self.opt = dict(WSB=0, NPRE=24, LAG=2, LOCAL=1, PRETOUCH=1, STAMPS=0, NT='nt', CORDER='row', PFQ=1, PFNT='nt', PTF='nt', WIN=10, WQNT='nt', QABAR=1, N1=6, N2=20)
        self.opt.update(opt)
        self.names = {'att': [], 'wgt': []}; self.role = 'att'
        self.lab = 0
    def __call__(self, s):
        for l in s.strip('\n').split('\n'):
            self.o.append(l.strip() if l.strip().endswith(':') else '    ' + l.strip())
    def label(self, p):
        self.lab += 1
        return f"L_{p}_{self.lab}"
    def stamp(self, name):
        if self.opt['STAMPS']:
            k = len(self.names[self.role]); self.names[self.role].append(str(name))
            assert k < 18
            self(f"s_memrealtime s[{64+2*k}:{65+2*k}]")
    def text(self): return '\n'.join(self.o) + '\n'

def vr(b, n=1): return f"v{b}" if n == 1 else f"v[{b}:{b+n-1}]"
def ar(b, n=1): return f"a{b}" if n == 1 else f"a[{b}:{b+n-1}]"

sWAVE = 's3'
SX, SA, SB, SC, SWS, SD, SE, SF, SG = 's[4:7]', 's[8:11]', 's[12:15]', 's[16:19]', 's[20:23]', 's[24:27]', 's[28:31]', 's[32:35]', 's[36:39]'
sT = ['s40', 's41', 's42', 's43']
sXg, sIdx, sH, sQt = 's44', 's45', 's46', 's47'
sSpin = 's48'

def srd_tail(g, base, size):
    g(f"s_mov_b32 s{base+2}, {size}\ns_mov_b32 s{base+3}, 0x20000")

def common_epoch(g):
    if g.opt['WSB']:
        g(f"s_add_u32 s20, s20, {g.opt['WSB']}\ns_addc_u32 s21, s21, 0")
    g(f"s_load_dword s40, s[20:21], {EPOCH}")

def epoch_finish(g):
    g("s_waitcnt lgkmcnt(0)")
    g("s_add_u32 s40, s40, 0x01010101\ns_lshr_b32 s41, s40, 8\ns_lshr_b32 s42, s40, 16\ns_lshr_b32 s43, s40, 24")

def spin_check(g):
    g(f"s_add_u32 {sSpin}, {sSpin}, 1\ns_cmp_gt_u32 {sSpin}, {SPIN}\ns_cbranch_scc1 L_end")

def sel_setup(g, vSel, vt):
    t0, t1, t2 = vt, vt+1, vt+2
    g(f"""
    v_bfe_u32 v{t0}, v0, 3, 1
    v_mul_u32_u24 v{t0}, 0x0202, v{t0}
    v_add_u32 v{t0}, 0x0100, v{t0}
    v_or_b32 v{t1}, 0x0c0c0000, v{t0}
    v_lshlrev_b32 v{t0}, 16, v{t0}
    v_or_b32 v{t0}, 0x0c0c, v{t0}
    v_and_b32 v{t2}, 1, v0
    v_cmp_eq_u32 vcc, 1, v{t2}
    v_bfe_u32 v{t2}, v0, 1, 2
    v_mov_b32 v{vSel+3}, 0x0c0c0c0c
    v_cndmask_b32 v{t0}, v{t1}, v{t0}, vcc
    """)
    for r in range(4):
        g(f"v_cmp_eq_u32 vcc, {r}, v{t2}\ns_nop 1\nv_cndmask_b32 v{vSel+r}, v{vSel+3}, v{t0}, vcc")

def gemv_reduce_publish(g, vacc, vt, lds_w, lds_stride, sdst, vTa, vTb, vFF, after_barrier=None):
    g(f"ds_write_b128 v{lds_w}, {vr(vacc,4)}\nds_write_b128 v{lds_w}, {vr(vacc+4,4)} offset:1024")
    g("s_waitcnt lgkmcnt(0)\ns_barrier")
    skip = g.label("skip")
    g(f"s_cmp_lg_u32 {sWAVE}, 0\ns_cbranch_scc1 {skip}")
    d = vt + 4
    for wv in range(4):
        g(f"ds_read_b128 {vr(d+4*wv,4)}, v{vt} offset:{wv*lds_stride}")
    g("s_waitcnt lgkmcnt(2)")
    for r in range(4): g(f"v_add_f32 v{d+r}, v{d+r}, v{d+4+r}")
    g("s_waitcnt lgkmcnt(0)")
    for r in range(4): g(f"v_add_f32 v{d+8+r}, v{d+8+r}, v{d+12+r}")
    for r in range(4): g(f"v_add_f32 v{d+r}, v{d+r}, v{d+8+r}")
    g(f"s_nop 0\nv_permlane32_swap_b32 v{d}, v{d+2}\nv_permlane32_swap_b32 v{d+1}, v{d+3}")
    g(f"v_add_f32 v{d}, v{d}, v{d+2}\nv_add_f32 v{d+1}, v{d+1}, v{d+3}")
    g(f"v_bfi_b32 v{d}, v{vFF}, v{vTa}, v{d}\nv_bfi_b32 v{d+1}, v{vFF}, v{vTb}, v{d+1}")
    g(f"buffer_store_dwordx2 {vr(d,2)}, v{vt+1}, {SWS}, {sdst} offen sc1")
    g(f"{skip}:")

def gemv_addr_setup(g, vt, vTa, vTb, vFF, lds_base, t):
    g(f"""
    v_lshrrev_b32 v{t}, 5, v0
    v_mul_u32_u24 v{vt}, 40*16, v{t}
    v_and_b32 v{t+1}, 1, v0
    v_lshl_add_u32 v{vt}, v{t+1}, 8, v{vt}
    v_bfe_u32 v{t+1}, v0, 1, 3
    v_lshl_add_u32 v{vt}, v{t+1}, 4, v{vt}
    v_bfe_u32 v{t+1}, v0, 4, 1
    v_lshl_add_u32 v{vt}, v{t+1}, 10, v{vt}
    v_add_u32 v{vt}, {lds_base}, v{vt}
    v_and_b32 v{t+1}, 31, v0
    v_lshlrev_b32 v{t+1}, 4, v{t+1}
    v_lshl_add_u32 v{vt+1}, v{t}, 3, v{t+1}
    v_lshlrev_b32 v{t}, 4, v{t}
    v_mov_b32 v{vFF}, 0xff
    """)

def att_setup(g):
    o = g.opt
    vAa, vQa, vQw, vTr, vMask, vFF = 36, 40, 208, 192, 16, 214
    g(f"""
    v_lshlrev_b32 v7, 4, v0
    v_and_b32 v220, 15, v0
    v_lshlrev_b32 v221, 2, v220
    v_mov_b32 v{vFF}, 0xff
    v_mov_b32 v11, 0
    v_and_b32 v3, 6, v0
    v_bfe_u32 v4, v0, 3, 1
    v_or_b32 v3, v3, v4
    v_lshrrev_b32 v4, 5, v0
    v_xor_b32 v3, v3, v4
    v_lshlrev_b32 v3, 4, v3
    v_and_b32 v4, 7, v0
    v_lshl_add_u32 v3, v4, 7, v3
    v_bfe_u32 v4, v0, 3, 2
    v_lshl_add_u32 v3, v4, 13, v3
    v_add_u32 v{vAa}, s54, v3
    """)
    for s in range(1, 4): g(f"v_xor_b32 v{vAa+s}, {s*32}, v{vAa}")
    g(f"""
    v_lshrrev_b32 v4, 5, v0
    v_xor_b32 v3, v0, v4
    v_lshlrev_b32 v3, 4, v3
    v_add_u32 v{vQa}, {QB}, v3
    """)
    for s in range(1, 4): g(f"v_xor_b32 v{vQa+s}, {s*32}, v{vQa}\nv_add_u32 v{vQa+s}, {s*1024}, v{vQa+s}")
    g(f"""
    v_bfe_u32 v3, v0, 1, 3
    v_lshrrev_b32 v4, 5, v0
    v_xor_b32 v3, v3, v4
    v_lshlrev_b32 v3, 4, v3
    v_bfe_u32 v4, v0, 1, 4
    v_lshl_add_u32 v3, v4, 9, v3
    v_and_b32 v4, 1, v0
    v_lshl_add_u32 v3, v4, 3, v3
    s_lshl_b32 s49, {sWAVE}, 13
    s_add_u32 s49, s49, {QB}
    v_add_u32 v{vQw}, s49, v3
    """)
    for s in range(1, 4): g(f"v_xor_b32 v{vQw+s}, {s*32}, v{vQw}")
    g(f"""
    v_bfe_u32 v3, v0, 2, 3
    v_and_b32 v4, 6, v3
    v_bfe_u32 v5, v0, 1, 1
    v_xor_b32 v4, v4, v5
    v_lshlrev_b32 v4, 4, v4
    v_lshl_add_u32 v4, v3, 7, v4
    v_and_b32 v5, 1, v0
    v_lshl_add_u32 v4, v5, 3, v4
    v_lshrrev_b32 v5, 5, v0
    v_lshl_add_u32 v4, v5, 14, v4
    s_lshl_b32 s49, {sWAVE}, 11
    v_add_u32 v{vTr}, s49, v4
    """)
    for c in range(4):
        for rho in range(2):
            if c == 0 and rho == 0: continue
            g(f"v_xor_b32 v{vTr+2*c+rho}, {c*32 + rho*16}, v{vTr}")
            if rho: g(f"v_add_u32 v{vTr+2*c+rho}, 8192, v{vTr+2*c+rho}")
    for k in range(8): g(f"v_add_u32 v{vTr+8+k}, 0x10000, v{vTr+k}")
    g(f"""
    v_and_b32 v3, 1, v0
    v_lshlrev_b32 v3, 4, v3
    v_mov_b32 v4, 0xffff
    v_lshlrev_b32 v3, v3, v4
    v_bfe_u32 v4, v0, 1, 3
    """)
    for k in range(8):
        g(f"v_cmp_eq_u32 vcc, {k}, v4\ns_nop 1\nv_cndmask_b32 v{vMask+k}, 0, v3, vcc")
    g(f"""
    v_and_b32 v3, 31, v0
    v_lshlrev_b32 v223, 5, v3
    v_add_u32 v223, {QB}, v223
    v_lshrrev_b32 v4, 5, v0
    v_lshl_add_u32 v222, v4, 2, v223
    s_lshl_b32 s49, {sWAVE}, 3
    v_add_u32 v222, s49, v222
    v_add_u32 v224, 1024, v222
    v_add_u32 v225, 1024, v223
    v_lshlrev_b32 v226, 4, v220
    v_lshl_add_u32 v226, v4, 8, v226
    v_mul_u32_u24 v6, {8*XPS}, v4
    v_bfe_u32 v4, v0, 4, 1
    v_lshl_add_u32 v226, v4, 10, v226
    s_lshl_b32 s49, {sWAVE}, 11
    s_add_u32 s49, s49, {QB+2048}
    v_add_u32 v226, s49, v226
    v_add_u32 v227, {QB+2048}, v7
    v_lshlrev_b32 v228, 4, v3
    v_lshl_add_u32 v6, v220, 5, v6
    v_lshl_add_u32 v6, v4, 4, v6
    s_lshl_b32 s49, {sWAVE}, 9
    v_add_u32 v6, s49, v6
    v_lshrrev_b32 v4, 4, v0
    v_lshlrev_b32 v229, 4, v220
    v_lshl_add_u32 v230, v4, 15, v229
    v_lshl_add_u32 v229, v4, 12, v229
    v_bfe_u32 v3, v0, 3, 1
    v_mul_u32_u24 v12, {8*XPS}, v3
    v_lshlrev_b32 v3, 4, v3
    v_lshl_add_u32 v231, v4, 9, v3
    v_lshlrev_b32 v10, 3, v220
    s_lshl_b32 s57, {sWAVE}, 14
    s_add_u32 s57, s57, {QA}
    s_lshl_b32 s58, {sXg}, 19
    s_lshl_b32 s49, {sIdx}, 11
    s_add_u32 s58, s58, s49
    s_lshl_b32 s49, {sWAVE}, 8
    s_add_u32 s58, s58, s49
    s_add_u32 s58, s58, {PART}
    s_lshl_b32 s59, {sXg}, 13
    s_lshl_b32 s49, {sIdx}, 5
    s_add_u32 s59, s59, s49
    s_add_u32 s59, s59, {ML}
    s_lshl_b32 s60, {sXg}, 8
    s_lshl_b32 s49, {sWAVE}, 6
    s_add_u32 s60, s60, s49
    s_add_u32 s60, s60, {FLG}
    s_lshl_b32 s55, {sXg}, 7
    s_add_u32 s55, s55, {XC}
    s_lshl_b32 s49, {sWAVE}, 3
    s_lshl_b32 s62, 0xff, s49
    s_mov_b32 s63, 0
    s_lshl_b32 s52, s50, 9
    s_add_u32 s52, s52, {ML}
    """)
    epoch_finish(g)
    g(f"v_mov_b32 v234, {sT[0]}\nv_mov_b32 v235, {sT[0]}")
    if o['LOCAL']:
        sk = g.label("xc")
        g(f"""
        s_getreg_b32 s56, hwreg(HW_REG_XCC_ID, 0, 4)
        s_cmp_lg_u32 {sWAVE}, 1
        s_cbranch_scc1 {sk}
        v_mov_b32 v4, s56
        v_mov_b32 v5, {sT[0]}
        s_lshl_b32 s49, s50, 3
        s_add_u32 s49, s49, {XC}
        s_mov_b64 exec, 1
        buffer_store_dwordx2 v[4:5], v11, {SWS}, s49 offen sc1
        s_mov_b64 exec, -1
        {sk}:
        """)

def att_setup2(g):
    g(f"""
    s_lshl_b32 s50, s50, 15
    s_lshl_b32 s49, {sWAVE}, 8
    s_add_u32 s50, s50, s49
    s_add_u32 s50, s50, {PART}
    s_add_u32 s51, s50, 16384
    s_lshl_b32 s53, {sIdx}, 2
    s_add_u32 s53, s53, s60
    s_lshl_b32 s54, {sIdx}, 4
    s_add_u32 s54, s54, {sXg}
    s_mul_i32 s54, s54, {XPS}
    s_add_u32 s54, s54, {XP}
    v_lshrrev_b32 v3, 2, v0
    v_lshlrev_b32 v8, 15, v3
    v_bfe_u32 v4, v0, 1, 1
    v_lshl_add_u32 v8, v4, 10, v8
    v_and_b32 v4, 1, v0
    v_lshl_add_u32 v8, v4, 7, v8
    v_lshlrev_b32 v9, 9, v220
    """)

def attention(g):
    o = g.opt
    NT = o['NT']
    g("L_att:")
    g("""
    s_load_dwordx2 s[12:13], s[0:1], 16
    s_load_dwordx2 s[8:9], s[0:1], 8
    s_load_dwordx2 s[20:21], s[0:1], 104
    s_load_dwordx2 s[16:17], s[0:1], 88
    """)
    srd_tail(g, 12, 640*8192); srd_tail(g, 8, 16384*1024); srd_tail(g, 20, WSSZ); srd_tail(g, 16, 1280)
    vDma = 14
    g(f"""
    s_and_b32 {sXg}, s2, 7
    s_lshr_b32 {sIdx}, s2, 3
    s_lshr_b32 s49, {sIdx}, 2
    s_lshl_b32 {sH}, {sXg}, 2
    s_add_u32 {sH}, {sH}, s49
    s_and_b32 {sQt}, {sIdx}, 3
    s_lshl_b32 s50, {sXg}, 4
    s_add_u32 s50, s50, {sIdx}
    v_bfe_u32 v3, v0, 2, 2
    v_mul_u32_u24 v2, 40, v3
    v_lshrrev_b32 v3, 4, v0
    v_lshl_add_u32 v2, v3, 1, v2
    v_bfe_u32 v3, v0, 1, 1
    v_add_u32 v2, v2, v3
    v_lshlrev_b32 v2, 13, v2
    v_and_b32 v3, 1, v0
    v_lshl_add_u32 v2, v3, 7, v2
    s_mul_i32 s51, {sQt}, {160*8192}
    s_lshl_b32 s49, {sH}, 8
    s_add_u32 s51, s51, s49
    s_add_u32 s52, s51, {32*8192}
    s_lshl_b32 s49, {sWAVE}, 16
    s_add_u32 s51, s51, s49
    s_lshl_b32 s49, {sWAVE}, 4
    s_mov_b64 s[54:55], 0xffff
    s_lshl_b64 s[56:57], s[54:55], s49
    v_lshrrev_b32 v3, 3, v0
    v_and_b32 v4, 6, v3
    v_and_b32 v5, 7, v0
    v_xor_b32 v4, v4, v5
    v_lshlrev_b32 v4, 4, v4
    v_lshl_add_u32 v{vDma}, v3, 10, v4
    v_xor_b32 v{vDma+1}, 16, v{vDma}
    s_lshl_b32 s53, s50, 17
    s_lshl_b32 s54, {sWAVE}, 15
    s_add_u32 s53, s53, s54
    s_waitcnt lgkmcnt(0)
    """)
    g.stamp('karg')
    if o['PFQ']:
        g(f"""
        buffer_load_dword v8, v2, {SB}, s51 offen {o['PFNT']}
        s_mov_b64 exec, s[56:57]
        buffer_load_dword v9, v2, {SB}, s52 offen {o['PFNT']}
        s_mov_b64 exec, -1
        """)
    common_epoch(g)
    if o['CORDER'] == 'cb':
        dma = [(cb, ro) for cb in range(8) for ro in range(4)]
    else:
        dma = [(cb, ro) for ro in range(4) for cb in range(8)]
    for k, (cb, ro) in enumerate(dma):
        g(f"s_add_u32 m0, s54, {ro*8192+cb*1024}\ns_add_u32 s49, s53, {ro*8192+cb*128}")
        g(f"buffer_load_dwordx4 v{vDma+(ro&1)}, {SA}, s49 offen {NT} lds")
        if k == 3:
            att_setup(g)
    g.stamp('pre')
    vQs = 64
    def sweep():
        g("s_mov_b32 s49, s57")
        for i in range(16):
            g(f"buffer_load_dwordx4 {vr(vQs+4*i,4)}, v7, {SWS}, s49 offen offset:{(i&3)*1024} sc1")
            if i & 3 == 3 and i < 15: g("s_add_u32 s49, s49, 4096")
    sweep()
    g.stamp('swp')
    vAa, vQa, vQw, vTr, vMask, vFF = 36, 40, 208, 192, 16, 214
    g("s_waitcnt vmcnt(16)")
    g.stamp('ckv')
    for s in range(32): g(f"ds_read_b128 {ar(4*s,4)}, v{vAa+(s&3)} offset:{(s>>2)*1024}")
    att_setup2(g)
    Lq, Lqok = g.label("q"), g.label("qok")
    g(f"s_mov_b32 {sSpin}, 0")
    g(f"{Lq}:")
    for i in range(16):
        if i % 4 == 0: g(f"s_waitcnt vmcnt({12-i})")
        if i == 0: g(f"v_xor_b32 v3, {sT[0]}, v{vQs+2}")
        else: g(f"v_bitop3_b32 v3, v3, v{vQs+4*i+2}, {sT[0]} bitop3:0xf6")
        g(f"ds_write_b64 v{vQw+(i&3)}, {vr(vQs+4*i,2)} offset:{(i>>2)*128}")
    g(f"v_cmp_ne_u32 vcc, 0, v3\ns_cbranch_vccz {Lqok}")
    spin_check(g)
    g("s_waitcnt lgkmcnt(0)")
    sweep()
    g(f"s_branch {Lq}")
    g(f"{Lqok}:")
    g.stamp('qok')
    if o['LOCAL']:
        if o['PRETOUCH']:
            g(f"""
            buffer_load_dword v215, v8, {SWS}, s58 offen {o['PTF']}
            buffer_load_dword v216, v9, {SWS}, s59 offen {o['PTF']}
            buffer_load_dword v217, v221, {SWS}, s60 offen {o['PTF']}
            """)
        g(f"buffer_load_dwordx2 v[218:219], v10, {SWS}, s55 offen sc1")
    g("s_waitcnt lgkmcnt(0)\ns_barrier")
    vS, vQr = 48, 128
    trl = [(ct, t, rho) for ct in range(8) for t in range(4) for rho in range(2)]
    def rdT(k):
        ct, t, rho = trl[k]
        g(f"ds_read_b64_tr_b16 {ar(128+(ct*4+t)*4+2*rho,2)}, v{vTr+(t>>1)*8+(ct&3)*2+rho} offset:{(t&1)*32768+(ct>>2)*1024}")
    def rdQ(s): g(f"ds_read_b128 {vr(vQr+4*(s%8),4)}, v{vQa+(s&3)} offset:{(s>>2)*4096}")
    D = 4
    pend = []
    def waitfor(tag):
        if tag in pend:
            idx = pend.index(tag)
            n = len(pend) - 1 - idx
            g(f"s_waitcnt lgkmcnt({min(n,15)})")
            if n <= 15: del pend[:idx+1]
            else: del pend[:len(pend)-15]
    for s in range(D): rdQ(s); pend.append(('Q', s))
    for s in range(32):
        waitfor(('Q', s))
        g(f"v_mfma_f32_32x32x16_bf16 {vr(vS,16)}, {ar(4*s,4)}, {vr(vQr+4*(s%8),4)}, {'0' if s == 0 else vr(vS,16)}")
        if s + D < 32: rdQ(s+D); pend.append(('Q', s+D))
        for k in (2*s, 2*s+1): rdT(k); pend.append(('T', k))
    g("s_barrier")
    g.stamp('qk')
    g("s_nop 8")
    g(f"v_max3_f32 v3, v{vS}, v{vS+1}, v{vS+2}\nv_max3_f32 v4, v{vS+3}, v{vS+4}, v{vS+5}")
    for k in range(6, 14, 4): g(f"v_max3_f32 v3, v3, v{vS+k}, v{vS+k+1}\nv_max3_f32 v4, v4, v{vS+k+2}, v{vS+k+3}")
    g(f"v_max3_f32 v3, v3, v{vS+14}, v{vS+15}\nv_max_f32 v3, v3, v4")
    g("ds_write_b32 v222, v3\ns_waitcnt lgkmcnt(0)\ns_barrier")
    g.stamp('mx')
    g("ds_read_b128 v[24:27], v223\nds_read_b128 v[28:31], v223 offset:16")
    vM = 232
    g(f"s_waitcnt lgkmcnt(1)\nv_max3_f32 v{vM}, v24, v25, v26\ns_waitcnt lgkmcnt(0)\nv_max3_f32 v3, v27, v28, v29\nv_max3_f32 v{vM}, v{vM}, v30, v31\nv_max_f32 v{vM}, v{vM}, v3")
    for hb in range(2):
        for k in range(8*hb, 8*hb+8): g(f"v_sub_f32 v{vS+k}, v{vS+k}, v{vM}")
        for k in range(8*hb, 8*hb+8): g(f"v_exp_f32 v{vS+k}, v{vS+k}")
        for k in range(4*hb, 4*hb+4): g(f"v_cvt_pk_bf16_f32 v{24+k}, v{vS+2*k}, v{vS+2*k+1}")
        g(f"ds_write_b128 v226, {vr(24+4*hb,4)} offset:{512*hb}")
    for k in range(4): g(f"v_pk_add_f32 {vr(vS+2*k,2)}, {vr(vS+2*k,2)}, {vr(vS+8+2*k,2)}")
    for k in range(2): g(f"v_pk_add_f32 {vr(vS+2*k,2)}, {vr(vS+2*k,2)}, {vr(vS+4+2*k,2)}")
    g(f"v_pk_add_f32 {vr(vS,2)}, {vr(vS,2)}, {vr(vS+2,2)}\nv_add_f32 v{vS}, v{vS}, v{vS+1}")
    g(f"ds_write_b32 v224, v{vS}\ns_waitcnt lgkmcnt(0)\ns_barrier")
    g.stamp('P')
    vP, vAcc, vO = 128, 64, 160
    pend.clear()
    for ht in range(2):
        for t in range(4):
            g(f"ds_read_b128 {vr(vP+(t*2+ht)*4,4)}, v227 offset:{(t*2+ht)*1024}"); pend.append(('P', t, ht))
    g("ds_read_b128 v[48:51], v225\nds_read_b128 v[52:55], v225 offset:16")
    pend += [('L', 0), ('L', 1)]
    fill = {}
    def add(n, txt): fill.setdefault(n, []).append(txt)
    if o['LOCAL']:
        add(4, f"s_waitcnt vmcnt(0)\nv_xor_b32 v3, {sT[0]}, v219")
        add(5, f"v_bitop3_b32 v3, v3, v218, s56 bitop3:0xf6\nv_cmp_ne_u32 vcc, 0, v3")
        add(7, "s_cmp_eq_u64 vcc, 0\ns_cselect_b32 s61, 1, 0")
    add(8, "s_waitcnt lgkmcnt(0)\nv_add_f32 v48, v48, v52\nv_add_f32 v49, v49, v53")
    add(9, "v_add_f32 v50, v50, v54\nv_add_f32 v51, v51, v55")
    add(10, "v_add_f32 v48, v48, v50\nv_add_f32 v49, v49, v51")
    add(11, f"v_add_f32 v{vM+1}, v48, v49\ns_mov_b64 exec, s[62:63]")
    add(11, ('DS', f"buffer_store_dwordx4 {vr(vM,4)}, v228, {SWS}, s52 offen"))
    add(11, "s_mov_b64 exec, -1")
    def cvt(ht, r, k): return f"v_cvt_pk_bf16_f32 v{vO+(ht*4+r)*4+k}, v{vAcc+(ht*8+2*k)*4+r}, v{vAcc+(ht*8+2*k+1)*4+r}"
    def pst(ht, r): return f"buffer_store_dwordx4 {vr(vO+(ht*4+r)*4,4)}, v229, {SWS}, s{50+ht} offen offset:{r*1024}"
    for r in range(4):
        for k in range(4): add(32 + 8 + 4*r + k, cvt(0, r, k))
        add(32 + 8 + 4*r + 4, ('DS', pst(0, r)))
    nm = 0
    for ht in range(2):
        for ct in range(8):
            for t in range(4):
                waitfor(('P', t, ht))
                acc = vAcc + (ht*8+ct)*4
                g(f"v_mfma_f32_16x16x32_bf16 {vr(acc,4)}, {vr(vP+(t*2+ht)*4,4)}, {ar(128+(ct*4+t)*4,4)}, {'0' if t == 0 else vr(acc,4)}")
                for f in fill.get(nm, []):
                    if isinstance(f, tuple): dual_store(g, f[1])
                    else: g(f)
                if nm == 8: pend.clear()
                nm += 1
    g.stamp('pv')
    for k in range(3):
        for r in range(4): g(cvt(1, r, k))
    def tail(sfx):
        for r in range(4): g(cvt(1, r, 3) + "\n" + pst(1, r) + sfx)
        g(f"s_waitcnt vmcnt(0)\ns_mov_b64 exec, 1\nbuffer_store_dword v{vM+2}, v11, {SWS}, s53 offen{sfx}\ns_mov_b64 exec, -1")
    if o['LOCAL']:
        a, b = g.label("ds"), g.label("de")
        g(f"s_cmp_eq_u32 s61, 1\ns_cbranch_scc0 {a}")
        tail("")
        g(f"s_branch {b}\n{a}:")
        tail(" sc1")
        g(f"{b}:")
    else: tail(" sc1")
    g.stamp('ack')
    vML = 128
    Lm = g.label("ml")
    g(f"s_mov_b32 {sSpin}, 0\ns_add_u32 s49, s59, 4096")
    g(f"{Lm}:")
    g(f"buffer_load_dword v5, v221, {SWS}, s60 offen sc1")
    for u in range(4):
        g(f"buffer_load_dwordx3 {vr(vML+4*u,3)}, v231, {SWS}, {'s59' if u < 2 else 's49'} offen offset:{(u&1)*2048} sc1")
    spin_check(g)
    g(f"s_waitcnt vmcnt(0)\nv_xor_b32 v3, {sT[0]}, v5")
    for u in range(4): g(f"v_bitop3_b32 v3, v3, v{vML+4*u+2}, {sT[0]} bitop3:0xf6")
    g(f"v_cmp_ne_u32 vcc, 0, v3\ns_cbranch_vccnz {Lm}")
    g.stamp('flg')
    vRB = 160
    for u in range(4):
        for hs in range(2):
            g(f"buffer_load_dwordx4 {vr(vRB+(u*2+hs)*4,4)}, v230, {SWS}, s58 offen offset:{hs*1024} sc1")
        if u < 3: g("s_add_u32 s58, s58, 0x20000")
    def red_g(reg, tmp, op):
        g(f"v_mov_b32 v{tmp}, v{reg}\ns_nop 1\nv_permlane16_swap_b32 v{reg}, v{tmp}\n{op} v{reg}, v{reg}, v{tmp}")
        g(f"v_mov_b32 v{tmp}, v{reg}\ns_nop 1\nv_permlane32_swap_b32 v{reg}, v{tmp}\n{op} v{reg}, v{reg}, v{tmp}")
    vX = 232
    g(f"v_max3_f32 v{vX}, v{vML}, v{vML+4}, v{vML+8}\nv_max_f32 v{vX}, v{vX}, v{vML+12}")
    red_g(vX, 3, "v_max_f32")
    for u in range(4): g(f"v_sub_f32 v{vML+4*u}, v{vML+4*u}, v{vX}")
    for u in range(4): g(f"v_exp_f32 v{vML+4*u}, v{vML+4*u}")
    for u in range(4): g(f"v_cvt_pk_bf16_f32 v{vML+4*u}, v{vML+4*u}, v{vML+4*u}")
    vRA = 64
    for u in range(4):
        for k in range(8): g(f"v_and_b32 v{vRA+u*8+k}, v{vML+4*u}, v{vMask+k}")
    lcode = [f"v_and_b32 v{vML+4*u+3}, 0xffff0000, v{vML+4*u}" for u in range(4)]
    lcode += [f"v_mul_f32 v{vX+1}, v{vML+3}, v{vML+1}"] + [f"v_fmac_f32 v{vX+1}, v{vML+4*u+3}, v{vML+4*u+1}" for u in range(1, 4)]
    for k in range(8):
        g(f"s_waitcnt vmcnt({7-k})")
        g(f"v_mfma_f32_16x16x32_bf16 v[32:35], {vr(vRA+4*k,4)}, {vr(vRB+4*k,4)}, {'0' if k == 0 else 'v[32:35]'}")
        g(lcode[k])
    red_g(vX+1, 3, "v_add_f32")
    for r in range(4): g(f"v_bfi_b32 v{32+r}, v{vFF}, {sT[r]}, v{32+r}")
    g(f"buffer_store_dwordx4 v[32:35], v6, {SWS}, s54 offen sc1")
    sk = g.label("xm")
    g(f"s_cmp_lg_u32 {sWAVE}, 0\ns_cbranch_scc1 {sk}\ns_mov_b64 exec, 0x101\nbuffer_store_dwordx4 {vr(vX,4)}, v12, {SWS}, s54 offen offset:2048 sc1\ns_mov_b64 exec, -1\n{sk}:")
    g.stamp('xp')
    g(f"""
    s_lshl_b32 s49, {sWAVE}, 4
    s_add_u32 s49, s49, {sIdx}
    s_and_b32 s50, s49, 0xf8
    s_add_u32 s50, s50, {sXg}
    s_cmp_ge_u32 s50, 20
    s_cbranch_scc1 L_fin
    s_and_b32 s49, s49, 7
    s_lshl_b32 s51, s50, 3
    s_add_u32 s51, s51, s49
    s_lshl_b32 s52, s51, 4
    s_add_u32 s52, s52, {OP}
    s_add_u32 s53, s52, {64*2560}
    v_mul_u32_u24 v3, 2560, v0
    s_lshr_b32 s54, s51, 4
    s_lshl_b32 s54, s54, 7
    s_and_b32 s51, s51, 15
    s_lshl_b32 s51, s51, 1
    s_add_u32 s54, s54, s51
    v_bfe_u32 v4, v0, 4, 1
    v_lshlrev_b32 v4, 6, v4
    v_lshrrev_b32 v5, 5, v0
    v_lshl_add_u32 v4, v5, 5, v4
    s_mov_b32 {sSpin}, 0
    """)
    Lo = g.label("o")
    g(f"{Lo}:")
    g(f"buffer_load_dwordx4 v[8:11], v3, {SWS}, s52 offen sc1\nbuffer_load_dwordx4 v[12:15], v3, {SWS}, s53 offen sc1")
    spin_check(g)
    g(f"s_waitcnt vmcnt(1)\nv_xor_b32 v5, {sT[0]}, v8")
    for r in range(1, 4): g(f"v_bitop3_b32 v5, v5, v{8+r}, {sT[r]} bitop3:0xf6")
    g("s_waitcnt vmcnt(0)")
    for r in range(4): g(f"v_bitop3_b32 v5, v5, v{12+r}, {sT[r]} bitop3:0xf6")
    g(f"v_and_b32 v5, 0xff, v5\nv_cmp_ne_u32 vcc, 0, v5\ns_cbranch_vccnz {Lo}")
    g.stamp('op')
    g("""
    v_pk_add_f32 v[8:9], v[8:9], v[12:13]
    v_pk_add_f32 v[10:11], v[10:11], v[14:15]
    s_nop 1
    v_permlane32_swap_b32 v8, v9
    v_permlane32_swap_b32 v10, v11
    v_add_f32 v8, v8, v9
    v_add_f32 v10, v10, v11
    s_nop 1
    v_permlane16_swap_b32 v8, v10
    v_add_f32 v8, v8, v10
    s_nop 1
    v_add_f32_dpp v8, v8, v8 row_ror:8 row_mask:0xf bank_mask:0xf
    s_nop 1
    v_add_f32_dpp v8, v8, v8 row_ror:4 row_mask:0xf bank_mask:0xf
    s_nop 1
    v_add_f32_dpp v8, v8, v8 row_ror:2 row_mask:0xf bank_mask:0xf
    s_nop 1
    v_add_f32_dpp v8, v8, v8 row_ror:1 row_mask:0xf bank_mask:0xf
    v_cvt_pk_bf16_f32 v8, v8, v8
    s_mov_b32 exec_lo, 0x00010001
    s_mov_b32 exec_hi, 0x00010001
    """)
    g(f"buffer_store_short v8, v4, {SC}, s54 offen")
    g(f"""
    s_or_b32 s49, s2, {sWAVE}
    s_cmp_lg_u32 s49, 0
    s_cbranch_scc1 L_fin
    s_mov_b64 exec, 1
    v_mov_b32 v5, {sT[0]}
    v_mov_b32 v6, 0
    buffer_store_dword v5, v6, {SWS}, 0 offen sc1
    """)
    g("s_branch L_fin")

def dual_store(g, stores):
    if not g.opt['LOCAL']:
        g("\n".join(s + " sc1" for s in stores.split("\n"))); return
    a, b = g.label("ds"), g.label("de")
    g(f"s_cmp_eq_u32 s61, 1\ns_cbranch_scc0 {a}")
    g(stores)
    g(f"s_branch {b}\n{a}:")
    g("\n".join(s + " sc1" for s in stores.split("\n")))
    g(f"{b}:")

def quad_sum(g, base, n):
    for k in range(n): g(f"v_add_f32_dpp v{base+k}, v{base+k}, v{base+k} quad_perm:[1,0,3,2] row_mask:0xf bank_mask:0xf")
    if n < 3: g("s_nop 1")
    for k in range(n): g(f"v_add_f32_dpp v{base+k}, v{base+k}, v{base+k} quad_perm:[2,3,0,1] row_mask:0xf bank_mask:0xf")

def ror_sum(g, base, n):
    for sh in (4, 8):
        for k in range(n): g(f"v_add_f32_dpp v{base+k}, v{base+k}, v{base+k} row_ror:{sh} row_mask:0xf bank_mask:0xf")

def weight(g):
    o = g.opt
    NT = o['NT']
    g.role = "wgt"; g.names["wgt"].append("st")
    g("L_wgt:")
    g("""
    s_load_dwordx2 s[4:5], s[0:1], 0
    s_load_dwordx2 s[8:9], s[0:1], 24
    s_load_dwordx2 s[32:33], s[0:1], 16
    s_load_dwordx2 s[20:21], s[0:1], 104
    s_load_dwordx2 s[28:29], s[0:1], 80
    """)
    srd_tail(g, 4, 1280); srd_tail(g, 8, 512*8192); srd_tail(g, 32, 640*8192); srd_tail(g, 20, WSSZ); srd_tail(g, 28, 1280)
    LWO, LWD, LUV, LSCR, LCX, LUK, LXP = 0, 49152, 73728, 106496, 114688, 115712, 115712
    g(f"""
    s_and_b32 {sXg}, s2, 7
    s_lshr_b32 {sIdx}, s2, 3
    s_sub_u32 {sIdx}, {sIdx}, 16
    s_lshr_b32 s49, {sIdx}, 2
    s_lshl_b32 {sH}, {sXg}, 2
    s_add_u32 {sH}, {sH}, s49
    s_and_b32 {sQt}, {sIdx}, 3
    v_and_b32 v1, 15, v0
    v_lshrrev_b32 v2, 4, v0
    v_mul_u32_u24 v4, 80, v2
    s_mul_i32 s50, {sWAVE}, 320
    v_xor_b32 v3, v1, v2
    v_lshlrev_b32 v3, 4, v3
    v_lshl_add_u32 v28, v2, 13, v3
    v_xor_b32 v29, 64, v28
    v_xor_b32 v30, 128, v28
    v_xor_b32 v31, 192, v28
    s_lshl_b32 s51, {sQt}, 2
    s_add_u32 s51, s51, {sWAVE}
    s_lshl_b32 s51, s51, 18
    s_lshl_b32 s49, {sH}, 8
    s_add_u32 s51, s51, s49
    s_mul_i32 s52, {sWAVE}, {160*8192}
    s_add_u32 s52, s52, s49
    s_lshl_b32 s63, {sWAVE}, 13
    s_add_u32 s53, s63, {LUK}
    v_mul_u32_u24 v5, 40, v2
    v_bfe_u32 v3, v0, 3, 1
    v_add_u32 v6, v5, v3
    v_lshlrev_b32 v5, 13, v6
    v_and_b32 v3, 7, v0
    v_lshl_add_u32 v5, v3, 4, v5
    v_lshlrev_b32 v7, 4, v0
    s_waitcnt lgkmcnt(0)
    """)
    g.stamp('karg')
    vXq = 224
    for k in range(5): g(f"buffer_load_dwordx4 {vr(vXq+4*k,4)}, v4, {SX}, s50 offen offset:{16*k}")
    for b in range(8):
        g(f"s_add_u32 m0, s53, {b*1024}\ns_add_u32 s49, s51, {b*4*8192}")
        g(f"buffer_load_dwordx4 v{28+(b&3)}, {SA}, s49 offen {NT} lds")
    WIN = o['WIN']
    def ldq(k):
        g(f"buffer_load_dwordx4 {ar(4*k,4)}, v5, {SF}, s52 offen offset:{128*(k&1)} {o['WQNT']}")
        if k & 1: g("s_add_u32 s52, s52, 16384")
    common_epoch(g)
    g("""
    s_load_dwordx2 s[12:13], s[0:1], 32
    s_load_dwordx2 s[16:17], s[0:1], 40
    s_load_dwordx2 s[24:25], s[0:1], 72
    s_load_dwordx2 s[36:37], s[0:1], 64
    """)
    srd_tail(g, 12, 512*8192); srd_tail(g, 16, 4096*1280); srd_tail(g, 24, 1728*1280); srd_tail(g, 36, 640*3456)
    vSel = 16
    sel_setup(g, vSel, 8)
    vG = 44
    vTa, vTb, vFF = 212, 213, 214
    gemv_addr_setup(g, vG, vTa, vTb, vFF, LSCR, 8)
    g(f"s_lshl_b32 s49, {sWAVE}, 11\ns_add_u32 s49, s49, {LSCR}\nv_add_u32 v13, s49, v7")
    g(f"""
    v_bfe_u32 v3, v0, 1, 3
    v_lshlrev_b32 v14, 10, v3
    v_and_b32 v3, 1, v0
    v_lshl_add_u32 v3, v3, 2, v2
    v_lshl_add_u32 v14, v3, 4, v14
    v_add_u32 v14, {LSCR}, v14
    v_xor_b32 v3, v1, v2
    v_lshlrev_b32 v3, 4, v3
    v_lshl_add_u32 v3, v1, 8, v3
    v_add_u32 v20, s53, v3
    v_xor_b32 v21, 64, v20
    v_xor_b32 v22, 128, v20
    v_xor_b32 v23, 192, v20
    v_lshlrev_b32 v15, 6, v1
    v_lshl_add_u32 v15, v2, 4, v15
    s_lshl_b32 s55, {sQt}, 5
    s_add_u32 s55, s55, {sH}
    s_lshl_b32 s55, s55, 9
    s_lshl_b32 s49, {sWAVE}, 7
    s_add_u32 s55, s55, s49
    s_add_u32 s55, s55, {QA}
    """)
    epoch_finish(g)
    g(f"v_mov_b32 v{vTa}, {sT[0]}\nv_lshrrev_b32 v{vTa}, v8, v{vTa}\nv_lshrrev_b32 v{vTb}, 8, v{vTa}")
    g(f"v_mov_b32 v26, {sT[0]}\nv_mov_b32 v27, {sT[0]}")
    vA = 64
    g("s_waitcnt vmcnt(8)")
    for u in range(20):
        for r in range(4): g(f"v_perm_b32 v{vA+4*u+r}, v{vXq+u}, v{vXq+u}, v{vSel+r}")
        if u < WIN: ldq(u)
    vUk = 144
    for k in range(40):
        u, m = k >> 1, k & 1
        g(f"s_waitcnt vmcnt({min(WIN, 40-k)-1})")
        g(f"v_mfma_f32_16x16x32_bf16 {vr(32+4*m,4)}, {vr(vA+4*u,4)}, {ar(4*k,4)}, {'0' if u == 0 else vr(32+4*m,4)}")
        if k + WIN < 40: ldq(k+WIN)
        if 2 <= k < 10:
            ct, sx = (k-2) >> 2, (k-2) & 3
            g(f"ds_read_b128 {vr(vUk+(ct*4+sx)*4,4)}, v{20+sx} offset:{ct*4096}")
    g.stamp('w1')
    g("s_nop 6")
    g(f"ds_write_b128 v13, v[32:35]\nds_write_b128 v13, v[36:39] offset:1024\ns_waitcnt lgkmcnt(0)\ns_barrier")
    vQ = 48
    g(f"ds_read_b128 v[48:51], v14\nds_read_b128 v[56:59], v14 offset:640\nds_read_b128 v[52:55], v14 offset:256\nds_read_b128 v[60:63], v14 offset:896")
    g("s_waitcnt lgkmcnt(2)")
    for k in range(4): g(f"v_add_f32 v{48+k}, v{48+k}, v{56+k}")
    g("s_waitcnt lgkmcnt(0)")
    for k in range(4): g(f"v_add_f32 v{52+k}, v{52+k}, v{60+k}")
    ror_sum(g, 48, 8)
    for k in range(4): g(f"v_cvt_pk_bf16_f32 v{vQ+k}, v{vQ+2*k}, v{vQ+2*k+1}")
    vB = 64
    for sx in range(4):
        for k in range(4): g(f"v_mov_b32_dpp v{vB+4*sx+k}, v{vQ+k} quad_perm:[{sx},{sx},{sx},{sx}] row_mask:0xf bank_mask:0xf")
        if sx >= 1:
            for ct in range(2):
                g(f"v_mfma_f32_16x16x32_bf16 {vr(32+4*ct,4)}, {vr(vUk+(ct*4+sx-1)*4,4)}, {vr(vB+4*(sx-1),4)}, {'0' if sx == 1 else vr(32+4*ct,4)}")
    for ct in range(2):
        g(f"v_mfma_f32_16x16x32_bf16 {vr(32+4*ct,4)}, {vr(vUk+(ct*4+3)*4,4)}, {vr(vB+12,4)}, {vr(32+4*ct,4)}")
    g(f"v_cmp_eq_u32 vcc, 1, v1\ns_mov_b32 s49, {f2u(SCALE):#x}\ns_nop 5")
    for r in range(4): g(f"v_cndmask_b32 v{32+r}, v{32+r}, v{36+r}, vcc")
    for r in range(4): g(f"v_mul_f32 v{32+r}, s49, v{32+r}")
    g("v_cvt_pk_bf16_f32 v24, v32, v33\nv_cvt_pk_bf16_f32 v25, v34, v35")
    g("s_mov_b32 exec_lo, 0x00030003\ns_mov_b32 exec_hi, 0x00030003")
    g(f"buffer_store_dwordx4 v[24:27], v15, {SWS}, s55 offen sc1\ns_mov_b64 exec, -1")
    g.stamp('qa')
    if o['QABAR']: g("s_barrier")
    vF = 0
    vXg, vGw, vXw = 96, 104, 8
    g(f"""
    s_load_dwordx2 s[32:33], s[0:1], 56
    s_mov_b32 s34, {640*3456}
    s_sub_u32 s50, s2, 128
    s_and_b32 s51, s50, 3
    s_lshr_b32 s50, s50, 2
    s_mul_i32 s53, s51, 160
    s_mul_i32 s49, {sWAVE}, 10
    s_add_u32 s53, s53, s49
    s_lshl_b32 s49, s53, 1
    buffer_load_dwordx4 {vr(vXw,4)}, v4, {SX}, s49 offen
    buffer_load_dword v{vXw+4}, v4, {SX}, s49 offen offset:16
    buffer_load_dwordx4 {vr(vXg,4)}, v7, {SX}, 0 offen
    buffer_load_dwordx4 {vr(vXg+4,4)}, v7, {SX}, 0 offen offset:1024
    buffer_load_dwordx4 {vr(vGw,4)}, v7, {SE}, 0 offen
    buffer_load_dwordx4 {vr(vGw+4,4)}, v7, {SE}, 0 offen offset:1024
    v_mul_u32_u24 v3, 3456, v6
    v_and_b32 v5, 7, v0
    v_lshl_add_u32 v3, v5, 4, v3
    s_mul_i32 s56, s53, 3456
    s_lshl_b32 s49, s50, 7
    s_add_u32 s56, s56, s49
    s_cmp_ge_u32 s50, 27
    s_cselect_b32 s57, 0x10000000, 0
    s_add_u32 s56, s56, s57
    s_waitcnt lgkmcnt(0)
    """)
    for u in range(5):
        g(f"buffer_load_dwordx4 {ar(vF+8*u,4)}, v3, {SF}, s56 offen {NT}\nbuffer_load_dwordx4 {ar(vF+8*u+4,4)}, v3, {SG}, s56 offen {NT}")
        if u < 4: g(f"s_add_u32 s56, s56, {2*3456}")
    g(f"""
    v_lshrrev_b32 v3, 3, v0
    v_bfe_u32 v5, v0, 1, 2
    v_xor_b32 v4, v2, v5
    v_lshlrev_b32 v4, 5, v4
    v_and_b32 v5, 1, v0
    v_lshl_add_u32 v4, v5, 4, v4
    v_mul_u32_u24 v28, 1280, v3
    v_add_u32 v28, v28, v4
    v_lshrrev_b32 v5, 5, v0
    v_mul_u32_u24 v5, {4*1280}, v5
    v_add_u32 v29, v28, v5
    s_lshl_b32 s58, s50, 2
    s_add_u32 s58, s58, s51
    s_mul_i32 s58, s58, {16*1280}
    s_lshl_b32 s49, {sWAVE}, 7
    s_add_u32 s58, s58, s49
    s_add_u32 s58, s58, s57
    s_lshl_b32 s59, {sH}, 2
    s_add_u32 s59, s59, {sQt}
    s_mul_i32 s59, s59, {32*1280}
    s_add_u32 s59, s59, s49
    s_cmp_ge_u32 {sWAVE}, 2
    s_cselect_b32 s60, 0x10000000, 0
    s_mul_i32 s61, {sWAVE}, 6144
    s_add_u32 s61, s61, {LWD}
    v_bfe_u32 v3, v0, 2, 2
    v_lshl_add_u32 v3, v3, 4, v2
    v_lshlrev_b32 v30, 13, v3
    v_bfe_u32 v3, v0, 1, 1
    v_bfe_u32 v4, v0, 4, 1
    v_xor_b32 v3, v3, v4
    v_lshl_add_u32 v30, v3, 5, v30
    v_and_b32 v3, 1, v0
    v_lshl_add_u32 v30, v3, 4, v30
    s_lshl_b32 s62, {sWAVE}, 20
    s_lshl_b32 s49, {sH}, 8
    s_add_u32 s62, s62, s49
    s_lshl_b32 s49, {sQt}, 6
    s_add_u32 s62, s62, s49
    s_add_u32 s63, s63, {LUV}
    s_mul_i32 s54, {sWAVE}, 12288
    """)
    dl = []
    for sx in range(4):
        for rho in range(2):
            dl.append(f"s_add_u32 m0, s63, {(sx*2+rho)*1024}\ns_add_u32 s49, s62, {(4*sx+64*rho)*8192}\nbuffer_load_dwordx4 v30, {SB}, s49 offen {NT} lds")
    for gam in range(3):
        for gp in range(2):
            dl.append(f"s_add_u32 m0, s61, {(gam*2+gp)*1024}\ns_add_u32 s49, s58, {gam*512 + gp*8*1280}\n" + ("s_add_u32 s49, s49, s60\n" if gam == 2 else "") + f"buffer_load_dwordx4 v28, {SD}, s49 offen {NT} lds")
    for gam in range(3):
        for rho in range(2):
            for gp in range(2):
                dl.append(f"s_add_u32 m0, s54, {(gam*4+rho*2+gp)*1024}\ns_add_u32 s49, s59, {gam*512 + (16*gp+4*rho)*1280}\n" + ("s_add_u32 s49, s49, s60\n" if gam == 2 else "") + f"buffer_load_dwordx4 v29, {SC}, s49 offen {NT} lds")
    N1, N2 = o['N1'], o['N2']
    g("s_waitcnt vmcnt(10)")
    for u in range(5):
        for r in range(4): g(f"v_perm_b32 v{64+4*u+r}, v{vXw+u}, v{vXw+u}, v{vSel+r}")
    g(f"v_dot2_f32_bf16 v3, v{vXg}, v{vGw}, 0")
    for k in range(1, 8): g(f"v_dot2_f32_bf16 v3, v{vXg+k}, v{vGw+k}, v3")
    g("s_nop 2")
    for sh in (8, 4, 2, 1): g(f"v_add_f32_dpp v3, v3, v3 row_ror:{sh} row_mask:0xf bank_mask:0xf\ns_nop 1")
    g("v_mov_b32 v4, v3\ns_nop 1\nv_permlane16_swap_b32 v3, v4\nv_add_f32 v3, v3, v4")
    g("v_mov_b32 v4, v3\ns_nop 1\nv_permlane32_swap_b32 v3, v4\nv_add_f32 v3, v3, v4")
    vGate = 215
    g(f"""
    v_mul_f32 v3, {f2u(-1.4426950408889634):#x}, v3
    v_exp_f32 v3, v3
    s_nop 0
    v_add_f32 v3, 1.0, v3
    v_rcp_f32 v{vGate}, v3
    s_nop 0
    v_sub_f32 v{vGate+1}, 1.0, v{vGate}
    """)
    for k in range(N1): g(dl[k])
    g.stamp('iss1')
    for k in range(10):
        u, m = k >> 1, k & 1
        g(f"s_waitcnt vmcnt({9-k+N1})")
        g(f"v_mfma_f32_16x16x32_bf16 {vr(32+4*m,4)}, {vr(64+4*u,4)}, {ar(vF+4*k,4)}, {'0' if u == 0 else vr(32+4*m,4)}")
    g(f"s_lshl_b32 s56, s50, 11\ns_add_u32 s56, s56, {FP}\ns_lshl_b32 s49, s51, 9\ns_add_u32 s53, s56, s49\ns_nop 4")
    gemv_reduce_publish(g, 32, vG, 13, 2048, 's53', vTa, vTb, vFF)
    g.stamp('fp')
    g(f"""
    v_lshrrev_b32 v3, 2, v1
    v_lshlrev_b32 v14, 9, v3
    v_lshl_add_u32 v14, v2, 4, v14
    s_lshl_b32 s49, s51, 6
    s_add_u32 s56, s56, s49
    """)
    for k in range(N1, N2): g(dl[k])
    def fpl(): g(f"buffer_load_dwordx4 v[48:51], v14, {SWS}, s56 offen sc1\nbuffer_load_dwordx4 v[52:55], v14, {SWS}, s56 offen offset:256 sc1")
    fpl()
    for k in range(N2, 26): g(dl[k])
    g.stamp('iss2')
    vTo = 192
    g(f"""
    v_bfe_u32 v3, v0, 2, 3
    v_lshlrev_b32 v4, 7, v3
    v_lshrrev_b32 v3, 1, v3
    v_lshl_add_u32 v4, v3, 5, v4
    v_and_b32 v3, 3, v0
    v_lshl_add_u32 v4, v3, 3, v4
    v_lshrrev_b32 v3, 5, v0
    v_lshl_add_u32 v4, v3, 10, v4
    """)
    for q in range(4):
        g(f"v_xor_b32 v3, {q*32}, v4\nv_add_u32 v{vTo+q}, s54, v3\nv_add_u32 v{vTo+4+q}, s61, v3")
    g(f"""
    v_lshrrev_b32 v3, 2, v0
    v_lshlrev_b32 v4, 6, v3
    v_bfe_u32 v3, v0, 4, 1
    v_lshl_add_u32 v4, v3, 5, v4
    v_and_b32 v3, 3, v0
    v_lshl_add_u32 v4, v3, 3, v4
    v_add_u32 v200, s63, v4
    v_xor_b32 v201, 32, v200
    s_mov_b32 {sSpin}, 0
    s_waitcnt vmcnt({26-N2})
    """)
    Lf, Lfok = g.label("fp"), g.label("fpok")
    g(f"{Lf}:\nv_xor_b32 v3, {sT[0]}, v48")
    for k in range(1, 8): g(f"v_bitop3_b32 v3, v3, v{48+k}, {sT[k&3]} bitop3:0xf6")
    g(f"v_and_b32 v3, 0xff, v3\nv_cmp_ne_u32 vcc, 0, v3\ns_cbranch_vccz {Lfok}")
    fpl()
    spin_check(g)
    g(f"s_waitcnt vmcnt(0)\ns_branch {Lf}\n{Lfok}:")
    g.stamp('fpok')
    assert N2 >= 14
    aD, aO, aU = 0, 24, 72
    for gam in range(3):
        for q in range(4): g(f"ds_read_b64_tr_b16 {ar(aD+(gam*4+q)*2,2)}, v{vTo+4+q} offset:{gam*2048}")
    for sx in range(4):
        for rho in range(2):
            for dt in range(2): g(f"ds_read_b64_tr_b16 {ar(aU+(dt*4+sx)*4+2*rho,2)}, v{200+dt} offset:{(sx*2+rho)*1024}")
    ror_sum(g, 48, 8)
    for k in range(4): g(f"v_cvt_pk_bf16_f32 v{32+k}, v{48+k}, v{52+k}")
    for k in range(4): g(f"v_lshlrev_b32 v{24+k}, 16, v{32+k}\nv_and_b32 v{28+k}, 0xffff0000, v{32+k}")
    c1 = -2*0.7978845608028654*1.4426950408889634
    g(f"s_mov_b32 s49, {f2u(c1*0.044715):#x}\nv_mov_b32 v3, {f2u(c1):#x}")
    for k in range(4): g(f"v_mul_f32 v{32+k}, v{24+k}, v{24+k}")
    for k in range(4): g(f"v_fma_f32 v{32+k}, v{32+k}, s49, v3")
    for k in range(4): g(f"v_mul_f32 v{32+k}, v{32+k}, v{24+k}")
    for k in range(4): g(f"v_exp_f32 v{32+k}, v{32+k}")
    g("s_nop 0")
    for k in range(4): g(f"v_add_f32 v{32+k}, 1.0, v{32+k}")
    for k in range(4): g(f"v_rcp_f32 v{32+k}, v{32+k}")
    g("s_nop 0")
    for k in range(4): g(f"v_mul_f32 v{32+k}, v{32+k}, v{24+k}")
    for k in range(4): g(f"v_cvt_pk_bf16_f32 v{32+k}, v{32+k}, v{32+k}")
    for k in range(4): g(f"v_and_b32 v{32+k}, 0xffff0000, v{32+k}\nv_mul_f32 v{32+k}, v{32+k}, v{28+k}")
    g("v_cvt_pk_bf16_f32 v24, v32, v33\nv_cvt_pk_bf16_f32 v25, v34, v35")
    for gam in range(3):
        g(f"v_cmp_eq_u32 vcc, {4*gam}, v1\ns_nop 1\nv_cndmask_b32 v{26+2*gam}, 0, v24, vcc\nv_cndmask_b32 v{27+2*gam}, 0, v25, vcc")
    g("s_waitcnt lgkmcnt(0)")
    vOa = 176
    for gam in range(3):
        for q in range(4):
            g(f"v_mfma_f32_16x16x16_bf16 {vr(vOa+4*q,4)}, {vr(26+2*gam,2)}, {ar(aD+(gam*4+q)*2,2)}, {'0' if gam == 0 else vr(vOa+4*q,4)}")
    g(f"""
    v_lshrrev_b32 v3, 5, v0
    v_mul_u32_u24 v4, {XPS}, v3
    v_and_b32 v5, 31, v0
    v_xor_b32 v5, v5, v3
    v_lshlrev_b32 v5, 4, v5
    v_add_u32 v20, v4, v5
    """)
    for j in range(1, 4): g(f"v_xor_b32 v3, {64*j}, v5\nv_add_u32 v{20+j}, v4, v3")
    g(f"""
    v_and_b32 v3, 7, v0
    v_mul_u32_u24 v15, {XPS}, v3
    v_lshlrev_b32 v4, 9, v3
    v_bfe_u32 v5, v0, 1, 2
    v_lshlrev_b32 v5, 2, v5
    v_and_b32 v3, 1, v0
    v_or_b32 v5, v5, v3
    v_bfe_u32 v3, v0, 3, 1
    v_lshlrev_b32 v6, 4, v3
    v_lshl_add_u32 v6, v2, 1, v6
    v_xor_b32 v5, v5, v6
    v_lshl_add_u32 v4, v5, 4, v4
    s_lshl_b32 s57, {sWAVE}, 13
    s_add_u32 s57, s57, {LXP}
    v_add_u32 v204, s57, v4
    v_xor_b32 v205, 16, v204
    v_xor_b32 v206, 128, v204
    v_xor_b32 v207, 144, v204
    s_mul_i32 s54, {sH}, {8*XPS}
    s_add_u32 s54, s54, {XP}
    s_lshl_b32 s49, {sWAVE}, 9
    s_add_u32 s55, s54, s49
    """)
    for k in range(16): g(f"v_mul_f32 v{vOa+k}, v{vGate+1}, v{vOa+k}")
    g(f"""
    s_lshl_b32 s49, {sWAVE}, 7
    s_add_u32 s49, s49, {LCX}
    v_lshlrev_b32 v40, 6, v3
    v_lshl_add_u32 v40, v2, 4, v40
    v_add_u32 v40, s49, v40
    v_and_b32 v3, 3, v0
    v_lshlrev_b32 v41, 7, v3
    v_lshl_add_u32 v41, v2, 5, v41
    v_add_u32 v41, {LCX}, v41
    v_lshrrev_b32 v42, 2, v1
    v_lshlrev_b32 v43, 10, v2
    v_lshl_add_u32 v43, v1, 4, v43
    s_lshl_b32 s56, {sXg}, 4
    s_add_u32 s56, s56, {sIdx}
    s_mul_i32 s56, s56, 2560
    s_lshl_b32 s49, {sWAVE}, 8
    s_add_u32 s56, s56, s49
    s_add_u32 s56, s56, {OP}
    v_cmp_eq_u32 s[50:51], 0, v42
    v_cmp_eq_u32 s[52:53], 1, v42
    v_cmp_eq_u32 s[58:59], 2, v42
    v_cmp_gt_u32 s[62:63], 8, v1
    s_cmp_ge_u32 {sWAVE}, 2
    s_cselect_b32 s61, 0, 0xffff
    s_waitcnt vmcnt(0)
    """)
    g.stamp('strm')
    for gam in range(3):
        for rho in range(2):
            for q in range(4): g(f"ds_read_b64_tr_b16 {ar(aO+(gam*4+q)*4+2*rho,2)}, v{vTo+q} offset:{gam*4096+rho*2048}")
    g(f"s_mov_b32 {sSpin}, 0")
    g.stamp('rdy')
    vD = 64
    Lx = g.label("xd")
    g(f"{Lx}:")
    for j in range(4):
        g(f"s_add_u32 m0, s57, {j*1024}\ns_add_u32 s49, s55, {2*j*XPS}\nbuffer_load_dwordx4 v{20+j}, {SWS}, s49 offen sc1 lds")
    g(f"buffer_load_dwordx3 v[24:26], v15, {SWS}, s54 offen offset:2048 sc1")
    spin_check(g)
    g("s_waitcnt vmcnt(1)")
    for k in range(4): g(f"ds_read_b128 {vr(vD+4*k,4)}, v{204+k}")
    g(f"s_waitcnt vmcnt(0)\nv_cmp_ne_u32 vcc, {sT[0]}, v26\nv_mov_b32 v27, v24\ns_waitcnt lgkmcnt(3)\ns_cbranch_vccnz {Lx}")
    dppm = ["quad_perm:[1,0,3,2]", "quad_perm:[2,3,0,1]", "row_half_mirror"]
    for k in range(16):
        if k % 4 == 0 and k: g(f"s_waitcnt lgkmcnt({3-k//4})")
        if k == 0: g(f"v_xor_b32 v3, {sT[0]}, v{vD}")
        else: g(f"v_bitop3_b32 v3, v3, v{vD+k}, {sT[k&3]} bitop3:0xf6")
        if k in (2, 5, 8): g(f"v_max_f32_dpp v27, v27, v27 {dppm[(k-2)//3]} row_mask:0xf bank_mask:0xf")
        if k == 10: g("v_sub_f32 v24, v24, v27")
        if k == 11: g("v_exp_f32 v24, v24")
    g(f"v_and_b32 v3, 0xff, v3\nv_cmp_ne_u32 vcc, 0, v3\nv_mul_f32 v25, v24, v25\ns_cbranch_vccnz {Lx}")
    g.stamp('xd')
    for k in range(8): g(f"v_cvt_pk_bf16_f32 v{80+k}, v{vD+2*k}, v{vD+2*k+1}")
    fl = [f"v_add_f32_dpp v25, v25, v25 {dppm[0]} row_mask:0xf bank_mask:0xf", f"v_mul_f32 v24, v{vGate}, v24",
          f"v_add_f32_dpp v25, v25, v25 {dppm[1]} row_mask:0xf bank_mask:0xf", "s_nop 0",
          f"v_add_f32_dpp v25, v25, v25 {dppm[2]} row_mask:0xf bank_mask:0xf", "v_rcp_f32 v25, v25", "s_nop 0", "v_mul_f32 v203, v24, v25"]
    i = 0
    for sx in range(2):
        for hi in range(2):
            for dt in range(2):
                acc = 96 + 8*hi + 4*dt
                g(f"v_mfma_f32_16x16x32_bf16 {vr(acc,4)}, {ar(aU+(dt*4+sx+2*hi)*4,4)}, {vr(80+4*sx,4)}, {'0' if sx == 0 else vr(acc,4)}")
                g(fl[i]); i += 1
    g("s_nop 4")
    for r in range(4): g(f"v_cndmask_b32 v{28+r}, v{104+r}, v{100+r}, s[62:63]")
    for r in range(4): g(f"v_cndmask_b32 v{24+r}, v{108+r}, v{96+r}, s[62:63]")
    for r in range(4): g(f"v_add_f32_dpp v{24+r}, v{28+r}, v{24+r} row_ror:8 row_mask:0xf bank_mask:0xf")
    for r in range(4): g(f"v_mul_f32 v{24+r}, v203, v{24+r}")
    quad_sum(g, 24, 4)
    for r in range(4): g(f"v_add_f32_dpp v{24+r}, v{24+r}, v{24+r} row_half_mirror row_mask:0xf bank_mask:0xf")
    g("ds_write_b128 v40, v[24:27]\ns_waitcnt lgkmcnt(0)\ns_barrier")
    g("ds_read_b128 v[24:27], v41\nds_read_b128 v[28:31], v41 offset:16\ns_waitcnt lgkmcnt(1)")
    for k in range(4):
        if k == 2: g("s_waitcnt lgkmcnt(0)")
        g(f"v_cvt_pk_bf16_f32 v{32+k}, v{24+2*k}, v{25+2*k}")
    msk = ['s[50:51]', 's[52:53]', 's[58:59]']
    for k in range(4): g(f"v_cndmask_b32 v{112+k}, 0, v{32+k}, {msk[0]}")
    g(f"v_cndmask_b32 v116, 0, v32, {msk[1]}\nv_cndmask_b32 v117, 0, v33, {msk[1]}")
    fl = [f"v_cndmask_b32 v118, 0, v34, {msk[1]}", f"v_cndmask_b32 v119, 0, v35, {msk[1]}"] + [f"v_cndmask_b32 v{120+k}, 0, v{32+k}, {msk[2]}" for k in range(4)]
    i = 0
    for gam in range(3):
        for q in range(4):
            g(f"v_mfma_f32_16x16x32_bf16 {vr(vOa+4*q,4)}, {vr(112+4*gam,4)}, {ar(aO+(gam*4+q)*4,4)}, {vr(vOa+4*q,4)}")
            if i < len(fl): g(fl[i])
            i += 1
    g("s_nop 4")
    for q in range(4):
        g(f"v_pk_add_f32 {vr(vOa+4*q,2)}, {vr(vOa+4*q,2)}, {vr(vOa+4*q+2,2)}")
    for q in range(4): g(f"v_add_f32 v{24+q}, v{vOa+4*q}, v{vOa+4*q+1}")
    for q in range(4): g(f"v_bfi_b32 v{24+q}, v{vFF}, {sT[q]}, v{24+q}")
    g(f"s_mov_b32 exec_hi, s61\nbuffer_store_dwordx4 v[24:27], v43, {SWS}, s56 offen sc1")
    g.stamp('op')

def build(**opt):
    g = G(**opt)
    g.o.append(HEADER.rstrip('\n'))
    g.o.append("; @launch grid=(256,1,1) block=(256,1,1) lds=163840")
    g.o.append('.amdgcn_target "amdgcn-amd-amdhsa--gfx950"')
    g.o.append(f".text\n.globl {KN}\n.p2align 8\n.type {KN},@function\n{KN}:")
    g.stamp('st')
    g(f"""
    v_lshrrev_b32 v1, 6, v0
    s_cmp_ge_u32 s2, 256
    s_cbranch_scc1 L_end
    v_readfirstlane_b32 {sWAVE}, v1
    v_and_b32 v0, 63, v0
    s_cmp_ge_u32 s2, 128
    s_cbranch_scc1 L_wgt
    """)
    attention(g)
    weight(g)
    g("L_fin:")
    if g.opt.get('PADTO'):
        g(f"""
        s_or_b32 s49, s2, {sWAVE}
        s_cmp_lg_u32 s49, 0
        s_cbranch_scc1 L_padend
        L_pad:
        s_memrealtime s[98:99]
        s_waitcnt lgkmcnt(0)
        s_sub_u32 s49, s98, s64
        s_cmp_lt_u32 s49, {g.opt['PADTO']}
        s_cbranch_scc1 L_pad
        L_padend:
        """)
    if g.opt['STAMPS']:
        g("s_memrealtime s[100:101]\ns_waitcnt lgkmcnt(0)\ns_mov_b64 exec, 1")
        g(f"s_lshl_b32 s49, s2, 2\ns_add_u32 s49, s49, {sWAVE}\ns_lshl_b32 s49, s49, 7\ns_add_u32 s49, s49, {STAMP}\nv_mov_b32 v1, 0")
        g.o.append("; STAMPS att " + " ".join(g.names['att']))
        g.o.append("; STAMPS wgt " + " ".join(g.names['wgt']))
        for q in range(5):
            for k in range(4):
                idx = 4*q+k
                g(f"v_mov_b32 v{4+k}, s{64+2*idx}" if idx <= 18 else f"v_mov_b32 v{4+k}, {sSpin}")
            g(f"buffer_store_dwordx4 v[4:7], v1, {SWS}, s49 offen offset:{16*q}\ns_nop 1")
    if g.opt.get('DBG'):
        wg = g.opt['DBG'] - 1
        g(f"""
        s_cmp_lg_u32 s2, {wg}
        s_cbranch_scc1 L_end
        s_cmp_lg_u32 {sWAVE}, 0
        s_cbranch_scc1 L_end
        s_load_dwordx2 s[4:5], s[0:1], 96
        s_mov_b32 s6, 256
        s_mov_b32 s7, 0x20000
        s_waitcnt lgkmcnt(0)
        """)
        for q in range(4):
            for k in range(4):
                idx = 4*q+k+1
                if idx == 16: idx = 18
                g(f"s_sub_u32 s49, s{64+2*idx}, s64\nv_mov_b32 v{4+k}, s49")
            g(f"buffer_store_dwordx4 v[4:7], v1, s[4:7], 0 offen offset:{16*q}\ns_nop 1")
    g("L_end:\ns_endpgm")
    g.o.append(f""".section .rodata,"a"
.p2align 6
.amdhsa_kernel {KN}
  .amdhsa_next_free_vgpr 512
  .amdhsa_next_free_sgpr 102
  .amdhsa_accum_offset 256
  .amdhsa_group_segment_fixed_size 0
  .amdhsa_kernarg_size 112
  .amdhsa_user_sgpr_count 2
  .amdhsa_user_sgpr_kernarg_segment_ptr 1
  .amdhsa_system_sgpr_workgroup_id_x 1
  .amdhsa_float_denorm_mode_32 3
.end_amdhsa_kernel""")
    return g.text()

if __name__ == '__main__':
    out = sys.argv[1]
    opt = {}
    for a in sys.argv[2:]:
        k, v = a.split('=')
        try: v = int(v, 0)
        except ValueError: pass
        opt[k] = v
    t = build(**opt)
    open(out, 'w').write(t)
    import hazard
    for p in hazard.check(t): print("HAZARD", p)
```

```python
import sys, struct
KN = "gated_mix__compressed_kv_cla__geglu_ffn__decode_kernel"
HEADER = open('gated_mix__compressed_kv_cla__geglu_ffn__decode.s.ref').read().split('; Override launch')[0]

EPOCH = 0
XC   = 0x1000
FLG  = 0x2000
QP   = 0x10000
QA   = 0x20000
ML   = 0x30000
FP   = 0x40000
OP   = 0x50000
XP   = 0xA0000
XPS  = 2176
PART = 0x200000
STAMP = 0x600000
WSSZ = 0x700000
SPIN = 1 << 17
QB = 131072
SCALE = 0.08838834764831845 * 1.4426950408889634
DPP = "row_mask:0xf bank_mask:0xf"

def f2u(f): return struct.unpack('<I', struct.pack('<f', f))[0]

class G:
    def __init__(self, **opt):
        self.o = []
        self.opt = dict(WSB=0, LOCAL=1, PRETOUCH=1, STAMPS=0, NT='nt', PTF='', WIN=28, WQNT='nt', UKNT='nt', HMAP='str',
                        PF1=1, PF1W=1, PF2W=0, NS=5, LA=2, XH=4, NLOC=24, FW=10, N1=4, N2=18, AH=0)
        self.opt.update(opt)
        self.names = {'att': [], 'wgt': []}; self.role = 'att'
        self.lab = 0
        self.tailcode = []
    def __call__(self, s):
        for l in s.strip('\n').split('\n'):
            l = l.strip()
            if l: self.o.append(l if l.endswith(':') else '    ' + l)
    def label(self, p):
        self.lab += 1
        return f"L_{p}_{self.lab}"
    def stamp(self, name):
        if self.opt['STAMPS']:
            L = self.names[self.role]
            if name not in L: L.append(name)
            k = L.index(name)
            assert k < 18
            self(f"{'s_memtime' if self.opt.get('CLK') else 's_memrealtime'} s[{64+2*k}:{65+2*k}]")
    def text(self): return '\n'.join(self.o) + '\n'

def vr(b, n=1): return f"v{b}" if n == 1 else f"v[{b}:{b+n-1}]"
def ar(b, n=1): return f"a{b}" if n == 1 else f"a[{b}:{b+n-1}]"

sWAVE = 's3'
SX, SA, SB, SC, SWS, SD, SE, SF, SG = 's[4:7]', 's[8:11]', 's[12:15]', 's[16:19]', 's[20:23]', 's[24:27]', 's[28:31]', 's[32:35]', 's[36:39]'
sT = ['s40', 's41', 's42', 's43']
sXg, sIdx, sH, sQt = 's44', 's45', 's46', 's47'
sSpin = 's48'

def srd_tail(g, base, size):
    g(f"s_mov_b32 s{base+2}, {size}\ns_mov_b32 s{base+3}, 0x20000")
def common_epoch(g):
    if g.opt['WSB']:
        g(f"s_add_u32 s20, s20, {g.opt['WSB']}\ns_addc_u32 s21, s21, 0")
    g(f"s_load_dword s40, s[20:21], {EPOCH}")
def epoch_finish(g):
    g("s_waitcnt lgkmcnt(0)")
    g("s_add_u32 s40, s40, 0x01010101\ns_lshr_b32 s41, s40, 8\ns_lshr_b32 s42, s40, 16\ns_lshr_b32 s43, s40, 24")
def spin_check(g):
    g(f"s_add_u32 {sSpin}, {sSpin}, 1\ns_cmp_gt_u32 {sSpin}, {SPIN}\ns_cbranch_scc1 L_end")
def head_id(g):
    if g.opt['HMAP'] == 'adj':
        g(f"s_lshr_b32 s49, {sIdx}, 2\ns_lshl_b32 {sH}, {sXg}, 2\ns_add_u32 {sH}, {sH}, s49")
    else:
        g(f"s_lshr_b32 s49, {sIdx}, 2\ns_lshl_b32 {sH}, s49, 3\ns_add_u32 {sH}, {sH}, {sXg}")
    g(f"s_and_b32 {sQt}, {sIdx}, 3")
def dual_store(g, stores):
    if not g.opt['LOCAL']:
        g("\n".join(s + " sc1" for s in stores.split("\n"))); return
    a, b = g.label("ds"), g.label("de")
    g(f"s_cbranch_scc0 {a}")
    g(stores)
    g(f"{b}:")
    def far():
        g(f"{a}:")
        g("\n".join(s + " sc1" for s in stores.split("\n")))
        g(f"s_branch {b}")
    g.tailcode.append(far)
def quad_sum(g, base, n):
    for k in range(n): g(f"v_add_f32_dpp v{base+k}, v{base+k}, v{base+k} quad_perm:[1,0,3,2] {DPP}")
    for k in range(n): g(f"v_add_f32_dpp v{base+k}, v{base+k}, v{base+k} quad_perm:[2,3,0,1] {DPP}")
def ror_sum(g, base, n):
    for sh in (4, 8):
        for k in range(n): g(f"v_add_f32_dpp v{base+k}, v{base+k}, v{base+k} row_ror:{sh} {DPP}")

class Pend:
    def __init__(self, g, cnt, cap): self.g, self.cnt, self.cap, self.q = g, cnt, cap, []
    def add(self, tag, n=1): self.q += [tag]*n
    def wait(self, tag):
        if tag in self.q:
            idx = max(i for i, t in enumerate(self.q) if t == tag)
            n = len(self.q) - 1 - idx
            self.g(f"s_waitcnt {self.cnt}({min(n, self.cap)})")
            del self.q[:len(self.q) - min(n, self.cap)]
    def clear(self): self.q = []

vAa, vQa, vQd, vTr, vMask, vFF, vE = 36, 240, 200, 192, 16, 214, 248

def att_setup(g):
    g(f"""
    v_lshlrev_b32 v7, 4, v0
    v_and_b32 v220, 15, v0
    v_lshlrev_b32 v221, 2, v220
    v_mov_b32 v{vFF}, 0xff
    v_mov_b32 v11, 0
    v_and_b32 v3, 6, v0
    v_bfe_u32 v4, v0, 3, 1
    v_or_b32 v3, v3, v4
    v_lshrrev_b32 v4, 5, v0
    v_xor_b32 v3, v3, v4
    v_lshlrev_b32 v3, 4, v3
    v_and_b32 v5, 7, v0
    v_lshl_add_u32 v3, v5, 7, v3
    v_bfe_u32 v5, v0, 3, 2
    v_lshl_add_u32 v3, v5, 13, v3
    v_add_u32 v{vAa}, s54, v3
    """)
    for s in range(1, 4): g(f"v_xor_b32 v{vAa+s}, {s*32}, v{vAa}")
    g(f"""
    v_xor_b32 v3, v220, v4
    v_lshlrev_b32 v3, 4, v3
    v_and_b32 v5, 31, v0
    v_lshl_add_u32 v3, v5, 10, v3
    v_add_u32 v{vQa}, {QB}, v3
    s_and_b32 s49, {sWAVE}, 1
    s_lshl_b32 s49, s49, 7
    v_xor_b32 v{vQd}, s49, v7
    """)
    for s in range(1, 8): g(f"v_xor_b32 v{vQa+s}, {s*32}, v{vQa}\nv_xor_b32 v{vQd+s}, {s*16}, v{vQd}")
    g(f"""
    v_bfe_u32 v3, v0, 2, 3
    v_and_b32 v4, 6, v3
    v_bfe_u32 v5, v0, 1, 1
    v_xor_b32 v4, v4, v5
    v_lshlrev_b32 v4, 4, v4
    v_lshl_add_u32 v4, v3, 7, v4
    v_and_b32 v5, 1, v0
    v_lshl_add_u32 v4, v5, 3, v4
    v_lshrrev_b32 v5, 5, v0
    v_lshl_add_u32 v4, v5, 14, v4
    s_lshl_b32 s49, {sWAVE}, 5
    v_xor_b32 v{vTr}, s49, v4
    v_xor_b32 v{vTr+1}, 16, v{vTr}
    v_add_u32 v{vTr+1}, 8192, v{vTr+1}
    v_add_u32 v{vTr+2}, 0x10000, v{vTr}
    v_add_u32 v{vTr+3}, 0x10000, v{vTr+1}
    v_and_b32 v3, 1, v0
    v_lshlrev_b32 v3, 4, v3
    v_mov_b32 v4, 0xffff
    v_lshlrev_b32 v3, v3, v4
    v_bfe_u32 v4, v0, 1, 3
    """)
    for k in range(8):
        g(f"v_cmp_eq_u32 vcc, {k}, v4\ns_nop 1\nv_cndmask_b32 v{vMask+k}, 0, v3, vcc")
    g(f"""
    v_and_b32 v3, 31, v0
    v_lshlrev_b32 v223, 5, v3
    v_add_u32 v223, {QB}, v223
    v_lshrrev_b32 v4, 5, v0
    v_lshl_add_u32 v222, v4, 2, v223
    s_lshl_b32 s49, {sWAVE}, 3
    v_add_u32 v222, s49, v222
    v_lshlrev_b32 v226, 4, v220
    v_lshl_add_u32 v226, v4, 8, v226
    v_mul_u32_u24 v6, {8*XPS}, v4
    v_lshlrev_b32 v13, 3, v4
    v_bfe_u32 v4, v0, 4, 1
    v_lshl_add_u32 v226, v4, 10, v226
    s_lshl_b32 s49, {sWAVE}, 11
    s_add_u32 s49, s49, {QB+2048}
    v_add_u32 v226, s49, v226
    v_add_u32 v227, {QB+2048}, v7
    v_lshlrev_b32 v228, 4, v3
    v_lshl_add_u32 v6, v220, 5, v6
    v_lshl_add_u32 v6, v4, 4, v6
    s_lshl_b32 s49, {sWAVE}, 9
    v_add_u32 v6, s49, v6
    v_lshrrev_b32 v4, 4, v0
    v_lshlrev_b32 v229, 4, v220
    v_lshl_add_u32 v230, v4, 15, v229
    v_lshl_add_u32 v229, v4, 12, v229
    v_bfe_u32 v3, v0, 3, 1
    v_mul_u32_u24 v12, {8*XPS}, v3
    v_lshlrev_b32 v3, 4, v3
    v_lshl_add_u32 v231, v4, 9, v3
    v_lshlrev_b32 v10, 3, v220
    v_lshlrev_b32 v224, 9, v220
    s_lshl_b32 s49, {sWAVE}, 13
    s_add_u32 s34, s49, {QA}
    s_add_u32 s35, s49, {QB}
    s_lshl_b32 s58, {sXg}, 19
    s_lshl_b32 s49, {sIdx}, 11
    s_add_u32 s58, s58, s49
    s_lshl_b32 s49, {sWAVE}, 8
    s_add_u32 s49, s49, {PART}
    s_add_u32 s58, s58, s49
    s_lshl_b32 s4, s50, 15
    s_add_u32 s4, s4, s49
    s_add_u32 s5, s4, 16384
    s_lshl_b32 s59, {sXg}, 13
    s_lshl_b32 s49, {sIdx}, 5
    s_add_u32 s59, s59, s49
    s_add_u32 s59, s59, {ML}
    s_add_u32 s36, s59, 4096
    s_lshl_b32 s60, {sXg}, 8
    s_lshl_b32 s49, {sWAVE}, 6
    s_add_u32 s60, s60, s49
    s_add_u32 s60, s60, {FLG}
    s_lshl_b32 s6, {sIdx}, 2
    s_add_u32 s6, s6, s60
    s_lshl_b32 s7, {sIdx}, 4
    s_add_u32 s7, s7, {sXg}
    s_mul_i32 s7, s7, {XPS}
    s_add_u32 s7, s7, {XP}
    s_lshl_b32 s55, {sXg}, 7
    s_add_u32 s55, s55, {XC}
    s_lshl_b32 s49, {sWAVE}, 3
    s_lshl_b32 s62, 0xff, s49
    s_mov_b32 s63, 0
    s_lshl_b32 s32, s50, 9
    s_add_u32 s32, s32, {ML}
    s_mov_b32 s37, {f2u(SCALE):#x}
    """)
    epoch_finish(g)
    g(f"v_mov_b32 v234, {sT[0]}\nv_mov_b32 v235, {sT[0]}\nv_lshrrev_b32 v3, v13, v234")
    for par in range(2):
        for j in range(4):
            g(f"v_bfe_u32 v4, v3, {16*par+2*j}, 2\nv_lshl_or_b32 v{vE+4*par+j}, v4, 15, v4")

def attention(g):
    o = g.opt
    NT = o['NT']
    g("L_att:")
    g("""
    s_load_dwordx2 s[12:13], s[0:1], 16
    s_load_dwordx2 s[24:25], s[0:1], 24
    s_load_dwordx2 s[8:9], s[0:1], 8
    s_load_dwordx2 s[20:21], s[0:1], 104
    s_load_dwordx2 s[16:17], s[0:1], 88
    s_load_dwordx2 s[28:29], s[0:1], 40
    """)
    srd_tail(g, 12, 640*8192); srd_tail(g, 24, 512*8192); srd_tail(g, 8, 16384*1024); srd_tail(g, 20, WSSZ); srd_tail(g, 16, 1280); srd_tail(g, 28, 4096*1280)
    vDma = 14
    g(f"s_and_b32 {sXg}, s2, 7\ns_lshr_b32 {sIdx}, s2, 3")
    head_id(g)
    g(f"""
    s_lshl_b32 s50, {sXg}, 4
    s_add_u32 s50, s50, {sIdx}
    v_bfe_u32 v3, v0, 2, 2
    v_mul_u32_u24 v2, 40, v3
    v_bfe_u32 v3, v0, 1, 1
    v_add_u32 v2, v2, v3
    v_lshlrev_b32 v2, 13, v2
    v_and_b32 v3, 1, v0
    v_lshl_add_u32 v2, v3, 7, v2
    v_lshrrev_b32 v1, 1, v0
    v_lshlrev_b32 v1, 13, v1
    v_lshl_add_u32 v1, v3, 7, v1
    s_mul_i32 s51, {sQt}, {160*8192}
    s_lshl_b32 s52, {sWAVE}, 14
    s_add_u32 s51, s51, s52
    s_lshl_b32 s49, {sH}, 8
    s_add_u32 s51, s51, s49
    s_add_u32 s51, s51, {32*8192}
    s_lshl_b32 s52, {sQt}, 2
    s_add_u32 s52, s52, {sWAVE}
    s_lshl_b32 s52, s52, 18
    s_add_u32 s52, s52, s49
    v_lshrrev_b32 v3, 3, v0
    v_and_b32 v4, 6, v3
    v_and_b32 v5, 7, v0
    v_xor_b32 v4, v4, v5
    v_lshlrev_b32 v4, 4, v4
    v_lshl_add_u32 v{vDma}, v3, 10, v4
    v_xor_b32 v{vDma+1}, 16, v{vDma}
    s_lshl_b32 s53, s50, 17
    s_lshl_b32 s54, {sWAVE}, 15
    s_add_u32 s53, s53, s54
    s_waitcnt lgkmcnt(0)
    """)
    g.stamp('karg')
    if o['PF1']:
        g(f"s_mov_b64 exec, 0xffff\nbuffer_load_dword v8, v2, {SB}, s51 offen\ns_mov_b64 exec, -1")
    pfuk = f"buffer_load_dword v9, v1, {SD}, s52 offen"
    if not o['PF1W']: g(pfuk)
    common_epoch(g)
    att_setup(g)
    if o['PF1W']: g("s_waitcnt vmcnt(0)\n" + pfuk)
    if o['PF2W']: g("s_waitcnt vmcnt(0)")
    if o['LOCAL']:
        sk = g.label("xc")
        g(f"""
        s_getreg_b32 s56, hwreg(HW_REG_XCC_ID, 0, 4)
        s_cmp_lg_u32 {sWAVE}, 1
        s_cbranch_scc1 {sk}
        v_mov_b32 v4, s56
        v_mov_b32 v5, {sT[0]}
        s_lshl_b32 s49, s50, 3
        s_add_u32 s49, s49, {XC}
        s_mov_b64 exec, 1
        buffer_store_dwordx2 v[4:5], v11, {SWS}, s49 offen sc1
        s_mov_b64 exec, -1
        {sk}:
        """)
    g.stamp('go')
    def qdma():
        for i in range(8):
            if i & 3 == 0: g(f"s_add_u32 m0, s35, {i*1024}\ns_add_u32 s49, s34, {i*1024}")
            g(f"buffer_load_dwordx4 v{vQd+i}, {SWS}, s49 offen offset:{(i&3)*1024} sc1 lds")
    def rdA(cb):
        for s in range(4*cb, 4*cb+4): g(f"ds_read_b128 {ar(4*s,4)}, v{vAa+(s&3)} offset:{cb*1024}")
    def rdT1(ct, t, rho):
        g(f"ds_read_b64_tr_b16 {ar(128+(ct*4+t)*4+2*rho,2)}, v{vTr+(t>>1)*2+rho} offset:{(t&1)*32768+ct*1024}")
    NS, LA = o['NS'], o['LA']
    vm = Pend(g, 'vmcnt', 63)
    done = 0
    def qfetch():
        g.stamp('pre')
        if o['LOCAL']:
            g(f"""
            buffer_load_dword v216, v224, {SWS}, s59 offen sc1
            buffer_load_dword v217, v221, {SWS}, s60 offen sc1
            buffer_load_dwordx2 v[218:219], v10, {SWS}, s55 offen sc1
            """)
            vm.add('x', 3)
        qdma(); vm.add('Q', 8)
    for cb in range(8):
        if cb == NS: qfetch()
        for ro in range(4):
            g(f"s_add_u32 m0, s54, {ro*8192+cb*1024}\ns_add_u32 s49, s53, {ro*8192+cb*128}")
            g(f"buffer_load_dwordx4 v{vDma+(ro&1)}, {SA}, s49 offen {NT} lds")
            vm.add(('C', cb))
        if cb >= LA and cb - LA < NS - 1:
            vm.wait(('C', cb-LA)); rdA(cb-LA); g("s_barrier")
            for t in range(4):
                for rho in range(2): rdT1(cb-LA, t, rho)
            done = cb-LA+1
    if NS == 8: qfetch()
    g.stamp('iss')
    late = list(range(done, NS))
    for cb in late:
        vm.wait(('C', cb)); rdA(cb)
    g(f"s_mov_b32 {sSpin}, 0")
    vm.wait('Q')
    if o['LOCAL']:
        g(f"v_xor_b32 v3, {sT[0]}, v219\nv_bitop3_b32 v3, v3, v218, s56 bitop3:0xf6\nv_cmp_ne_u32 s[38:39], 0, v3")
    Lqk, Lqr = g.label("qk"), g.label("qr")
    g(f"{Lqk}:\ns_barrier")
    g.stamp('qok')
    if o['AH']:
        pass
    vS, vQr = 48, 128
    lg = Pend(g, 'lgkmcnt', 15)
    def rdQ(s): g(f"ds_read_b128 {vr(vQr+4*(s%16),4)}, v{vQa+(s&7)} offset:{(s>>3)*256}"); lg.add(('Q', s))
    def mm(s): g(f"v_mfma_f32_32x32x16_bf16 {vr(vS,16)}, {ar(4*s,4)}, {vr(vQr+4*(s%16),4)}, {'0' if s == 0 else vr(vS,16)}")
    def chk(s):
        for j in range(4):
            if s == 0 and j == 0: g(f"v_xor_b32 v3, v{vQr}, v{vE}")
            else: g(f"v_bitop3_b32 v3, v3, v{vQr+4*(s%16)+j}, v{vE+4*(s&1)+j} bitop3:0xf6")
    D = 4
    tl = [(ct, t, rho) for ct in late for t in range(4) for rho in range(2)]
    n0 = 4*NS
    assert 32 - n0 <= 12
    qn = 0
    while qn < D: rdQ(qn); qn += 1
    for s in range(n0):
        lg.wait(('Q', s)); mm(s); chk(s)
        while qn < min(32, s + D + max(1, (32 - n0) - (n0 - 1 - s))): rdQ(qn); qn += 1
        for _ in range(2):
            if tl: x = tl.pop(0); rdT1(*x); lg.add(('T',) + x)
    while qn < 32: rdQ(qn); qn += 1
    assert not tl
    for s in range(n0, 32):
        lg.wait(('Q', s)); chk(s)
    g(f"v_and_b32 v3, 0x10001, v3\nv_cmp_ne_u32 vcc, 0, v3\ns_barrier\ns_cbranch_vccnz {Lqr}")
    def qretry():
        g(f"{Lqr}:\ns_waitcnt lgkmcnt(0)\nv_and_b32 v4, 3, v0\nv_lshlrev_b32 v4, 3, v4\nv_lshrrev_b32 v4, v4, v234")
        for j in range(4): g(f"v_bfe_u32 v5, v4, {2*j}, 2\nv_lshl_or_b32 v{24+j}, v5, 15, v5")
        g(f"{Lqr}_l:")
        qdma()
        spin_check(g)
        g("s_waitcnt vmcnt(0)")
        for i in range(8): g(f"v_add_u32 v4, s35, v{vQd+i}\nds_read_b128 {vr(vQr+4*i,4)}, v4 offset:{i*1024}")
        g("s_waitcnt lgkmcnt(0)\nv_mov_b32 v3, 0")
        for i in range(32): g(f"v_bitop3_b32 v3, v3, v{vQr+i}, v{24+(i&3)} bitop3:0xf6")
        g(f"v_and_b32 v3, 0x10001, v3\nv_cmp_ne_u32 vcc, 0, v3\ns_cbranch_vccnz {Lqr}_l\ns_branch {Lqk}")
    g.tailcode.append(qretry)
    g.stamp('qk0')
    for cb in range(NS, 8):
        vm.wait(('C', cb)); rdA(cb)
        for s in range(4*cb, 4*cb+4):
            g(f"s_waitcnt lgkmcnt({4*cb+3-s})"); mm(s)
    tailT = list(range(NS, 8))
    g.stamp('qk')
    g("s_nop 11" if NS < 8 else "s_nop 3")
    g(f"v_max3_f32 v3, v{vS}, v{vS+1}, v{vS+2}\nv_max3_f32 v4, v{vS+3}, v{vS+4}, v{vS+5}")
    for k in range(6, 14, 4): g(f"v_max3_f32 v3, v3, v{vS+k}, v{vS+k+1}\nv_max3_f32 v4, v4, v{vS+k+2}, v{vS+k+3}")
    g(f"v_max3_f32 v3, v3, v{vS+14}, v{vS+15}\nv_max_f32 v3, v3, v4")
    g("ds_write_b32 v222, v3\ns_waitcnt lgkmcnt(0)\ns_barrier")
    g.stamp('mx')
    g("ds_read_b128 v[24:27], v223\nds_read_b128 v[28:31], v223 offset:16")
    vM = 232
    for k in range(16): g(f"v_mul_f32 v{vS+k}, s37, v{vS+k}")
    g(f"s_waitcnt lgkmcnt(1)\nv_max3_f32 v{vM}, v24, v25, v26\ns_waitcnt lgkmcnt(0)\nv_max3_f32 v3, v27, v28, v29\nv_max3_f32 v{vM}, v{vM}, v30, v31\nv_max_f32 v{vM}, v{vM}, v3\nv_mul_f32 v{vM}, s37, v{vM}")
    for hb in range(2):
        for k in range(8*hb, 8*hb+8): g(f"v_sub_f32 v{vS+k}, v{vS+k}, v{vM}")
        for k in range(8*hb, 8*hb+8): g(f"v_exp_f32 v{vS+k}, v{vS+k}")
        for k in range(4*hb, 4*hb+4): g(f"v_cvt_pk_bf16_f32 v{24+k}, v{vS+2*k}, v{vS+2*k+1}")
        g(f"ds_write_b128 v226, {vr(24+4*hb,4)} offset:{512*hb}")
    for k in range(4): g(f"v_pk_add_f32 {vr(vS+2*k,2)}, {vr(vS+2*k,2)}, {vr(vS+8+2*k,2)}")
    for k in range(2): g(f"v_pk_add_f32 {vr(vS+2*k,2)}, {vr(vS+2*k,2)}, {vr(vS+4+2*k,2)}")
    g(f"v_pk_add_f32 {vr(vS,2)}, {vr(vS,2)}, {vr(vS+2,2)}\nv_add_f32 v{vS}, v{vS}, v{vS+1}")
    g(f"ds_write_b32 v222, v{vS} offset:1024\ns_waitcnt lgkmcnt(0)\ns_barrier")
    g.stamp('P')
    vP, vAcc, vO = 128, 64, 160
    lg.clear()
    for ht in range(2):
        for t in range(4):
            g(f"ds_read_b128 {vr(vP+(t*2+ht)*4,4)}, v227 offset:{(t*2+ht)*1024}"); lg.add(('P', t, ht))
    g("ds_read_b128 v[48:51], v223 offset:1024\nds_read_b128 v[52:55], v223 offset:1040"); lg.add('L', 2)
    if o['LOCAL']: g("s_cmp_eq_u64 s[38:39], 0")
    fill = {}
    def add(n, txt): fill.setdefault(n, []).append(txt)
    k = 0
    for ct in tailT:
        for t in range(4):
            for rho in range(2):
                add(4 + k//2, ('T', ct, t, rho)); k += 1
    b = 18
    add(b, ('W', 'L')); add(b, "v_add_f32 v48, v48, v52\nv_add_f32 v49, v49, v53")
    add(b+1, "v_add_f32 v50, v50, v54\nv_add_f32 v51, v51, v55")
    add(b+2, "v_add_f32 v48, v48, v50\nv_add_f32 v49, v49, v51")
    add(b+3, f"v_add_f32 v{vM+1}, v48, v49")
    add(b+4, "s_mov_b64 exec, s[62:63]")
    add(b+4, ('DS', f"buffer_store_dwordx4 {vr(vM,4)}, v228, {SWS}, s32 offen"))
    add(b+4, "s_mov_b64 exec, -1")
    def cvt(ht, r, k): return f"v_cvt_pk_bf16_f32 v{vO+(ht*4+r)*4+k}, v{vAcc+(ht*8+2*k)*4+r}, v{vAcc+(ht*8+2*k+1)*4+r}"
    def pst(ht, r): return f"buffer_store_dwordx4 {vr(vO+(ht*4+r)*4,4)}, v229, {SWS}, s{4+ht} offen offset:{r*1024}"
    for r in range(4):
        for k in range(4): add(32 + 4 + 5*r + k, cvt(0, r, k))
        add(32 + 4 + 5*r + 4, ('DS', pst(0, r)))
    for r in range(4):
        add(56 + r, cvt(1, r, 0)); add(60 + r, cvt(1, r, 1))
    nm = 0
    for ht in range(2):
        for ct in range(8):
            for t in range(4):
                lg.wait(('P', t, ht)); lg.wait(('T', ct, t, 1))
                acc = vAcc + (ht*8+ct)*4
                g(f"v_mfma_f32_16x16x32_bf16 {vr(acc,4)}, {vr(vP+(t*2+ht)*4,4)}, {ar(128+(ct*4+t)*4,4)}, {'0' if t == 0 else vr(acc,4)}")
                for f in fill.get(nm, []):
                    if isinstance(f, tuple) and f[0] == 'T': rdT1(*f[1:]); lg.add(f)
                    elif isinstance(f, tuple) and f[0] == 'W': lg.wait(f[1])
                    elif isinstance(f, tuple): dual_store(g, f[1])
                    else: g(f)
                nm += 1
    g.stamp('pv')
    for r in range(4): g(cvt(1, r, 2))
    g("s_nop 2")
    def tail(sfx):
        for r in range(4): g(cvt(1, r, 3) + "\n" + pst(1, r) + sfx)
        g(f"s_waitcnt vmcnt(0)\ns_mov_b64 exec, 1\nbuffer_store_dword v{vM+2}, v11, {SWS}, s6 offen{sfx}\ns_mov_b64 exec, -1")
    if o['LOCAL']:
        a, b = g.label("ds"), g.label("de")
        g(f"s_cbranch_scc0 {a}")
        tail("")
        g(f"{b}:")
        def far(a=a, b=b):
            g(f"{a}:"); tail(" sc1"); g(f"s_branch {b}")
        g.tailcode.append(far)
    else: tail(" sc1")
    g.stamp('ack')
    vML = 128
    Lm = g.label("ml")
    g(f"s_mov_b32 {sSpin}, 0")
    g(f"{Lm}:")
    g(f"buffer_load_dword v5, v221, {SWS}, s60 offen sc1")
    for u in range(4):
        g(f"buffer_load_dwordx3 {vr(vML+4*u,3)}, v231, {SWS}, {'s59' if u < 2 else 's36'} offen offset:{(u&1)*2048} sc1")
    spin_check(g)
    g(f"s_waitcnt vmcnt(0)\nv_xor_b32 v3, {sT[0]}, v5")
    for u in range(4): g(f"v_bitop3_b32 v3, v3, v{vML+4*u+2}, {sT[0]} bitop3:0xf6")
    g(f"v_cmp_ne_u32 vcc, 0, v3\ns_cbranch_vccnz {Lm}")
    g.stamp('flg')
    vRB = 160
    for u in range(4):
        for hs in range(2):
            g(f"buffer_load_dwordx4 {vr(vRB+(u*2+hs)*4,4)}, v230, {SWS}, s58 offen offset:{hs*1024} sc1")
        if u < 3: g("s_add_u32 s58, s58, 0x20000")
    def red_g(reg, tmp, op):
        g(f"v_mov_b32 v{tmp}, v{reg}\ns_nop 1\nv_permlane16_swap_b32 v{reg}, v{tmp}\n{op} v{reg}, v{reg}, v{tmp}")
        g(f"v_mov_b32 v{tmp}, v{reg}\ns_nop 1\nv_permlane32_swap_b32 v{reg}, v{tmp}\n{op} v{reg}, v{reg}, v{tmp}")
    vX = 232
    g(f"v_max3_f32 v{vX}, v{vML}, v{vML+4}, v{vML+8}\nv_max_f32 v{vX}, v{vX}, v{vML+12}")
    red_g(vX, 3, "v_max_f32")
    for u in range(4): g(f"v_sub_f32 v{vML+4*u}, v{vML+4*u}, v{vX}")
    for u in range(4): g(f"v_exp_f32 v{vML+4*u}, v{vML+4*u}")
    for u in range(4): g(f"v_cvt_pk_bf16_f32 v{vML+4*u}, v{vML+4*u}, v{vML+4*u}")
    vRA = 64
    for u in range(4):
        for k in range(8): g(f"v_and_b32 v{vRA+u*8+k}, v{vML+4*u}, v{vMask+k}")
    lcode = [f"v_and_b32 v{vML+4*u+3}, 0xffff0000, v{vML+4*u}" for u in range(4)]
    lcode += [f"v_mul_f32 v{vX+1}, v{vML+3}, v{vML+1}"] + [f"v_fmac_f32 v{vX+1}, v{vML+4*u+3}, v{vML+4*u+1}" for u in range(1, 4)]
    for k in range(8):
        g(f"s_waitcnt vmcnt({7-k})")
        g(f"v_mfma_f32_16x16x32_bf16 v[32:35], {vr(vRA+4*k,4)}, {vr(vRB+4*k,4)}, {'0' if k == 0 else 'v[32:35]'}")
        g(lcode[k])
    red_g(vX+1, 3, "v_add_f32")
    for r in range(4): g(f"v_bfi_b32 v{32+r}, v{vFF}, {sT[r]}, v{32+r}")
    g(f"buffer_store_dwordx4 v[32:35], v6, {SWS}, s7 offen sc1")
    sk = g.label("xm")
    g(f"s_cmp_lg_u32 {sWAVE}, 0\ns_cbranch_scc1 {sk}\ns_mov_b64 exec, 0x101\nbuffer_store_dwordx4 {vr(vX,4)}, v12, {SWS}, s7 offen offset:2048 sc1\ns_mov_b64 exec, -1\n{sk}:")
    g.stamp('xp')
    g("s_barrier")
    g(f"""
    s_lshl_b32 s49, {sWAVE}, 4
    s_add_u32 s49, s49, {sIdx}
    s_and_b32 s50, s49, 0xf8
    s_add_u32 s50, s50, {sXg}
    s_cmp_ge_u32 s50, 20
    s_cbranch_scc1 L_fin
    s_and_b32 s49, s49, 7
    s_lshl_b32 s51, s50, 3
    s_add_u32 s51, s51, s49
    s_lshl_b32 s52, s51, 4
    s_add_u32 s52, s52, {OP}
    s_add_u32 s53, s52, {64*2560}
    v_mul_u32_u24 v3, 2560, v0
    s_lshr_b32 s54, s51, 4
    s_lshl_b32 s54, s54, 7
    s_and_b32 s51, s51, 15
    s_lshl_b32 s51, s51, 1
    s_add_u32 s54, s54, s51
    v_bfe_u32 v4, v0, 4, 1
    v_lshlrev_b32 v4, 6, v4
    v_lshrrev_b32 v5, 5, v0
    v_lshl_add_u32 v4, v5, 5, v4
    s_mov_b32 {sSpin}, 0
    """)
    Lo = g.label("o")
    g(f"{Lo}:")
    g(f"buffer_load_dwordx4 v[24:27], v3, {SWS}, s52 offen sc1\nbuffer_load_dwordx4 v[28:31], v3, {SWS}, s53 offen sc1")
    spin_check(g)
    g(f"s_waitcnt vmcnt(1)\nv_xor_b32 v5, {sT[0]}, v24")
    for r in range(1, 4): g(f"v_bitop3_b32 v5, v5, v{24+r}, {sT[r]} bitop3:0xf6")
    g("s_waitcnt vmcnt(0)")
    for r in range(4): g(f"v_bitop3_b32 v5, v5, v{28+r}, {sT[r]} bitop3:0xf6")
    g(f"v_and_b32 v5, 0xff, v5\nv_cmp_ne_u32 vcc, 0, v5\ns_cbranch_vccnz {Lo}")
    g.stamp('op')
    g(f"""
    v_pk_add_f32 v[24:25], v[24:25], v[28:29]
    v_pk_add_f32 v[26:27], v[26:27], v[30:31]
    s_nop 0
    v_permlane32_swap_b32 v24, v25
    v_permlane32_swap_b32 v26, v27
    v_add_f32 v24, v24, v25
    v_add_f32 v26, v26, v27
    s_nop 1
    v_permlane16_swap_b32 v24, v26
    v_add_f32 v24, v24, v26
    s_nop 1
    v_add_f32_dpp v24, v24, v24 row_ror:8 {DPP}
    s_nop 1
    v_add_f32_dpp v24, v24, v24 row_ror:4 {DPP}
    s_nop 1
    v_add_f32_dpp v24, v24, v24 row_ror:2 {DPP}
    s_nop 1
    v_add_f32_dpp v24, v24, v24 row_ror:1 {DPP}
    v_cvt_pk_bf16_f32 v24, v24, v24
    s_mov_b32 exec_lo, 0x00010001
    s_mov_b32 exec_hi, 0x00010001
    buffer_store_short v24, v4, {SC}, s54 offen
    s_or_b32 s49, s2, {sWAVE}
    s_cmp_lg_u32 s49, 0
    s_cbranch_scc1 L_fin
    s_mov_b64 exec, 1
    buffer_store_dword v234, v11, {SWS}, 0 offen sc1
    s_branch L_fin
    """)
    for f in g.tailcode: f()
    g.tailcode = []

def sel_setup(g, vSel, vt):
    t0, t1, t2 = vt, vt+1, vt+2
    g(f"""
    v_bfe_u32 v{t0}, v0, 3, 1
    v_mul_u32_u24 v{t0}, 0x0202, v{t0}
    v_add_u32 v{t0}, 0x0100, v{t0}
    v_or_b32 v{t1}, 0x0c0c0000, v{t0}
    v_lshlrev_b32 v{t0}, 16, v{t0}
    v_or_b32 v{t0}, 0x0c0c, v{t0}
    v_and_b32 v{t2}, 1, v0
    v_cmp_eq_u32 vcc, 1, v{t2}
    v_bfe_u32 v{t2}, v0, 1, 2
    v_mov_b32 v{vSel+3}, 0x0c0c0c0c
    v_cndmask_b32 v{t0}, v{t1}, v{t0}, vcc
    """)
    for r in range(4):
        g(f"v_cmp_eq_u32 vcc, {r}, v{t2}\ns_nop 1\nv_cndmask_b32 v{vSel+r}, v{vSel+3}, v{t0}, vcc")

def weight(g):
    o = g.opt
    NT = o['NT']
    g.role = "wgt"; g.names["wgt"].append("st")
    g("L_wgt:")
    g("""
    s_load_dwordx2 s[4:5], s[0:1], 0
    s_load_dwordx2 s[32:33], s[0:1], 16
    s_load_dwordx2 s[20:21], s[0:1], 104
    s_load_dwordx2 s[8:9], s[0:1], 24
    s_load_dwordx2 s[28:29], s[0:1], 80
    """)
    srd_tail(g, 4, 1280); srd_tail(g, 8, 512*8192); srd_tail(g, 32, 640*8192); srd_tail(g, 20, WSSZ); srd_tail(g, 28, 1280)
    LWO, LWD, LUV, LSCR, LCX, LUK, LXP = 0, 49152, 73728, 106496, 114688, 115712, 115712
    g(f"s_and_b32 {sXg}, s2, 7\ns_lshr_b32 {sIdx}, s2, 3\ns_sub_u32 {sIdx}, {sIdx}, 16")
    head_id(g)
    g(f"""
    v_and_b32 v1, 15, v0
    v_lshrrev_b32 v2, 4, v0
    v_mul_u32_u24 v4, 80, v2
    s_mul_i32 s50, {sQt}, 320
    s_lshl_b32 s49, {sH}, 8
    s_mul_i32 s52, {sQt}, {160*8192}
    s_add_u32 s52, s52, s49
    v_mul_u32_u24 v6, 40, v2
    v_bfe_u32 v3, v0, 3, 1
    v_add_u32 v6, v6, v3
    v_lshlrev_b32 v5, 13, v6
    v_and_b32 v3, 7, v0
    v_lshl_add_u32 v5, v3, 4, v5
    v_lshrrev_b32 v3, 2, v1
    v_lshlrev_b32 v14, 9, v3
    v_lshl_add_u32 v14, v2, 7, v14
    v_and_b32 v3, 3, v0
    v_lshl_add_u32 v14, v3, 4, v14
    s_lshl_b32 s54, {sH}, 11
    s_add_u32 s54, s54, {QP}
    s_waitcnt lgkmcnt(0)
    """)
    g.stamp('karg')
    common_epoch(g)
    vXq = 224
    WIN = o['WIN']
    def ldq(k):
        g(f"buffer_load_dwordx4 {ar(4*k,4)}, v5, {SF}, s52 offen offset:{128*(k&1)} {o['WQNT']}")
        if k & 1: g("s_add_u32 s52, s52, 16384")
    sk = g.label("nq")
    g(f"s_cmp_lg_u32 {sWAVE}, 0\ns_cbranch_scc1 {sk}")
    for k in range(5): g(f"buffer_load_dwordx4 {vr(vXq+4*k,4)}, v4, {SX}, s50 offen offset:{16*k}")
    for k in range(WIN): ldq(k)
    g(f"buffer_load_dword v48, v14, {SWS}, s54 offen sc1")
    g(f"{sk}:")
    g("""
    s_load_dwordx2 s[12:13], s[0:1], 32
    s_load_dwordx2 s[16:17], s[0:1], 40
    s_load_dwordx2 s[24:25], s[0:1], 72
    s_load_dwordx2 s[36:37], s[0:1], 64
    """)
    srd_tail(g, 12, 512*8192); srd_tail(g, 16, 4096*1280); srd_tail(g, 24, 1728*1280); srd_tail(g, 36, 640*3456)
    vSel = 16
    sel_setup(g, vSel, 8)
    vUd = 176
    g(f"""
    v_lshlrev_b32 v7, 4, v0
    s_lshl_b32 s51, {sQt}, 2
    s_add_u32 s51, s51, {sWAVE}
    s_lshl_b32 s55, s51, 6
    s_lshl_b32 s51, s51, 18
    s_lshl_b32 s49, {sH}, 8
    s_add_u32 s51, s51, s49
    s_lshl_b32 s49, {sH}, 10
    s_add_u32 s55, s55, s49
    s_add_u32 s55, s55, {QA}
    s_lshl_b32 s63, {sWAVE}, 13
    s_add_u32 s53, s63, {LUK}
    v_lshrrev_b32 v3, 5, v0
    v_xor_b32 v3, v1, v3
    v_lshlrev_b32 v3, 4, v3
    v_lshl_add_u32 v{vUd}, v2, 13, v3
    v_xor_b32 v3, v1, v2
    v_lshlrev_b32 v3, 4, v3
    v_lshl_add_u32 v3, v1, 9, v3
    v_add_u32 v20, s53, v3
    v_xor_b32 v21, 64, v20
    v_xor_b32 v22, 128, v20
    v_xor_b32 v23, 192, v20
    v_lshlrev_b32 v15, 2, v1
    v_and_b32 v3, 3, v1
    v_lshlrev_b32 v3, 1, v3
    v_bfe_u32 v9, v0, 4, 1
    v_add_u32 v3, v3, v9
    v_lshlrev_b32 v3, 2, v3
    v_bfe_u32 v9, v0, 2, 1
    v_add_u32 v3, v3, v9
    v_lshrrev_b32 v9, 5, v0
    v_lshl_add_u32 v3, v9, 1, v3
    v_lshlrev_b32 v12, 4, v3
    s_lshl_b32 s49, {sQt}, 9
    s_add_u32 s56, s54, s49
    v_lshlrev_b32 v3, 1, v1
    v_mov_b32 v24, 0x07060302
    v_mov_b32 v25, 0x00010001
    """)
    for b in range(1, 8): g(f"v_xor_b32 v{vUd+b}, {32*b}, v{vUd}")
    epoch_finish(g)
    g(f"""
    v_mov_b32 v42, {sT[0]}
    v_mov_b32 v43, {sT[0]}
    v_lshrrev_b32 v3, v3, v42
    v_and_b32 v3, 3, v3
    v_lshl_or_b32 v26, v3, 15, v3
    v_not_b32 v3, v26
    v_and_b32 v28, 0x10000, v3
    v_lshlrev_b32 v3, 16, v3
    v_and_b32 v27, 0x10000, v3
    """)
    vUk = 184
    Lw1 = g.label("now1")
    g(f"s_cmp_lg_u32 {sWAVE}, 0\ns_cbranch_scc1 {Lw1}")
    g(f"s_waitcnt vmcnt({WIN+1})")
    NA = 4
    def prep(u):
        for r in range(4): g(f"v_perm_b32 v{64+4*u+r}, v{vXq+u}, v{vXq+u}, v{vSel+r}")
    nl = WIN
    for u in range(NA): prep(u)
    for k in range(40):
        u, m = k >> 1, k & 1
        g(f"s_waitcnt vmcnt({nl-k-1+(1 if k < WIN else 0)})")
        g(f"v_mfma_f32_16x16x32_bf16 {vr(32+4*m,4)}, {vr(64+4*u,4)}, {ar(4*k,4)}, {'0' if u == 0 else vr(32+4*m,4)}")
        if nl < 40: ldq(nl); nl += 1
        if k + NA < 20: prep(k + NA)
    g("s_nop 7")
    for r in range(4): g(f"v_permlane32_swap_b32 v{32+r}, v{36+r}")
    for r in range(4): g(f"v_add_f32_dpp v{32+r}, v{36+r}, v{32+r} row_ror:8 {DPP}")
    g("v_cvt_pk_bf16_f32 v40, v32, v33\nv_cvt_pk_bf16_f32 v41, v34, v35\ns_mov_b32 exec_lo, 0x00ff00ff\ns_mov_b32 exec_hi, 0x00ff00ff")
    g(f"buffer_store_dwordx4 v[40:43], v12, {SWS}, s56 offen\ns_mov_b64 exec, -1")
    g(f"{Lw1}:")
    g.stamp('w1')
    g("s_barrier")
    for b in range(8):
        g(f"s_add_u32 m0, s53, {b*1024}\ns_add_u32 s49, s51, {b*4*8192}")
        g(f"buffer_load_dwordx4 v{vUd+b}, {SA}, s49 offen {o['UKNT']} lds")
    Lq, Lqs = g.label("qp"), g.label("qps")
    qpl = f"buffer_load_dwordx4 v[48:51], v14, {SWS}, s54 offen sc1\nbuffer_load_dwordx4 v[52:55], v14, {SWS}, s54 offen offset:64 sc1"
    qwt = f"s_mov_b32 exec_lo, 0x00ff00ff\ns_mov_b32 exec_hi, 0x00ff00ff\nbuffer_store_dwordx4 v[40:43], v12, {SWS}, s56 offen sc1\ns_mov_b64 exec, -1"
    g(f"s_mov_b32 {sSpin}, 0\n{qpl}\ns_waitcnt vmcnt(2)")
    for ct in range(2):
        for sx in range(4): g(f"ds_read_b128 {vr(vUk+(ct*4+sx)*4,4)}, v{20+sx} offset:{ct*256}")
    g(f"{Lq}:\ns_waitcnt vmcnt(0)\nv_xor_b32 v3, {sT[0]}, v50\nv_bitop3_b32 v3, v3, v54, {sT[0]} bitop3:0xf6\nv_cmp_ne_u32 vcc, 0, v3\ns_cbranch_vccz {Lqs}")
    g(qpl)
    spin_check(g)
    g(f"s_lshl_b32 s49, {sWAVE}, 16\ns_or_b32 s49, s49, {sSpin}\ns_cmp_lg_u32 s49, {o['NLOC']}\ns_cbranch_scc1 {Lq}")
    g(f"{qwt}\ns_branch {Lq}")
    g(f"{Lqs}:")
    g.stamp('qp')
    vB = 64
    src = [48, 49, 52, 53]
    for sx in range(4):
        for k in range(4): g(f"v_mov_b32_dpp v{vB+4*sx+k}, v{src[k]} quad_perm:[{sx},{sx},{sx},{sx}] {DPP}")
        if sx == 1: g("s_waitcnt lgkmcnt(0)")
        if sx >= 1:
            for ct in range(2):
                g(f"v_mfma_f32_16x16x32_bf16 {vr(32+4*ct,4)}, {vr(vB+4*(sx-1),4)}, {vr(vUk+(ct*4+sx-1)*4,4)}, {'0' if sx == 1 else vr(32+4*ct,4)}")
    for ct in range(2):
        g(f"v_mfma_f32_16x16x32_bf16 {vr(32+4*ct,4)}, {vr(vB+12,4)}, {vr(vUk+(ct*4+3)*4,4)}, {vr(32+4*ct,4)}")
    g(f"""
    s_nop 7
    v_permlane32_swap_b32 v32, v36
    v_add_f32 v32, v32, v36
    v_mov_b32 v33, v32
    s_nop 1
    v_permlane16_swap_b32 v32, v33
    v_add_f32 v32, v32, v33
    v_mov_b32 v33, v32
    s_nop 1
    v_permlane32_swap_b32 v32, v33
    v_add_u32 v32, v32, v27
    v_add_u32 v33, v33, v28
    v_perm_b32 v32, v33, v32, v24
    v_bfi_b32 v32, v25, v26, v32
    s_mov_b64 exec, 0xffff
    buffer_store_dword v32, v15, {SWS}, s55 offen sc1
    s_mov_b64 exec, -1
    """)
    g.stamp('qa')
    g(f"""
    s_load_dwordx2 s[8:9], s[0:1], 8
    s_load_dwordx2 s[32:33], s[0:1], 56
    s_mov_b32 s10, {16384*1024}
    s_mov_b32 s34, {640*3456}
    v_lshrrev_b32 v3, 1, v0
    v_lshlrev_b32 v3, 10, v3
    v_and_b32 v9, 1, v0
    v_lshl_add_u32 v3, v9, 7, v3
    s_lshl_b32 s49, {sXg}, 4
    s_add_u32 s49, s49, {sIdx}
    s_lshl_b32 s49, s49, 2
    s_add_u32 s49, s49, {sWAVE}
    s_lshl_b32 s57, s49, 13
    s_add_u32 s57, s57, {PART}
    s_lshl_b32 s49, s49, 15
    v_lshlrev_b32 v9, 7, v0
    s_sub_u32 s50, s2, 128
    s_and_b32 s51, s50, 3
    s_lshr_b32 s50, s50, 2
    s_mul_i32 s53, s51, 160
    s_mul_i32 s52, {sWAVE}, 10
    s_add_u32 s53, s53, s52
    s_lshl_b32 s52, s53, 1
    s_waitcnt lgkmcnt(0)
    s_barrier
    """)
    vm = Pend(g, 'vmcnt', 63)
    vF = 0
    vXg, vGw, vXw = 96, 104, 112
    g(f"""
    buffer_load_dwordx4 {vr(vXw,4)}, v4, {SX}, s52 offen
    buffer_load_dword v{vXw+4}, v4, {SX}, s52 offen offset:16
    buffer_load_dwordx4 {vr(vXg,4)}, v7, {SX}, 0 offen
    buffer_load_dwordx4 {vr(vXg+4,4)}, v7, {SX}, 0 offen offset:1024
    buffer_load_dwordx4 {vr(vGw,4)}, v7, {SE}, 0 offen
    buffer_load_dwordx4 {vr(vGw+4,4)}, v7, {SE}, 0 offen offset:1024
    """); vm.add('X', 6)
    for k in range(o['XH']//2):
        g(f"buffer_load_dword v{58+k}, v3, {SA}, s49 offen offset:{1024-128*o['XH']+256*k}"); vm.add('H')
    if o['LOCAL'] and o['PRETOUCH']:
        g(f"buffer_load_dword v60, v9, {SWS}, s57 offen {o['PTF']}"); vm.add('H')
    vG, vTa, vTb, vFF = 44, 212, 213, 214
    g(f"""
    v_mul_u32_u24 v57, 3456, v6
    v_and_b32 v5, 7, v0
    v_lshl_add_u32 v57, v5, 4, v57
    s_mul_i32 s52, s53, 3456
    s_lshl_b32 s49, s50, 7
    s_add_u32 s52, s52, s49
    s_cmp_ge_u32 s50, 27
    s_cselect_b32 s57, 0x10000000, 0
    s_add_u32 s52, s52, s57
    v_lshrrev_b32 v8, 5, v0
    v_mul_u32_u24 v{vG}, 640, v8
    v_and_b32 v9, 1, v0
    v_lshl_add_u32 v{vG}, v9, 8, v{vG}
    v_bfe_u32 v9, v0, 1, 3
    v_lshl_add_u32 v{vG}, v9, 4, v{vG}
    v_bfe_u32 v9, v0, 4, 1
    v_lshl_add_u32 v{vG}, v9, 10, v{vG}
    v_add_u32 v{vG}, {LSCR}, v{vG}
    v_and_b32 v9, 31, v0
    v_lshlrev_b32 v9, 4, v9
    v_lshl_add_u32 v{vG+1}, v8, 3, v9
    v_lshlrev_b32 v8, 4, v8
    v_mov_b32 v{vFF}, 0xff
    v_lshrrev_b32 v{vTa}, v8, v42
    v_lshrrev_b32 v{vTb}, 8, v{vTa}
    s_lshl_b32 s49, {sWAVE}, 11
    s_add_u32 s49, s49, {LSCR}
    v_add_u32 v13, s49, v7
    v_lshrrev_b32 v3, 3, v0
    v_bfe_u32 v5, v0, 1, 2
    v_xor_b32 v4, v2, v5
    v_lshlrev_b32 v4, 5, v4
    v_and_b32 v5, 1, v0
    v_lshl_add_u32 v4, v5, 4, v4
    v_mul_u32_u24 v28, 1280, v3
    v_add_u32 v28, v28, v4
    v_lshrrev_b32 v5, 5, v0
    v_mul_u32_u24 v5, {4*1280}, v5
    v_add_u32 v29, v28, v5
    s_lshl_b32 s58, s50, 2
    s_add_u32 s58, s58, s51
    s_mul_i32 s58, s58, {16*1280}
    s_lshl_b32 s49, {sWAVE}, 7
    s_add_u32 s58, s58, s49
    s_add_u32 s58, s58, s57
    s_lshl_b32 s59, {sH}, 2
    s_add_u32 s59, s59, {sQt}
    s_mul_i32 s59, s59, {32*1280}
    s_add_u32 s59, s59, s49
    s_cmp_ge_u32 {sWAVE}, 2
    s_cselect_b32 s60, 0x10000000, 0
    s_mul_i32 s61, {sWAVE}, 6144
    s_add_u32 s61, s61, {LWD}
    v_bfe_u32 v3, v0, 2, 2
    v_lshl_add_u32 v3, v3, 6, v2
    v_lshlrev_b32 v30, 13, v3
    v_bfe_u32 v3, v0, 1, 1
    v_bfe_u32 v4, v0, 4, 1
    v_xor_b32 v3, v3, v4
    v_lshl_add_u32 v30, v3, 5, v30
    v_and_b32 v3, 1, v0
    v_lshl_add_u32 v30, v3, 4, v30
    s_lshl_b32 s62, {sWAVE}, 17
    s_lshl_b32 s49, {sH}, 8
    s_add_u32 s62, s62, s49
    s_lshl_b32 s49, {sQt}, 6
    s_add_u32 s62, s62, s49
    s_add_u32 s63, s63, {LUV}
    s_mul_i32 s54, {sWAVE}, 12288
    """)
    vm.wait('X')
    for u in range(5):
        for r in range(4): g(f"v_perm_b32 v{64+4*u+r}, v{vXw+u}, v{vXw+u}, v{vSel+r}")
    g(f"v_dot2_f32_bf16 v3, v{vXg}, v{vGw}, 0")
    for k in range(1, 8): g(f"v_dot2_f32_bf16 v3, v{vXg+k}, v{vGw+k}, v3")
    g("s_nop 2")
    for sh in (8, 4, 2, 1): g(f"v_add_f32_dpp v3, v3, v3 row_ror:{sh} {DPP}\ns_nop 1")
    g("v_mov_b32 v4, v3\ns_nop 1\nv_permlane16_swap_b32 v3, v4\nv_add_f32 v3, v3, v4")
    g("v_mov_b32 v4, v3\ns_nop 1\nv_permlane32_swap_b32 v3, v4\nv_add_f32 v3, v3, v4")
    vGate = 215
    g(f"""
    v_mul_f32 v3, {f2u(-1.4426950408889634):#x}, v3
    v_exp_f32 v3, v3
    s_nop 0
    v_add_f32 v3, 1.0, v3
    v_rcp_f32 v{vGate}, v3
    s_nop 0
    v_sub_f32 v{vGate+1}, 1.0, v{vGate}
    """)
    sk = g.label("qwt")
    g(f"s_cmp_lg_u32 {sWAVE}, 0\ns_cbranch_scc1 {sk}\n{qwt}\n{sk}:")
    vTo = 192
    g(f"""
    v_bfe_u32 v3, v0, 2, 3
    v_lshlrev_b32 v4, 7, v3
    v_lshrrev_b32 v3, 1, v3
    v_lshl_add_u32 v4, v3, 5, v4
    v_and_b32 v3, 3, v0
    v_lshl_add_u32 v4, v3, 3, v4
    v_lshrrev_b32 v3, 5, v0
    v_lshl_add_u32 v4, v3, 10, v4
    """)
    for q in range(4):
        g(f"v_xor_b32 v3, {q*32}, v4\nv_add_u32 v{vTo+q}, s54, v3\nv_add_u32 v{vTo+4+q}, s61, v3")
    g(f"""
    v_lshrrev_b32 v3, 2, v0
    v_lshlrev_b32 v4, 6, v3
    v_bfe_u32 v3, v0, 4, 1
    v_lshl_add_u32 v4, v3, 5, v4
    v_and_b32 v3, 3, v0
    v_lshl_add_u32 v4, v3, 3, v4
    v_add_u32 v200, s63, v4
    v_xor_b32 v201, 32, v200
    v_lshlrev_b32 v41, 7, v3
    v_lshl_add_u32 v41, v2, 5, v41
    v_add_u32 v209, {LCX}, v41
    v_lshrrev_b32 v210, 2, v1
    v_lshlrev_b32 v14, 9, v210
    v_lshl_add_u32 v14, v2, 4, v14
    v_lshlrev_b32 v211, 10, v2
    v_lshl_add_u32 v211, v1, 4, v211
    v_lshrrev_b32 v3, 5, v0
    v_mul_u32_u24 v4, {XPS}, v3
    v_and_b32 v5, 31, v0
    v_xor_b32 v5, v5, v3
    v_lshlrev_b32 v5, 4, v5
    v_add_u32 v20, v4, v5
    """)
    for j in range(1, 4): g(f"v_xor_b32 v3, {64*j}, v5\nv_add_u32 v{20+j}, v4, v3")
    g(f"""
    v_and_b32 v3, 7, v0
    v_mul_u32_u24 v15, {XPS}, v3
    v_lshlrev_b32 v4, 9, v3
    v_bfe_u32 v5, v0, 1, 2
    v_lshlrev_b32 v5, 2, v5
    v_and_b32 v3, 1, v0
    v_or_b32 v5, v5, v3
    v_bfe_u32 v3, v0, 3, 1
    v_lshlrev_b32 v6, 4, v3
    v_lshl_add_u32 v6, v2, 1, v6
    v_xor_b32 v5, v5, v6
    v_lshl_add_u32 v4, v5, 4, v4
    s_lshl_b32 s57, {sWAVE}, 13
    s_add_u32 s57, s57, {LXP}
    v_add_u32 v204, s57, v4
    v_xor_b32 v205, 16, v204
    v_xor_b32 v206, 128, v204
    v_xor_b32 v207, 144, v204
    s_lshl_b32 s49, {sWAVE}, 7
    s_add_u32 s49, s49, {LCX}
    v_lshlrev_b32 v208, 6, v3
    v_lshl_add_u32 v208, v2, 4, v208
    v_add_u32 v208, s49, v208
    s_lshl_b32 s56, s50, 11
    s_add_u32 s56, s56, {FP}
    s_lshl_b32 s49, s51, 9
    s_add_u32 s53, s56, s49
    s_lshl_b32 s49, s51, 6
    s_add_u32 s56, s56, s49
    """)
    g.stamp('set')
    FW = o['FW']
    for k in range(10):
        if k >= FW: vm.wait(('F', k-FW))
        g(f"buffer_load_dwordx4 {ar(vF+4*k,4)}, v57, {SG if k & 1 else SF}, s52 offen {NT}"); vm.add(('F', k))
        if k & 1: g(f"s_add_u32 s52, s52, {2*3456}")
    dl = []
    for sx in range(4):
        for rho in range(2):
            dl.append(f"s_add_u32 m0, s63, {(sx*2+rho)*1024}\ns_add_u32 s49, s62, {(4*sx+256*rho)*8192}\nbuffer_load_dwordx4 v30, {SB}, s49 offen {o.get('UVNT', NT)} lds")
    for gam in range(3):
        for gp in range(2):
            dl.append(f"s_add_u32 m0, s61, {(gam*2+gp)*1024}\ns_add_u32 s49, s58, {gam*512 + gp*8*1280}\n" + ("s_add_u32 s49, s49, s60\n" if gam == 2 else "") + f"buffer_load_dwordx4 v28, {SD}, s49 offen {NT} lds")
    for gam in range(3):
        for rho in range(2):
            for gp in range(2):
                dl.append(f"s_add_u32 m0, s54, {(gam*4+rho*2+gp)*1024}\ns_add_u32 s49, s59, {gam*512 + (16*gp+4*rho)*1280}\n" + ("s_add_u32 s49, s49, s60\n" if gam == 2 else "") + f"buffer_load_dwordx4 v29, {SC}, s49 offen {NT} lds")
    N1, N2 = o['N1'], o['N2']
    for k in range(N1): g(dl[k]); vm.add('D')
    g.stamp('iss1')
    for k in range(10):
        u, m = k >> 1, k & 1
        vm.wait(('F', k))
        g(f"v_mfma_f32_16x16x32_bf16 {vr(32+4*m,4)}, {vr(64+4*u,4)}, {ar(vF+4*k,4)}, {'0' if u == 0 else vr(32+4*m,4)}")
    g("s_nop 7\nds_write_b128 v13, v[32:35]\nds_write_b128 v13, v[36:39] offset:1024\ns_waitcnt lgkmcnt(0)\ns_barrier")
    sk = g.label("skip")
    g(f"s_cmp_lg_u32 {sWAVE}, 3\ns_cbranch_scc1 {sk}")
    d = 128
    for wv in range(4): g(f"ds_read_b128 {vr(d+4*wv,4)}, v{vG} offset:{wv*2048}")
    g("s_waitcnt lgkmcnt(2)")
    for r in range(4): g(f"v_add_f32 v{d+r}, v{d+r}, v{d+4+r}")
    g("s_waitcnt lgkmcnt(0)")
    for r in range(4): g(f"v_add_f32 v{d+8+r}, v{d+8+r}, v{d+12+r}")
    for r in range(4): g(f"v_add_f32 v{d+r}, v{d+r}, v{d+8+r}")
    g(f"s_nop 0\nv_permlane32_swap_b32 v{d}, v{d+2}\nv_permlane32_swap_b32 v{d+1}, v{d+3}")
    g(f"v_add_f32 v{d}, v{d}, v{d+2}\nv_add_f32 v{d+1}, v{d+1}, v{d+3}")
    g(f"v_bfi_b32 v{d}, v{vFF}, v{vTa}, v{d}\nv_bfi_b32 v{d+1}, v{vFF}, v{vTb}, v{d+1}")
    g(f"buffer_store_dwordx2 {vr(d,2)}, v{vG+1}, {SWS}, s53 offen sc1")
    g(f"{sk}:")
    g.stamp('fp')
    for k in range(N1, N2): g(dl[k]); vm.add('D')
    fpl = f"buffer_load_dwordx4 v[48:51], v14, {SWS}, s56 offen sc1\nbuffer_load_dwordx4 v[52:55], v14, {SWS}, s56 offen offset:256 sc1"
    g(fpl); vm.add('P', 2)
    for k in range(N2, 26): g(dl[k]); vm.add('D2')
    g.stamp('iss2')
    g(f"""
    s_mul_i32 s54, {sH}, {8*XPS}
    s_add_u32 s54, s54, {XP}
    s_lshl_b32 s49, {sWAVE}, 9
    s_add_u32 s55, s54, s49
    s_lshl_b32 s4, {sXg}, 4
    s_add_u32 s4, s4, {sIdx}
    s_mul_i32 s4, s4, 2560
    s_lshl_b32 s49, {sWAVE}, 8
    s_add_u32 s4, s4, s49
    s_add_u32 s4, s4, {OP}
    v_cmp_eq_u32 s[50:51], 0, v210
    v_cmp_eq_u32 s[52:53], 1, v210
    v_cmp_eq_u32 s[58:59], 2, v210
    v_cmp_gt_u32 s[62:63], 8, v1
    s_cmp_ge_u32 {sWAVE}, 2
    s_cselect_b32 s61, 0, 0xffff
    s_mov_b32 {sSpin}, 0
    """)
    vm.wait('P')
    assert N2 >= 14
    aD, aO, aU = 0, 24, 72
    for gam in range(3):
        for q in range(4): g(f"ds_read_b64_tr_b16 {ar(aD+(gam*4+q)*2,2)}, v{vTo+4+q} offset:{gam*2048}")
    for sx in range(4):
        for rho in range(2):
            for dt in range(2): g(f"ds_read_b64_tr_b16 {ar(aU+(dt*4+sx)*4+2*rho,2)}, v{200+dt} offset:{(sx*2+rho)*1024}")
    Lf, Lfok = g.label("fp"), g.label("fpok")
    g(f"{Lf}:\nv_xor_b32 v3, {sT[0]}, v48")
    for k in range(1, 8): g(f"v_bitop3_b32 v3, v3, v{48+k}, {sT[k&3]} bitop3:0xf6")
    g(f"v_and_b32 v3, 0xff, v3\nv_cmp_ne_u32 vcc, 0, v3\ns_cbranch_vccz {Lfok}")
    g(fpl)
    spin_check(g)
    g(f"s_waitcnt vmcnt(0)\ns_branch {Lf}\n{Lfok}:")
    g.stamp('fpok')
    ror_sum(g, 48, 8)
    for k in range(4): g(f"v_cvt_pk_bf16_f32 v{32+k}, v{48+k}, v{52+k}")
    for k in range(4): g(f"v_lshlrev_b32 v{24+k}, 16, v{32+k}\nv_and_b32 v{28+k}, 0xffff0000, v{32+k}")
    c1 = -2*0.7978845608028654*1.4426950408889634
    g(f"s_mov_b32 s49, {f2u(c1*0.044715):#x}\nv_mov_b32 v3, {f2u(c1):#x}")
    for k in range(4): g(f"v_mul_f32 v{32+k}, v{24+k}, v{24+k}")
    for k in range(4): g(f"v_fma_f32 v{32+k}, v{32+k}, s49, v3")
    for k in range(4): g(f"v_mul_f32 v{32+k}, v{32+k}, v{24+k}")
    for k in range(4): g(f"v_exp_f32 v{32+k}, v{32+k}")
    for k in range(4): g(f"v_add_f32 v{32+k}, 1.0, v{32+k}")
    for k in range(4): g(f"v_rcp_f32 v{32+k}, v{32+k}")
    for k in range(4): g(f"v_mul_f32 v{32+k}, v{32+k}, v{24+k}")
    for k in range(4): g(f"v_cvt_pk_bf16_f32 v{32+k}, v{32+k}, v{32+k}")
    for k in range(4): g(f"v_and_b32 v{32+k}, 0xffff0000, v{32+k}\nv_mul_f32 v{32+k}, v{32+k}, v{28+k}")
    g("v_cvt_pk_bf16_f32 v24, v32, v33\nv_cvt_pk_bf16_f32 v25, v34, v35")
    for gam in range(3):
        g(f"v_cmp_eq_u32 vcc, {4*gam}, v1\ns_nop 1\nv_cndmask_b32 v{26+2*gam}, 0, v24, vcc\nv_cndmask_b32 v{27+2*gam}, 0, v25, vcc")
    g("s_waitcnt lgkmcnt(0)")
    vOa = 176
    for gam in range(3):
        for q in range(4):
            g(f"v_mfma_f32_16x16x16_bf16 {vr(vOa+4*q,4)}, {vr(26+2*gam,2)}, {ar(aD+(gam*4+q)*2,2)}, {'0' if gam == 0 else vr(vOa+4*q,4)}")
    g("s_waitcnt vmcnt(0)")
    g.stamp('strm')
    for gam in range(3):
        for rho in range(2):
            for q in range(4): g(f"ds_read_b64_tr_b16 {ar(aO+(gam*4+q)*4+2*rho,2)}, v{vTo+q} offset:{gam*4096+rho*2048}")
    for q in range(4): g(f"v_mul_f32 v{vOa+4*q}, v{vGate+1}, v{vOa+4*q}")
    g(f"s_mov_b32 {sSpin}, 0")
    vD = 64
    Lx = g.label("xd")
    g(f"{Lx}:")
    for j in range(4):
        g(f"s_add_u32 m0, s57, {j*1024}\ns_add_u32 s49, s55, {2*j*XPS}\nbuffer_load_dwordx4 v{20+j}, {SWS}, s49 offen sc1 lds")
    g(f"buffer_load_dwordx3 v[24:26], v15, {SWS}, s54 offen offset:2048 sc1")
    spin_check(g)
    g("s_waitcnt vmcnt(1)")
    for k in range(4): g(f"ds_read_b128 {vr(vD+4*k,4)}, v{204+k}")
    g(f"s_waitcnt vmcnt(0)\nv_cmp_ne_u32 vcc, {sT[0]}, v26\nv_mov_b32 v27, v24\ns_waitcnt lgkmcnt(3)\ns_cbranch_vccnz {Lx}")
    dppm = ["quad_perm:[1,0,3,2]", "quad_perm:[2,3,0,1]", "row_half_mirror"]
    for k in range(16):
        if k % 4 == 0 and k: g(f"s_waitcnt lgkmcnt({3-k//4})")
        if k == 0: g(f"v_xor_b32 v3, {sT[0]}, v{vD}")
        else: g(f"v_bitop3_b32 v3, v3, v{vD+k}, {sT[k&3]} bitop3:0xf6")
        if k in (2, 5, 8): g(f"v_max_f32_dpp v27, v27, v27 {dppm[(k-2)//3]} {DPP}")
        if k == 10: g("v_sub_f32 v24, v24, v27")
        if k == 11: g("v_exp_f32 v24, v24")
    g(f"v_and_b32 v3, 0xff, v3\nv_cmp_ne_u32 vcc, 0, v3\nv_mul_f32 v25, v24, v25\ns_cbranch_vccnz {Lx}")
    g.stamp('xd')
    for k in range(8): g(f"v_cvt_pk_bf16_f32 v{80+k}, v{vD+2*k}, v{vD+2*k+1}")
    fl = [f"v_add_f32_dpp v25, v25, v25 {dppm[0]} {DPP}", f"v_mul_f32 v24, v{vGate}, v24",
          f"v_add_f32_dpp v25, v25, v25 {dppm[1]} {DPP}", "s_nop 0",
          f"v_add_f32_dpp v25, v25, v25 {dppm[2]} {DPP}", "v_rcp_f32 v25, v25", "s_nop 0", "v_mul_f32 v203, v24, v25"]
    i = 0
    for sx in range(2):
        for hi in range(2):
            for dt in range(2):
                acc = 96 + 8*hi + 4*dt
                g(f"v_mfma_f32_16x16x32_bf16 {vr(acc,4)}, {ar(aU+(dt*4+sx+2*hi)*4,4)}, {vr(80+4*sx,4)}, {'0' if sx == 0 else vr(acc,4)}")
                g(fl[i]); i += 1
    g("s_nop 4")
    for r in range(4): g(f"v_cndmask_b32 v{28+r}, v{104+r}, v{100+r}, s[62:63]")
    for r in range(4): g(f"v_cndmask_b32 v{24+r}, v{108+r}, v{96+r}, s[62:63]")
    for r in range(4): g(f"v_add_f32_dpp v{24+r}, v{28+r}, v{24+r} row_ror:8 {DPP}")
    for r in range(4): g(f"v_mul_f32 v{24+r}, v203, v{24+r}")
    quad_sum(g, 24, 4)
    for r in range(4): g(f"v_add_f32_dpp v{24+r}, v{24+r}, v{24+r} row_half_mirror {DPP}")
    g("ds_write_b128 v208, v[24:27]\ns_waitcnt lgkmcnt(0)\ns_barrier")
    g("ds_read_b128 v[24:27], v209\nds_read_b128 v[28:31], v209 offset:16\ns_waitcnt lgkmcnt(1)")
    for k in range(4):
        if k == 2: g("s_waitcnt lgkmcnt(0)")
        g(f"v_cvt_pk_bf16_f32 v{32+k}, v{24+2*k}, v{25+2*k}")
    msk = ['s[50:51]', 's[52:53]', 's[58:59]']
    for k in range(4): g(f"v_cndmask_b32 v{112+k}, 0, v{32+k}, {msk[0]}")
    g(f"v_cndmask_b32 v116, 0, v32, {msk[1]}\nv_cndmask_b32 v117, 0, v33, {msk[1]}")
    fl = [f"v_cndmask_b32 v118, 0, v34, {msk[1]}", f"v_cndmask_b32 v119, 0, v35, {msk[1]}"] + [f"v_cndmask_b32 v{120+k}, 0, v{32+k}, {msk[2]}" for k in range(4)]
    i = 0
    for gam in range(3):
        for q in range(4):
            g(f"v_mfma_f32_16x16x32_bf16 {vr(vOa+4*q,4)}, {vr(112+4*gam,4)}, {ar(aO+(gam*4+q)*4,4)}, {vr(vOa+4*q,4)}")
            if i < len(fl): g(fl[i])
            i += 1
    g("s_nop 4")
    for q in range(4):
        g(f"v_pk_add_f32 {vr(vOa+4*q,2)}, {vr(vOa+4*q,2)}, {vr(vOa+4*q+2,2)}")
    for q in range(4): g(f"v_add_f32 v{24+q}, v{vOa+4*q}, v{vOa+4*q+1}")
    for q in range(4): g(f"v_bfi_b32 v{24+q}, v{vFF}, {sT[q]}, v{24+q}")
    g(f"s_mov_b32 exec_hi, s61\nbuffer_store_dwordx4 v[24:27], v211, {SWS}, s4 offen sc1")
    g.stamp('op')

def build(**opt):
    g = G(**opt)
    g.o.append(HEADER.rstrip('\n'))
    g.o.append("; @launch grid=(256,1,1) block=(256,1,1) lds=163840")
    g.o.append('.amdgcn_target "amdgcn-amd-amdhsa--gfx950"')
    g.o.append(f".text\n.globl {KN}\n.p2align 8\n.type {KN},@function\n{KN}:")
    g.stamp('st')
    g(f"""
    v_lshrrev_b32 v1, 6, v0
    s_cmp_ge_u32 s2, 256
    s_cbranch_scc1 L_end
    v_readfirstlane_b32 {sWAVE}, v1
    v_and_b32 v0, 63, v0
    s_cmp_ge_u32 s2, 128
    s_cbranch_scc1 L_wgt
    """)
    attention(g)
    weight(g)
    g("L_fin:")
    if g.opt.get('PADTO'):
        g(f"""
        s_or_b32 s49, s2, {sWAVE}
        s_cmp_lg_u32 s49, 0
        s_cbranch_scc1 L_padend
        L_pad:
        s_memrealtime s[98:99]
        s_waitcnt lgkmcnt(0)
        s_sub_u32 s49, s98, s64
        s_cmp_lt_u32 s49, {g.opt['PADTO']}
        s_cbranch_scc1 L_pad
        L_padend:
        """)
    if g.opt['STAMPS']:
        g(('s_memtime' if g.opt.get('CLK') else 's_memrealtime') + " s[100:101]\ns_waitcnt lgkmcnt(0)\ns_mov_b64 exec, 1")
        g(f"s_lshl_b32 s49, s2, 2\ns_add_u32 s49, s49, {sWAVE}\ns_lshl_b32 s49, s49, 7\ns_add_u32 s49, s49, {STAMP}\nv_mov_b32 v1, 0")
        g.o.append("; STAMPS att " + " ".join(g.names['att']))
        g.o.append("; STAMPS wgt " + " ".join(g.names['wgt']))
        for q in range(5):
            for k in range(4):
                idx = 4*q+k
                g(f"v_mov_b32 v{4+k}, s{64+2*idx}" if idx <= 18 else f"v_mov_b32 v{4+k}, {sSpin}")
            g(f"buffer_store_dwordx4 v[4:7], v1, {SWS}, s49 offen offset:{16*q}\ns_nop 1")
    g("L_end:\ns_endpgm")
    g.o.append(f""".section .rodata,"a"
.p2align 6
.amdhsa_kernel {KN}
  .amdhsa_next_free_vgpr 512
  .amdhsa_next_free_sgpr 102
  .amdhsa_accum_offset 256
  .amdhsa_group_segment_fixed_size 0
  .amdhsa_kernarg_size 112
  .amdhsa_user_sgpr_count 2
  .amdhsa_user_sgpr_kernarg_segment_ptr 1
  .amdhsa_system_sgpr_workgroup_id_x 1
  .amdhsa_float_denorm_mode_32 3
.end_amdhsa_kernel""")
    return g.text()

if __name__ == '__main__':
    out = sys.argv[1]
    opt = {}
    for a in sys.argv[2:]:
        k, v = a.split('=')
        try: v = int(v, 0)
        except ValueError: pass
        opt[k] = v
    t = build(**opt)
    open(out, 'w').write(t)
    import hazard
    for p in hazard.check(t): print("HAZARD", p)
```

```python
import sys, struct
KN = "gated_mix__compressed_kv_cla__geglu_ffn__decode_kernel"
HEADER = open('gated_mix__compressed_kv_cla__geglu_ffn__decode.s.ref').read().split('; Override launch')[0]

EPOCH = 0
XC   = 0x1000
QP   = 0x10000
QA   = 0x20000
ML   = 0x30000
FP   = 0x40000
OP   = 0x50000
CTL  = 0xA0000
CTG  = 0xB0000
PART = 0x200000
STAMP = 0x600000
WSSZ = 0x700000
SPIN = 1 << 17
QB = 131072
SCALE = 0.08838834764831845 * 1.4426950408889634
DPP = "row_mask:0xf bank_mask:0xf"

def f2u(f): return struct.unpack('<I', struct.pack('<f', f))[0]

class G:
    def __init__(self, **opt):
        self.o = []
        self.opt = dict(WSB=0, STAMPS=0, NT='nt', WIN=26, WQNT='nt', UKNT='nt', HMAP='str',
                        PF1=2, PF1W=1, PF2W=1, NS=4, LA=2, LQ=0, NX=2, XH=4, NLOC=24, FW=10, N1=2, N2=16)
        self.opt.update(opt)
        self.names = {'att': [], 'wgt': []}; self.role = 'att'
        self.lab = 0
        self.tailcode = []
    def __call__(self, s):
        for l in s.strip('\n').split('\n'):
            l = l.strip()
            if l: self.o.append(l if l.endswith(':') else '    ' + l)
    def label(self, p):
        self.lab += 1
        return f"L_{p}_{self.lab}"
    def stamp(self, name):
        if self.opt['STAMPS']:
            L = self.names[self.role]
            if name not in L: L.append(name)
            k = L.index(name)
            assert k < 18
            self(f"{'s_memtime' if self.opt.get('CLK') else 's_memrealtime'} s[{64+2*k}:{65+2*k}]")
    def text(self): return '\n'.join(self.o) + '\n'

def vr(b, n=1): return f"v{b}" if n == 1 else f"v[{b}:{b+n-1}]"
def ar(b, n=1): return f"a{b}" if n == 1 else f"a[{b}:{b+n-1}]"

sWAVE = 's3'
SX, SA, SB, SC, SWS, SD, SE, SF, SG = 's[4:7]', 's[8:11]', 's[12:15]', 's[16:19]', 's[20:23]', 's[24:27]', 's[28:31]', 's[32:35]', 's[36:39]'
sT = ['s40', 's41', 's42', 's43']
sXg, sIdx, sH, sQt = 's44', 's45', 's46', 's47'
sSpin = 's48'

def srd_tail(g, base, size):
    g(f"s_mov_b32 s{base+2}, {size}\ns_mov_b32 s{base+3}, 0x20000")
def common_epoch(g):
    if g.opt['WSB']:
        g(f"s_add_u32 s20, s20, {g.opt['WSB']}\ns_addc_u32 s21, s21, 0")
    g(f"s_load_dword s40, s[20:21], {EPOCH}")
def epoch_finish(g):
    g("s_waitcnt lgkmcnt(0)")
    g("s_add_u32 s40, s40, 0x01010101\ns_lshr_b32 s41, s40, 8\ns_lshr_b32 s42, s40, 16\ns_lshr_b32 s43, s40, 24")
def spin_check(g):
    g(f"s_add_u32 {sSpin}, {sSpin}, 1\ns_cmp_gt_u32 {sSpin}, {SPIN}\ns_cbranch_scc1 L_end")
def head_id(g):
    if g.opt['HMAP'] == 'adj':
        g(f"s_lshr_b32 s49, {sIdx}, 2\ns_lshl_b32 {sH}, {sXg}, 2\ns_add_u32 {sH}, {sH}, s49")
    else:
        g(f"s_lshr_b32 s49, {sIdx}, 2\ns_lshl_b32 {sH}, s49, 3\ns_add_u32 {sH}, {sH}, {sXg}")
    g(f"s_and_b32 {sQt}, {sIdx}, 3")
def quad_sum(g, base, n):
    for k in range(n): g(f"v_add_f32_dpp v{base+k}, v{base+k}, v{base+k} quad_perm:[1,0,3,2] {DPP}")
    for k in range(n): g(f"v_add_f32_dpp v{base+k}, v{base+k}, v{base+k} quad_perm:[2,3,0,1] {DPP}")
def ror_sum(g, base, n):
    for sh in (4, 8):
        for k in range(n): g(f"v_add_f32_dpp v{base+k}, v{base+k}, v{base+k} row_ror:{sh} {DPP}")

class Pend:
    def __init__(self, g, cnt, cap): self.g, self.cnt, self.cap, self.q = g, cnt, cap, []
    def add(self, tag, n=1): self.q += [tag]*n
    def wait(self, tag):
        if tag in self.q:
            idx = max(i for i, t in enumerate(self.q) if t == tag)
            n = len(self.q) - 1 - idx
            self.g(f"s_waitcnt {self.cnt}({min(n, self.cap)})")
            del self.q[:len(self.q) - min(n, self.cap)]
    def clear(self): self.q = []

vAa, vQa, vQd, vTr, vMask, vFF, vE, vQo = 36, 240, 200, 192, 16, 214, 196, 248
VF, CL, MW = QB + 11264, QB + 12288, QB + 13312

def att_setup(g):
    g(f"""
    v_lshlrev_b32 v7, 4, v0
    v_and_b32 v220, 15, v0
    v_mov_b32 v{vFF}, 0xff
    v_mov_b32 v215, 0x10001
    v_mov_b32 v11, 0
    v_and_b32 v3, 6, v0
    v_bfe_u32 v4, v0, 3, 1
    v_or_b32 v3, v3, v4
    v_lshrrev_b32 v4, 5, v0
    v_xor_b32 v3, v3, v4
    v_lshlrev_b32 v3, 4, v3
    v_and_b32 v5, 7, v0
    v_lshl_add_u32 v3, v5, 7, v3
    v_bfe_u32 v5, v0, 3, 2
    v_lshl_add_u32 v3, v5, 13, v3
    v_add_u32 v{vAa}, s54, v3
    s_lshl_b32 s49, {sWAVE}, 13
    s_add_u32 s34, s49, {QA}
    s_add_u32 s35, s49, {QB}
    """)
    for s in range(1, 4): g(f"v_xor_b32 v{vAa+s}, {s*32}, v{vAa}")
    g(f"""
    v_xor_b32 v3, v220, v4
    v_lshlrev_b32 v3, 4, v3
    v_and_b32 v5, 31, v0
    v_lshl_add_u32 v3, v5, 10, v3
    v_add_u32 v{vQa}, {QB}, v3
    s_and_b32 s49, {sWAVE}, 1
    s_lshl_b32 s49, s49, 7
    v_xor_b32 v{vQo}, s49, v7
    v_add_u32 v{vQo}, s35, v{vQo}
    """)
    for s in range(1, 8): g(f"v_xor_b32 v{vQa+s}, {s*32}, v{vQa}\nv_xor_b32 v{vQo+s}, {s*16}, v{vQo}")
    g(f"""
    v_bfe_u32 v3, v0, 2, 3
    v_and_b32 v4, 6, v3
    v_bfe_u32 v5, v0, 1, 1
    v_xor_b32 v4, v4, v5
    v_lshlrev_b32 v4, 4, v4
    v_lshl_add_u32 v4, v3, 7, v4
    v_and_b32 v5, 1, v0
    v_lshl_add_u32 v4, v5, 3, v4
    v_lshrrev_b32 v5, 5, v0
    v_lshl_add_u32 v4, v5, 14, v4
    s_lshl_b32 s49, {sWAVE}, 5
    v_xor_b32 v{vTr}, s49, v4
    v_xor_b32 v{vTr+1}, 16, v{vTr}
    v_add_u32 v{vTr+1}, 8192, v{vTr+1}
    v_add_u32 v{vTr+2}, 0x10000, v{vTr}
    v_add_u32 v{vTr+3}, 0x10000, v{vTr+1}
    v_lshlrev_b32 v4, 7, v3
    v_lshrrev_b32 v3, 1, v3
    v_lshl_add_u32 v4, v3, 5, v4
    v_and_b32 v3, 3, v0
    v_lshl_add_u32 v4, v3, 3, v4
    v_lshl_add_u32 v4, v5, 13, v4
    s_and_b32 s49, {sWAVE}, 1
    s_lshl_b32 s49, s49, 6
    v_xor_b32 v4, s49, v4
    s_lshr_b32 s49, {sWAVE}, 1
    s_lshl_b32 s49, s49, 10
    v_add_u32 v44, s49, v4
    v_xor_b32 v45, 32, v44
    v_add_u32 v46, 0x10000, v44
    v_add_u32 v47, 0x10000, v45
    v_bfe_u32 v3, v0, 3, 2
    v_lshl_add_u32 v3, v3, 6, v5
    v_lshlrev_b32 v10, 13, v3
    v_lshrrev_b32 v3, 4, v0
    v_bfe_u32 v4, v0, 1, 2
    v_xor_b32 v3, v3, v4
    v_lshl_add_u32 v10, v3, 5, v10
    v_and_b32 v3, 1, v0
    v_lshl_add_u32 v10, v3, 4, v10
    v_lshlrev_b32 v3, 4, v3
    v_mov_b32 v4, 0xffff
    v_lshlrev_b32 v3, v3, v4
    v_bfe_u32 v4, v0, 1, 3
    """)
    for k in range(4):
        g(f"v_cmp_eq_u32 vcc, {k}, v4\ns_nop 1\nv_cndmask_b32 v{vMask+k}, 0, v3, vcc")
    g(f"""
    v_and_b32 v3, 31, v0
    v_lshlrev_b32 v223, 5, v3
    v_add_u32 v223, {QB}, v223
    v_lshrrev_b32 v4, 5, v0
    v_lshl_add_u32 v222, v4, 2, v223
    s_lshl_b32 s49, {sWAVE}, 3
    v_add_u32 v222, s49, v222
    s_add_u32 s49, s49, {MW}
    v_mov_b32 v210, s49
    v_lshlrev_b32 v226, 4, v220
    v_lshl_add_u32 v226, v4, 8, v226
    v_bfe_u32 v4, v0, 4, 1
    v_lshl_add_u32 v226, v4, 10, v226
    s_lshl_b32 s49, {sWAVE}, 11
    s_add_u32 s49, s49, {QB+2048}
    v_add_u32 v226, s49, v226
    v_add_u32 v227, {QB+2048}, v7
    v_lshlrev_b32 v228, 4, v3
    v_lshrrev_b32 v4, 4, v0
    v_lshlrev_b32 v229, 4, v220
    v_lshl_add_u32 v230, v4, 15, v229
    v_lshl_add_u32 v208, v4, 3, v229
    s_lshl_b32 s49, {sWAVE}, 8
    s_add_u32 s49, s49, {CL}
    v_add_u32 v208, s49, v208
    v_lshl_add_u32 v229, v4, 12, v229
    v_and_b32 v3, 7, v0
    v_lshl_add_u32 v3, v3, 2, v4
    v_lshlrev_b32 v231, 9, v3
    v_and_b32 v3, 3, v0
    v_lshlrev_b32 v209, 8, v3
    v_lshl_add_u32 v209, v4, 4, v209
    v_add_u32 v209, {CL}, v209
    v_mov_b32 v211, {VF}
    v_lshrrev_b32 v3, 1, v220
    v_lshlrev_b32 v6, 6, v3
    v_and_b32 v3, 1, v0
    v_lshl_add_u32 v6, v3, 3, v6
    s_lshl_b32 s58, {sWAVE}, 20
    s_lshl_b32 s49, {sH}, 10
    s_add_u32 s58, s58, s49
    s_lshl_b32 s49, {sQt}, 8
    s_add_u32 s58, s58, s49
    s_add_u32 s58, s58, {PART}
    s_lshl_b32 s4, s50, 15
    s_lshl_b32 s49, {sWAVE}, 8
    s_add_u32 s4, s4, s49
    s_add_u32 s4, s4, {PART}
    s_add_u32 s5, s4, 16384
    s_lshl_b32 s59, {sWAVE}, 14
    s_lshl_b32 s49, {sH}, 4
    s_add_u32 s59, s59, s49
    s_add_u32 s59, s59, {ML}
    s_lshl_b32 s6, {sH}, 2
    s_add_u32 s6, s6, {sWAVE}
    s_lshl_b32 s6, s6, 9
    s_lshl_b32 s49, {sQt}, 4
    s_add_u32 s6, s6, s49
    s_add_u32 s7, s6, {CTG}
    s_add_u32 s6, s6, {CTL}
    s_lshl_b32 s60, {sQt}, 2
    s_add_u32 s60, s60, {sWAVE}
    s_lshl_b32 s60, s60, 15
    s_lshl_b32 s49, {sH}, 8
    s_add_u32 s60, s60, s49
    s_lshl_b32 s49, {sWAVE}, 3
    s_lshl_b32 s62, 0xff, s49
    s_mov_b32 s63, 0
    s_lshl_b32 s32, s50, 9
    s_add_u32 s32, s32, {ML}
    s_mov_b32 s37, {f2u(SCALE):#x}
    """)
    epoch_finish(g)
    g(f"""
    v_mov_b32 v234, {sT[0]}
    v_mov_b32 v235, {sT[0]}
    v_lshlrev_b32 v3, 4, v3
    v_lshrrev_b32 v12, v3, v234
    v_lshrrev_b32 v13, 8, v12
    v_and_b32 v3, 3, v0
    v_lshlrev_b32 v3, 3, v3
    v_lshrrev_b32 v3, v3, v234
    v_bfe_i32 v5, v0, 4, 1
    s_bfe_i32 s49, s50, 0x10000
    """)
    for j in range(4):
        g(f"v_bfe_u32 v4, v3, {2*j}, 2\nv_lshl_or_b32 v{vE+j}, v4, 15, v4\nv_xor_b32 v{20+j}, s49, v{vE+j}\nv_xor_b32 v{40+j}, v5, v{vE+j}")

def attention(g):
    o = g.opt
    NT = o['NT']
    g("L_att:")
    g("""
    s_load_dwordx2 s[12:13], s[0:1], 16
    s_load_dwordx2 s[24:25], s[0:1], 24
    s_load_dwordx2 s[8:9], s[0:1], 8
    s_load_dwordx2 s[20:21], s[0:1], 104
    s_load_dwordx2 s[16:17], s[0:1], 88
    s_load_dwordx2 s[28:29], s[0:1], 32
    """)
    srd_tail(g, 12, 640*8192); srd_tail(g, 24, 512*8192); srd_tail(g, 8, 16384*1024); srd_tail(g, 20, WSSZ); srd_tail(g, 16, 1280); srd_tail(g, 28, 512*8192)
    vDma = 14
    g(f"s_and_b32 {sXg}, s2, 7\ns_lshr_b32 {sIdx}, s2, 3")
    head_id(g)
    g(f"""
    s_lshl_b32 s50, {sXg}, 4
    s_add_u32 s50, s50, {sIdx}
    v_bfe_u32 v3, v0, 2, 2
    v_mul_u32_u24 v2, 40, v3
    v_bfe_u32 v3, v0, 1, 1
    v_add_u32 v2, v2, v3
    v_bfe_u32 v3, v0, 4, 1
    v_lshl_add_u32 v2, v3, 3, v2
    v_lshlrev_b32 v2, 13, v2
    v_and_b32 v3, 1, v0
    v_lshl_add_u32 v2, v3, 7, v2
    v_lshrrev_b32 v1, 1, v0
    v_lshlrev_b32 v1, 13, v1
    v_lshl_add_u32 v1, v3, 7, v1
    s_mul_i32 s51, {sQt}, {160*8192}
    s_lshl_b32 s52, {sWAVE}, 14
    s_add_u32 s51, s51, s52
    s_lshl_b32 s49, {sH}, 8
    s_add_u32 s51, s51, s49
    s_add_u32 s51, s51, {(40-8*o['PF1'])*8192}
    s_lshl_b32 s52, {sQt}, 2
    s_add_u32 s52, s52, {sWAVE}
    s_lshl_b32 s52, s52, 18
    s_add_u32 s52, s52, s49
    v_lshrrev_b32 v3, 3, v0
    v_and_b32 v4, 6, v3
    v_and_b32 v5, 7, v0
    v_xor_b32 v4, v4, v5
    v_lshlrev_b32 v4, 4, v4
    v_lshl_add_u32 v{vDma}, v3, 10, v4
    v_xor_b32 v{vDma+1}, 16, v{vDma}
    s_lshl_b32 s53, s50, 17
    s_lshl_b32 s54, {sWAVE}, 15
    s_add_u32 s53, s53, s54
    s_waitcnt lgkmcnt(0)
    """)
    g.stamp('karg')
    if o['PF1']:
        g(f"s_mov_b32 exec_hi, 0\ns_mov_b32 exec_lo, {'0xffff' if o['PF1'] == 1 else '-1'}\nbuffer_load_dword v8, v2, {SB}, s51 offen\ns_mov_b64 exec, -1")
    pfuk = f"buffer_load_dword v9, v1, {SD}, s52 offen"
    if not o['PF1W']: g(pfuk)
    common_epoch(g)
    att_setup(g)
    if o['PF1W']: g("s_waitcnt vmcnt(0)\n" + pfuk)
    if o['PF2W']: g("s_waitcnt vmcnt(0)")
    if True:
        sk = g.label("xc")
        g(f"""
        s_getreg_b32 s56, hwreg(HW_REG_XCC_ID, 0, 4)
        s_cmp_lg_u32 {sWAVE}, 1
        s_cbranch_scc1 {sk}
        v_mov_b32 v4, s56
        v_mov_b32 v5, {sT[0]}
        s_lshl_b32 s49, s50, 3
        s_add_u32 s49, s49, {XC}
        s_mov_b64 exec, 1
        buffer_store_dwordx2 v[4:5], v11, {SWS}, s49 offen sc1
        s_mov_b64 exec, -1
        {sk}:
        """)
    g.stamp('go')
    vS, vQr, vOw = 48, 128, 64
    def qld():
        for i in range(8):
            if i == 4: g("s_add_u32 s49, s34, 4096")
            g(f"buffer_load_dwordx4 {vr(vOw+4*i,4)}, v7, {SWS}, {'s34' if i < 4 else 's49'} offen offset:{(i&3)*1024} sc1")
    lg = Pend(g, 'lgkmcnt', 15)
    def rdA(cb):
        for s in range(4*cb, 4*cb+4): g(f"ds_read_b128 {ar(4*s,4)}, v{vAa+(s&3)} offset:{cb*1024}"); lg.add(('A', s))
    def rdT1(ct, t, rho):
        g(f"ds_read_b64_tr_b16 {ar(128+(ct*4+t)*4+2*rho,2)}, v{vTr+(t>>1)*2+rho} offset:{(t&1)*32768+ct*1024}"); lg.add(('T', ct, t, rho))
    NS, LA, LQ, NX = o['NS'], o['LA'], o['LQ'], o['NX']
    vm = Pend(g, 'vmcnt', 63)
    def cdma1(cb, ro):
        g(f"s_add_u32 m0, s54, {ro*8192+cb*1024}\ns_add_u32 s49, s53, {ro*8192+cb*128}")
        g(f"buffer_load_dwordx4 v{vDma+(ro&1)}, {SA}, s49 offen {NT} lds")
        vm.add(('C', cb))
    done = 0
    def consume(cb):
        vm.wait(('C', cb)); rdA(cb); g("s_barrier")
        for t in range(4):
            for rho in range(2): rdT1(cb, t, rho)
    for cb in range(NS):
        for ro in range(4): cdma1(cb, ro)
        if cb >= LA: consume(done); done += 1
    while done < NS - LQ: consume(done); done += 1
    g.stamp('pre')
    qld()
    for i in range(8): vm.add(('Q', i))
    late = list(range(done, NS))
    assert done >= 2
    for cb in late:
        vm.wait(('C', cb)); rdA(cb)
    g(f"s_mov_b32 {sSpin}, 0")
    Lq, Lqr = g.label("q"), g.label("qr")
    dq = [(cb, ro) for cb in range(NS, 8) for ro in range(4)]
    def qstage(first):
        nx = 4*NX
        for i in range(8):
            if first: vm.wait(('Q', i))
            else: g(f"s_waitcnt vmcnt({7-i})")
            if first and i == 0: g.stamp('q0')
            g(f"ds_write_b128 v{vQo+i}, {vr(vOw+4*i,4)} offset:{i*1024}")
            for j in range(4):
                if i == 0 and j == 0: g(f"v_xor_b32 v2, v{vOw}, v{vE}")
                else: g(f"v_bitop3_b32 v2, v2, v{vOw+4*i+j}, v{vE+j} bitop3:0xf6")
            if first:
                for _ in range((4*NX+7)//8):
                    if dq and nx: cdma1(*dq.pop(0)); nx -= 1
        g(f"v_and_b32 v2, 0x10001, v2\nv_cmp_ne_u32 vcc, 0, v2\ns_waitcnt lgkmcnt(0)\ns_cbranch_vccnz {Lqr}")
    qstage(True)
    g(f"{Lq}:\ns_barrier")
    lg.clear()
    def qretry():
        g(f"{Lqr}:")
        qld()
        spin_check(g)
        qstage(False)
        g(f"s_branch {Lq}")
    g.tailcode.append(qretry)
    g.stamp('qok')
    def rdQ(s): g(f"ds_read_b128 {vr(vQr+4*(s%16),4)}, v{vQa+(s&7)} offset:{(s>>3)*256}"); lg.add(('Q', s))
    def mm(s): g(f"v_mfma_f32_32x32x16_bf16 {vr(vS,16)}, {ar(4*s,4)}, {vr(vQr+4*(s%16),4)}, {'0' if s == 0 else vr(vS,16)}")
    def uvdma(k):
        rg, dh = k >> 1, k & 1
        g(f"s_add_u32 m0, s54, {rg*8192+dh*1024}\ns_add_u32 s49, s60, {(256*(rg>>1)+2*(rg&1))*8192+dh*128}")
        g(f"buffer_load_dwordx4 v10, {SE}, s49 offen {NT} lds")
    D = 4
    tl = [(ct, t, rho) for ct in late for t in range(4) for rho in range(2)]
    qn = 0
    while qn < D: rdQ(qn); qn += 1
    SB_ = 27
    for s in range(32):
        nb = (s >> 2) + 1
        if s & 3 == 0 and NS <= nb < 8:
            while any(x[0] <= nb for x in dq): cdma1(*dq.pop(0))
            vm.wait(('C', nb)); rdA(nb)
        lg.wait(('Q', s)); lg.wait(('A', s)); mm(s)
        while qn < min(32, s + 1 + D + max(0, s - 18)): rdQ(qn); qn += 1
        for _ in range(2):
            if tl: rdT1(*tl.pop(0))
        if dq: cdma1(*dq.pop(0))
        if s == SB_:
            lg.wait(('Q', 31)); g("s_barrier")
            g.stamp('qk0')
            tl = [(ct, t, rho) for ct in range(NS, 8) for t in range(4) for rho in range(2)]
    g.stamp('qk')
    for _ in range(10):
        if tl: rdT1(*tl.pop(0))
        else: g("s_nop 0")
    tailT = tl
    g(f"v_max3_f32 v3, v{vS}, v{vS+1}, v{vS+2}\nv_max3_f32 v4, v{vS+3}, v{vS+4}, v{vS+5}")
    for k in range(6, 14, 4): g(f"v_max3_f32 v3, v3, v{vS+k}, v{vS+k+1}\nv_max3_f32 v4, v4, v{vS+k+2}, v{vS+k+3}")
    g(f"v_max3_f32 v3, v3, v{vS+14}, v{vS+15}\nv_max_f32 v3, v3, v4")
    g("ds_write_b32 v222, v3")
    for k in range(8): g(f"v_mul_f32 v{vS+k}, s37, v{vS+k}")
    g("s_waitcnt lgkmcnt(0)\ns_barrier")
    g.stamp('mx')
    g("ds_read_b128 v[24:27], v223\nds_read_b128 v[28:31], v223 offset:16")
    vM = 232
    for k in range(8, 16): g(f"v_mul_f32 v{vS+k}, s37, v{vS+k}")
    g(f"s_waitcnt lgkmcnt(1)\nv_max3_f32 v{vM}, v24, v25, v26\ns_waitcnt lgkmcnt(0)\nv_max3_f32 v3, v27, v28, v29\nv_max3_f32 v{vM}, v{vM}, v30, v31\nv_max_f32 v{vM}, v{vM}, v3\nv_mul_f32 v{vM}, s37, v{vM}")
    for hb in range(2):
        for k in range(8*hb, 8*hb+8): g(f"v_sub_f32 v{vS+k}, v{vS+k}, v{vM}")
        for k in range(8*hb, 8*hb+8): g(f"v_exp_f32 v{vS+k}, v{vS+k}")
        for k in range(4*hb, 4*hb+4): g(f"v_cvt_pk_bf16_f32 v{24+k}, v{vS+2*k}, v{vS+2*k+1}")
        g(f"ds_write_b128 v226, {vr(24+4*hb,4)} offset:{512*hb}")
    for k in range(4): g(f"v_pk_add_f32 {vr(vS+2*k,2)}, {vr(vS+2*k,2)}, {vr(vS+8+2*k,2)}")
    for k in range(2): g(f"v_pk_add_f32 {vr(vS+2*k,2)}, {vr(vS+2*k,2)}, {vr(vS+4+2*k,2)}")
    g(f"v_pk_add_f32 {vr(vS,2)}, {vr(vS,2)}, {vr(vS+2,2)}\nv_add_f32 v{vS}, v{vS}, v{vS+1}")
    g(f"ds_write_b32 v222, v{vS} offset:1024\ns_waitcnt lgkmcnt(0)\ns_barrier")
    g.stamp('P')
    vP, vAcc, vO = 128, 64, 160
    lg.clear()
    for ht in range(2):
        for t in range(4):
            g(f"ds_read_b128 {vr(vP+(t*2+ht)*4,4)}, v227 offset:{(t*2+ht)*1024}"); lg.add(('P', t, ht))
        if ht == 0: g("ds_read_b128 v[48:51], v223 offset:1024\nds_read_b128 v[52:55], v223 offset:1040"); lg.add('L', 2)
    fill = {}
    def add(n, txt): fill.setdefault(n, []).append(txt)
    b = 3
    add(b, ('W', 'L')); add(b, "v_add_f32 v48, v48, v52\nv_add_f32 v49, v49, v53")
    add(b+1, "v_add_f32 v50, v50, v54\nv_add_f32 v51, v51, v55")
    add(b+2, "v_add_f32 v48, v48, v50\nv_add_f32 v49, v49, v51")
    add(b+3, f"v_add_f32 v{vM+1}, v48, v49")
    add(b+4, f"s_mov_b64 exec, s[62:63]\nbuffer_store_dwordx4 {vr(vM,4)}, v228, {SWS}, s32 offen sc1\ns_mov_b64 exec, -1")
    for k, x in enumerate(tailT): add(8 + k//2, ('T',) + x)
    def cvt(ht, r, k): return f"v_cvt_pk_bf16_f32 v{vO+(ht*4+r)*4+k}, v{vAcc+(ht*8+2*k)*4+r}, v{vAcc+(ht*8+2*k+1)*4+r}"
    def tag(ht, r, k): return f"v_bfi_b32 v{vO+(ht*4+r)*4+k}, v215, v{20+k}, v{vO+(ht*4+r)*4+k}"
    def pst(ht, r): return f"buffer_store_dwordx4 {vr(vO+(ht*4+r)*4,4)}, v229, {SWS}, s{4+ht} offen offset:{r*1024} sc1"
    seq = [(0, r, k) for k in range(3) for r in range(4)]
    for i, x in enumerate(seq): add(24 + i, cvt(*x) + "\n" + tag(*x))
    for r in range(4):
        add(38 + 2*r, cvt(0, r, 3) + "\n" + tag(0, r, 3)); add(39 + 2*r, pst(0, r))
    seq = [(1, r, k) for k in range(3) for r in range(4)]
    for i, x in enumerate(seq): add(48 + i + 2*x[2], cvt(*x) + "\n" + tag(*x))
    nm = 0
    for ht in range(2):
        for ct in range(8):
            for t in range(4):
                lg.wait(('P', t, ht)); lg.wait(('T', ct, t, 1))
                acc = vAcc + (ht*8+ct)*4
                g(f"v_mfma_f32_16x16x32_bf16 {vr(acc,4)}, {vr(vP+(t*2+ht)*4,4)}, {ar(128+(ct*4+t)*4,4)}, {'0' if t == 0 else vr(acc,4)}")
                for f in fill.get(nm, []):
                    if isinstance(f, tuple) and f[0] == 'T': rdT1(*f[1:])
                    elif isinstance(f, tuple) and f[0] == 'W': lg.wait(f[1])
                    else: g(f)
                nm += 1
    g.stamp('pv')
    vML = 24
    mll = f"buffer_load_dwordx3 {vr(vML,3)}, v231, {SWS}, s59 offen sc1"
    g(f"s_mov_b32 {sSpin}, 0\ns_nop 4")
    for r in range(4): g(cvt(1, r, 3) + "\n" + tag(1, r, 3) + "\n" + pst(1, r))
    for k in range(8): uvdma(k)
    g(mll)
    Lm, Lmok = g.label("ml"), g.label("mlok")
    g(f"s_waitcnt vmcnt(0)")
    g.stamp('ack')
    g(f"{Lm}:\nv_cmp_ne_u32 vcc, {sT[0]}, v{vML+2}\ns_cbranch_vccz {Lmok}\n{mll}")
    spin_check(g)
    g(f"s_waitcnt vmcnt(0)\ns_branch {Lm}\n{Lmok}:")
    g.stamp('ml')
    dppm = ["quad_perm:[1,0,3,2]", "quad_perm:[2,3,0,1]", "row_half_mirror"]
    def red32(reg, tmp, op):
        for m in dppm: g(f"s_nop 1\n{op}_dpp v{reg}, v{reg}, v{reg} {m} {DPP}")
        g(f"v_mov_b32 v{tmp}, v{reg}\ns_nop 1\nv_permlane16_swap_b32 v{reg}, v{tmp}\n{op} v{reg}, v{reg}, v{tmp}")
        g(f"v_mov_b32 v{tmp}, v{reg}\ns_nop 1\nv_permlane32_swap_b32 v{reg}, v{tmp}\n{op} v{reg}, v{reg}, v{tmp}")
    vRB, vRA = 128, 64
    def pld(u): g(f"s_add_u32 s49, s58, {u*0x20000}\nbuffer_load_dwordx4 {vr(vRB+4*u,4)}, v230, {SWS}, s49 offen sc1")
    for u in range(8): pld(u)
    g("s_barrier")
    for sx in range(4):
        for rho in range(2):
            for dt in range(2): g(f"ds_read_b64_tr_b16 {ar((dt*4+sx)*4+2*rho,2)}, v{44+(sx>>1)*2+dt} offset:{(sx&1)*32768+rho*16384}")
    g(f"v_mov_b32 v28, v{vML}")
    red32(28, 3, "v_max_f32")
    g(f"v_sub_f32 v{vML}, v{vML}, v28\nv_exp_f32 v{vML}, v{vML}\ns_nop 0\nv_cvt_pk_bf16_f32 v{vML}, v{vML}, v{vML}\nv_and_b32 v29, 0xffff0000, v{vML}\nv_mul_f32 v29, v29, v{vML+1}")
    for u in range(8):
        for r in range(4): g(f"v_and_b32_dpp v{vRA+4*u+r}, v{vML}, v{vMask+r} row_newbcast:{u} {DPP}")
    red32(29, 3, "v_add_f32")
    g(f"ds_write_b64 v210, v[28:29]\ns_mov_b32 {sSpin}, 0")
    rl = [(g.label("pr"), g.label("pc")) for _ in range(8)]
    def pchk(u):
        g(f"v_xor_b32 v3, v{vRB+4*u}, v40")
        for j in range(1, 4): g(f"v_bitop3_b32 v3, v3, v{vRB+4*u+j}, v{40+j} bitop3:0xf6")
        g("v_and_b32 v3, 0x10001, v3\nv_cmp_ne_u32 vcc, 0, v3")
    for u in range(8):
        g(f"{rl[u][1]}:\ns_waitcnt vmcnt({7-u})")
        pchk(u)
        g(f"s_cbranch_vccnz {rl[u][0]}")
        g(f"v_mfma_f32_16x16x32_bf16 v[32:35], {vr(vRA+4*u,4)}, {vr(vRB+4*u,4)}, {'0' if u == 0 else 'v[32:35]'}")
    def pretry():
        for u in range(8):
            g(f"{rl[u][0]}:")
            for k in range(u, 8): pld(k)
            spin_check(g)
            g(f"s_branch {rl[u][1]}")
    g.tailcode.append(pretry)
    g.stamp('red')
    g("s_mov_b32 exec_hi, 0\ns_nop 6\nv_cvt_pk_bf16_f32 v32, v32, v33\nv_cvt_pk_bf16_f32 v33, v34, v35\nds_write_b64 v208, v[32:33]\ns_mov_b32 exec_hi, -1\ns_waitcnt lgkmcnt(0)\ns_barrier")
    g(f"ds_read_b128 v[64:67], v209\nds_read_b128 v[24:27], v211 offset:{MW-VF}\nds_read_b128 v[28:31], v211 offset:{MW-VF+16}")
    for sx in range(1, 4): g(f"ds_read_b128 {vr(64+4*sx,4)}, v209 offset:{64*sx}")
    fl = ["s_waitcnt lgkmcnt(3)\nv_max3_f32 v3, v24, v26, v28\nv_max_f32 v3, v3, v30",
          "v_sub_f32 v24, v24, v3\nv_sub_f32 v26, v26, v3", "v_sub_f32 v28, v28, v3\nv_sub_f32 v30, v30, v3",
          "v_exp_f32 v24, v24\nv_exp_f32 v26, v26", "v_exp_f32 v28, v28\nv_exp_f32 v30, v30",
          "v_mul_f32 v3, v24, v25\nv_fmac_f32 v3, v26, v27", "v_fmac_f32 v3, v28, v29\nv_fmac_f32 v3, v30, v31", "v_rcp_f32 v3, v3"]
    i = 0
    for sx in range(4):
        g(f"s_waitcnt lgkmcnt({5 if sx == 0 else 3-sx})")
        for dt in range(2):
            g(f"v_mfma_f32_16x16x32_bf16 {vr(96+4*dt,4)}, {vr(64+4*sx,4)}, {ar((dt*4+sx)*4,4)}, {'0' if sx == 0 else vr(96+4*dt,4)}")
            g(fl[i]); i += 1
    g("s_nop 3")
    g("v_mul_f32 v32, v24, v96\nv_fmac_f32 v32, v26, v97\nv_fmac_f32 v32, v28, v98\nv_fmac_f32 v32, v30, v99")
    g("v_mul_f32 v33, v24, v100\nv_fmac_f32 v33, v26, v101\nv_fmac_f32 v33, v28, v102\nv_fmac_f32 v33, v30, v103")
    g(f"v_mul_f32 v32, v3, v32\nv_mul_f32 v33, v3, v33\nv_bfi_b32 v32, v{vFF}, v12, v32\nv_bfi_b32 v33, v{vFF}, v13, v33")
    g(f"s_mov_b64 exec, 0xffff\nbuffer_store_dwordx2 v[32:33], v6, {SWS}, s6 offen\nbuffer_store_dwordx2 v[32:33], v6, {SWS}, s7 offen sc1\ns_mov_b64 exec, -1")
    g.stamp('ct')
    g("s_barrier")
    g(f"""
    s_lshl_b32 s49, {sWAVE}, 4
    s_add_u32 s49, s49, {sIdx}
    s_and_b32 s50, s49, 0xf8
    s_add_u32 s50, s50, {sXg}
    s_cmp_ge_u32 s50, 20
    s_cbranch_scc1 L_fin
    s_and_b32 s49, s49, 7
    s_lshl_b32 s51, s50, 3
    s_add_u32 s51, s51, s49
    s_lshl_b32 s52, s51, 4
    s_add_u32 s52, s52, {OP}
    s_add_u32 s53, s52, {64*2560}
    v_mul_u32_u24 v3, 2560, v0
    s_lshr_b32 s54, s51, 4
    s_lshl_b32 s54, s54, 7
    s_and_b32 s51, s51, 15
    s_lshl_b32 s51, s51, 1
    s_add_u32 s54, s54, s51
    v_bfe_u32 v4, v0, 4, 1
    v_lshlrev_b32 v4, 6, v4
    v_lshrrev_b32 v5, 5, v0
    v_lshl_add_u32 v4, v5, 5, v4
    s_mov_b32 {sSpin}, 0
    """)
    Lo = g.label("o")
    g(f"{Lo}:")
    g(f"buffer_load_dwordx4 v[24:27], v3, {SWS}, s52 offen sc1\nbuffer_load_dwordx4 v[28:31], v3, {SWS}, s53 offen sc1")
    spin_check(g)
    g(f"s_waitcnt vmcnt(1)\nv_xor_b32 v5, {sT[0]}, v24")
    for r in range(1, 4): g(f"v_bitop3_b32 v5, v5, v{24+r}, {sT[r]} bitop3:0xf6")
    g("s_waitcnt vmcnt(0)")
    for r in range(4): g(f"v_bitop3_b32 v5, v5, v{28+r}, {sT[r]} bitop3:0xf6")
    g(f"v_and_b32 v5, 0xff, v5\nv_cmp_ne_u32 vcc, 0, v5\ns_cbranch_vccnz {Lo}")
    g.stamp('op')
    g(f"""
    v_pk_add_f32 v[24:25], v[24:25], v[28:29]
    v_pk_add_f32 v[26:27], v[26:27], v[30:31]
    s_nop 0
    v_permlane32_swap_b32 v24, v25
    v_permlane32_swap_b32 v26, v27
    v_add_f32 v24, v24, v25
    v_add_f32 v26, v26, v27
    s_nop 1
    v_permlane16_swap_b32 v24, v26
    v_add_f32 v24, v24, v26
    s_nop 1
    v_add_f32_dpp v24, v24, v24 row_ror:8 {DPP}
    s_nop 1
    v_add_f32_dpp v24, v24, v24 row_ror:4 {DPP}
    s_nop 1
    v_add_f32_dpp v24, v24, v24 row_ror:2 {DPP}
    s_nop 1
    v_add_f32_dpp v24, v24, v24 row_ror:1 {DPP}
    v_cvt_pk_bf16_f32 v24, v24, v24
    s_mov_b32 exec_lo, 0x00010001
    s_mov_b32 exec_hi, 0x00010001
    buffer_store_short v24, v4, {SC}, s54 offen
    s_or_b32 s49, s2, {sWAVE}
    s_cmp_lg_u32 s49, 0
    s_cbranch_scc1 L_fin
    s_mov_b64 exec, 1
    buffer_store_dword v234, v11, {SWS}, 0 offen sc1
    s_branch L_fin
    """)
    for f in g.tailcode: f()
    g.tailcode = []

def sel_setup(g, vSel, vt):
    t0, t1, t2 = vt, vt+1, vt+2
    g(f"""
    v_bfe_u32 v{t0}, v0, 3, 1
    v_mul_u32_u24 v{t0}, 0x0202, v{t0}
    v_add_u32 v{t0}, 0x0100, v{t0}
    v_or_b32 v{t1}, 0x0c0c0000, v{t0}
    v_lshlrev_b32 v{t0}, 16, v{t0}
    v_or_b32 v{t0}, 0x0c0c, v{t0}
    v_and_b32 v{t2}, 1, v0
    v_cmp_eq_u32 vcc, 1, v{t2}
    v_bfe_u32 v{t2}, v0, 1, 2
    v_mov_b32 v{vSel+3}, 0x0c0c0c0c
    v_cndmask_b32 v{t0}, v{t1}, v{t0}, vcc
    """)
    for r in range(4):
        g(f"v_cmp_eq_u32 vcc, {r}, v{t2}\ns_nop 1\nv_cndmask_b32 v{vSel+r}, v{vSel+3}, v{t0}, vcc")

def weight(g):
    o = g.opt
    NT = o['NT']
    g.role = "wgt"; g.names["wgt"].append("st")
    g("L_wgt:")
    g("""
    s_load_dwordx2 s[4:5], s[0:1], 0
    s_load_dwordx2 s[32:33], s[0:1], 16
    s_load_dwordx2 s[20:21], s[0:1], 104
    s_load_dwordx2 s[8:9], s[0:1], 24
    s_load_dwordx2 s[28:29], s[0:1], 80
    """)
    srd_tail(g, 4, 1280); srd_tail(g, 8, 512*8192); srd_tail(g, 32, 640*8192); srd_tail(g, 20, WSSZ); srd_tail(g, 28, 1280)
    LWO, LWD, LSCR, LUK = 0, 49152, 106496, 115712
    g(f"s_and_b32 {sXg}, s2, 7\ns_lshr_b32 {sIdx}, s2, 3\ns_sub_u32 {sIdx}, {sIdx}, 16")
    head_id(g)
    g(f"""
    v_and_b32 v1, 15, v0
    v_lshrrev_b32 v2, 4, v0
    v_mul_u32_u24 v4, 80, v2
    s_mul_i32 s50, {sQt}, 320
    s_lshl_b32 s49, {sH}, 8
    s_mul_i32 s52, {sQt}, {160*8192}
    s_add_u32 s52, s52, s49
    v_mul_u32_u24 v6, 40, v2
    v_bfe_u32 v3, v0, 3, 1
    v_add_u32 v6, v6, v3
    v_lshlrev_b32 v5, 13, v6
    v_and_b32 v3, 7, v0
    v_lshl_add_u32 v5, v3, 4, v5
    v_lshrrev_b32 v210, 2, v1
    v_lshlrev_b32 v14, 9, v210
    v_lshl_add_u32 v14, v2, 7, v14
    v_and_b32 v3, 3, v0
    v_lshl_add_u32 v14, v3, 4, v14
    s_lshl_b32 s54, {sH}, 11
    s_add_u32 s54, s54, {QP}
    v_lshlrev_b32 v7, 4, v0
    s_and_b32 s51, s2, 3
    s_mul_i32 s53, s51, 160
    s_mul_i32 s49, {sWAVE}, 10
    s_add_u32 s53, s53, s49
    s_lshl_b32 s62, s53, 1
    s_waitcnt lgkmcnt(0)
    """)
    g.stamp('karg')
    common_epoch(g)
    vXq = 224
    vXg, vGw, vXw = 144, 152, 160
    WIN = o['WIN']
    def ldq(k):
        g(f"buffer_load_dwordx4 {ar(4*k,4)}, v5, {SF}, s52 offen offset:{128*(k&1)} {o['WQNT']}")
        if k & 1: g("s_add_u32 s52, s52, 16384")
    sk = g.label("nq")
    g(f"s_cmp_lg_u32 {sWAVE}, 0\ns_cbranch_scc1 {sk}")
    for k in range(5): g(f"buffer_load_dwordx4 {vr(vXq+4*k,4)}, v4, {SX}, s50 offen offset:{16*k}")
    for k in range(WIN): ldq(k)
    g(f"buffer_load_dword v48, v14, {SWS}, s54 offen sc1")
    g(f"{sk}:")
    g(f"""
    buffer_load_dwordx4 {vr(vXw,4)}, v4, {SX}, s62 offen
    buffer_load_dword v{vXw+4}, v4, {SX}, s62 offen offset:16
    buffer_load_dwordx4 {vr(vXg,4)}, v7, {SX}, 0 offen
    buffer_load_dwordx4 {vr(vXg+4,4)}, v7, {SX}, 0 offen offset:1024
    buffer_load_dwordx4 {vr(vGw,4)}, v7, {SE}, 0 offen
    buffer_load_dwordx4 {vr(vGw+4,4)}, v7, {SE}, 0 offen offset:1024
    s_load_dwordx2 s[12:13], s[0:1], 32
    s_load_dwordx2 s[16:17], s[0:1], 40
    s_load_dwordx2 s[24:25], s[0:1], 72
    s_load_dwordx2 s[36:37], s[0:1], 64
    """)
    NXL = 7
    srd_tail(g, 12, 512*8192); srd_tail(g, 16, 4096*1280); srd_tail(g, 24, 1728*1280); srd_tail(g, 36, 640*3456)
    vSel = 16
    sel_setup(g, vSel, 8)
    vUd = 176
    vG, vTa, vTb, vFF, vTo, vGate = 44, 216, 217, 218, 244, 220
    g(f"""
    s_lshl_b32 s63, {sQt}, 2
    s_add_u32 s63, s63, {sWAVE}
    s_lshl_b32 s55, s63, 6
    s_lshl_b32 s63, s63, 18
    s_lshl_b32 s49, {sH}, 8
    s_add_u32 s63, s63, s49
    s_lshl_b32 s49, {sH}, 10
    s_add_u32 s55, s55, s49
    s_add_u32 s55, s55, {QA}
    s_lshl_b32 s62, {sWAVE}, 13
    s_add_u32 s62, s62, {LUK}
    v_lshrrev_b32 v3, 5, v0
    v_xor_b32 v3, v1, v3
    v_lshlrev_b32 v3, 4, v3
    v_lshl_add_u32 v{vUd}, v2, 13, v3
    v_xor_b32 v3, v1, v2
    v_lshlrev_b32 v3, 4, v3
    v_lshl_add_u32 v3, v1, 9, v3
    v_add_u32 v20, s62, v3
    v_xor_b32 v21, 64, v20
    v_xor_b32 v22, 128, v20
    v_xor_b32 v23, 192, v20
    v_lshlrev_b32 v15, 2, v1
    v_and_b32 v3, 3, v1
    v_lshlrev_b32 v3, 1, v3
    v_bfe_u32 v9, v0, 4, 1
    v_add_u32 v3, v3, v9
    v_lshlrev_b32 v3, 2, v3
    v_bfe_u32 v9, v0, 2, 1
    v_add_u32 v3, v3, v9
    v_lshrrev_b32 v9, 5, v0
    v_lshl_add_u32 v3, v9, 1, v3
    v_lshlrev_b32 v12, 4, v3
    s_lshl_b32 s49, {sQt}, 9
    s_add_u32 s56, s54, s49
    v_mov_b32 v24, 0x07060302
    v_mov_b32 v25, 0x00010001
    """)
    for b in range(1, 8): g(f"v_xor_b32 v{vUd+b}, {32*b}, v{vUd}")
    g(f"""
    v_lshrrev_b32 v3, 1, v0
    v_lshlrev_b32 v56, 10, v3
    v_and_b32 v9, 1, v0
    v_lshl_add_u32 v56, v9, 7, v56
    v_bfe_u32 v3, v0, 1, 4
    v_lshrrev_b32 v8, 5, v0
    v_lshl_add_u32 v3, v8, 6, v3
    v_lshlrev_b32 v165, 13, v3
    v_lshl_add_u32 v165, v9, 7, v165
    v_mul_u32_u24 v57, 3456, v6
    v_and_b32 v3, 7, v0
    v_lshl_add_u32 v57, v3, 4, v57
    s_sub_u32 s50, s2, 128
    s_lshr_b32 s50, s50, 2
    s_mul_i32 s53, s53, 3456
    s_lshl_b32 s49, s50, 7
    s_add_u32 s53, s53, s49
    s_cmp_ge_u32 s50, 27
    s_cselect_b32 s57, 0x10000000, 0
    s_add_u32 s53, s53, s57
    v_mul_u32_u24 v{vG}, 640, v8
    v_lshl_add_u32 v{vG}, v9, 8, v{vG}
    v_bfe_u32 v3, v0, 1, 3
    v_lshl_add_u32 v{vG}, v3, 4, v{vG}
    v_bfe_u32 v3, v0, 4, 1
    v_lshl_add_u32 v{vG}, v3, 10, v{vG}
    v_add_u32 v{vG}, {LSCR}, v{vG}
    v_and_b32 v10, 31, v0
    v_lshlrev_b32 v10, 4, v10
    v_lshl_add_u32 v{vG+1}, v8, 3, v10
    v_mov_b32 v{vFF}, 0xff
    s_lshl_b32 s49, {sWAVE}, 11
    s_add_u32 s49, s49, {LSCR}
    v_add_u32 v13, s49, v7
    v_bfe_u32 v10, v0, 1, 2
    v_xor_b32 v10, v2, v10
    v_lshlrev_b32 v10, 5, v10
    v_lshl_add_u32 v10, v9, 4, v10
    v_lshrrev_b32 v9, 3, v0
    v_mul_u32_u24 v30, 1280, v9
    v_add_u32 v30, v30, v10
    v_bfe_u32 v9, v0, 3, 1
    v_lshl_add_u32 v3, v9, 4, v3
    v_lshl_add_u32 v3, v8, 2, v3
    v_mul_u32_u24 v29, 1280, v3
    v_add_u32 v29, v29, v10
    s_lshl_b32 s58, s50, 2
    s_add_u32 s58, s58, s51
    s_mul_i32 s58, s58, {16*1280}
    s_lshl_b32 s49, {sWAVE}, 7
    s_add_u32 s58, s58, s49
    s_add_u32 s58, s58, s57
    s_lshl_b32 s59, {sH}, 2
    s_add_u32 s59, s59, {sQt}
    s_mul_i32 s59, s59, {32*1280}
    s_add_u32 s59, s59, s49
    s_cmp_ge_u32 {sWAVE}, 2
    s_cselect_b32 s60, 0x10000000, 0
    s_mul_i32 s61, {sWAVE}, 6144
    s_add_u32 s61, s61, {LWD}
    s_mul_i32 s57, {sWAVE}, 12288
    v_lshlrev_b32 v8, 4, v8
    v_lshlrev_b32 v3, 1, v1
    """)
    epoch_finish(g)
    g(f"""
    s_load_dwordx2 s[28:29], s[0:1], 56
    s_mov_b32 s30, {640*3456}
    v_mov_b32 v42, {sT[0]}
    v_mov_b32 v43, {sT[0]}
    v_lshrrev_b32 v3, v3, v42
    v_and_b32 v3, 3, v3
    v_lshl_or_b32 v26, v3, 15, v3
    v_not_b32 v3, v26
    v_and_b32 v28, 0x10000, v3
    v_lshlrev_b32 v3, 16, v3
    v_and_b32 v27, 0x10000, v3
    v_lshrrev_b32 v{vTa}, v8, v42
    v_lshrrev_b32 v{vTb}, 8, v{vTa}
    """)
    vUk = 184
    Lw1 = g.label("now1")
    g(f"s_cmp_lg_u32 {sWAVE}, 0\ns_cbranch_scc1 {Lw1}")
    g(f"s_waitcnt vmcnt({WIN+NXL})")
    NA = 4
    def prep(u):
        for r in range(4): g(f"v_perm_b32 v{64+4*u+r}, v{vXq+u}, v{vXq+u}, v{vSel+r}")
    nl = WIN
    for u in range(NA): prep(u)
    for k in range(40):
        u, m = k >> 1, k & 1
        g(f"s_waitcnt vmcnt({nl-k-1+(NXL if k < WIN else 0)})")
        g(f"v_mfma_f32_16x16x32_bf16 {vr(32+4*m,4)}, {vr(64+4*u,4)}, {ar(4*k,4)}, {'0' if u == 0 else vr(32+4*m,4)}")
        if k in (0,): g.stamp(f'k{k}')
        if nl < 40: ldq(nl); nl += 1
        if k + NA < 20: prep(k + NA)
    g("s_nop 7")
    for r in range(4): g(f"v_permlane32_swap_b32 v{32+r}, v{36+r}")
    for r in range(4): g(f"v_add_f32_dpp v{32+r}, v{36+r}, v{32+r} row_ror:8 {DPP}")
    g("v_cvt_pk_bf16_f32 v40, v32, v33\nv_cvt_pk_bf16_f32 v41, v34, v35\ns_mov_b32 exec_lo, 0x00ff00ff\ns_mov_b32 exec_hi, 0x00ff00ff")
    g(f"buffer_store_dwordx4 v[40:43], v12, {SWS}, s56 offen\ns_mov_b64 exec, -1")
    g(f"{Lw1}:")
    g.stamp('w1')
    g("s_waitcnt lgkmcnt(0)\ns_barrier")
    for b in range(8):
        g(f"s_add_u32 m0, s62, {b*1024}\ns_add_u32 s49, s63, {b*4*8192}")
        g(f"buffer_load_dwordx4 v{vUd+b}, {SA}, s49 offen {o['UKNT']} lds")
    Lq, Lqs = g.label("qp"), g.label("qps")
    qpl = f"buffer_load_dwordx4 v[48:51], v14, {SWS}, s54 offen sc1\nbuffer_load_dwordx4 v[52:55], v14, {SWS}, s54 offen offset:64 sc1"
    qwt = f"s_mov_b32 exec_lo, 0x00ff00ff\ns_mov_b32 exec_hi, 0x00ff00ff\nbuffer_store_dwordx4 v[40:43], v12, {SWS}, s56 offen sc1\ns_mov_b64 exec, -1"
    g(f"""
    s_mov_b32 {sSpin}, 0
    {qpl}
    s_load_dwordx2 s[32:33], s[0:1], 8
    s_mov_b32 s34, {16384*1024}
    s_lshl_b32 s52, {sXg}, 4
    s_add_u32 s52, s52, {sIdx}
    s_lshl_b32 s52, s52, 2
    s_add_u32 s52, s52, {sWAVE}
    s_lshl_b32 s52, s52, 15
    s_lshl_b32 s62, {sWAVE}, 3
    s_add_u32 s62, s62, {sQt}
    s_lshl_b32 s62, s62, 17
    s_lshl_b32 s49, {sH}, 8
    s_add_u32 s62, s62, s49
    s_waitcnt vmcnt(2)
    """)
    for ct in range(2):
        for sx in range(4): g(f"ds_read_b128 {vr(vUk+(ct*4+sx)*4,4)}, v{20+sx} offset:{ct*256}")
    g(f"{Lq}:\ns_waitcnt vmcnt(0)\nv_xor_b32 v3, {sT[0]}, v50\nv_bitop3_b32 v3, v3, v54, {sT[0]} bitop3:0xf6\nv_cmp_ne_u32 vcc, 0, v3\ns_cbranch_vccz {Lqs}")
    g(qpl)
    spin_check(g)
    g(f"s_lshl_b32 s49, {sWAVE}, 16\ns_or_b32 s49, s49, {sSpin}\ns_cmp_lg_u32 s49, {o['NLOC']}\ns_cbranch_scc1 {Lq}")
    g(f"{qwt}\ns_branch {Lq}")
    g(f"{Lqs}:")
    g.stamp('qp')
    vB = 64
    src = [48, 49, 52, 53]
    for sx in range(4):
        for k in range(4): g(f"v_mov_b32_dpp v{vB+4*sx+k}, v{src[k]} quad_perm:[{sx},{sx},{sx},{sx}] {DPP}")
        if sx == 1: g("s_waitcnt lgkmcnt(0)")
        if sx >= 1:
            for ct in range(2):
                g(f"v_mfma_f32_16x16x32_bf16 {vr(32+4*ct,4)}, {vr(vB+4*(sx-1),4)}, {vr(vUk+(ct*4+sx-1)*4,4)}, {'0' if sx == 1 else vr(32+4*ct,4)}")
    for ct in range(2):
        g(f"v_mfma_f32_16x16x32_bf16 {vr(32+4*ct,4)}, {vr(vB+12,4)}, {vr(vUk+(ct*4+3)*4,4)}, {vr(32+4*ct,4)}")
    g(f"""
    s_nop 7
    v_permlane32_swap_b32 v32, v36
    v_add_f32 v32, v32, v36
    v_mov_b32 v33, v32
    s_nop 1
    v_permlane16_swap_b32 v32, v33
    v_add_f32 v32, v32, v33
    v_mov_b32 v33, v32
    s_nop 1
    v_permlane32_swap_b32 v32, v33
    v_add_u32 v32, v32, v27
    v_add_u32 v33, v33, v28
    v_perm_b32 v32, v33, v32, v24
    v_bfi_b32 v32, v25, v26, v32
    s_mov_b64 exec, 0xffff
    buffer_store_dword v32, v15, {SWS}, s55 offen sc1
    s_mov_b64 exec, -1
    """)
    g.stamp('qa')
    g("s_barrier")
    vm = Pend(g, 'vmcnt', 63)
    vF = 0
    XH = o['XH']
    def xh(k): g(f"buffer_load_dword v{58+k}, v56, {SF}, s52 offen offset:{1024-128*XH+256*k}"); vm.add('H')
    if XH: xh(0)
    for u in range(5):
        for r in range(4): g(f"v_perm_b32 v{64+4*u+r}, v{vXw+u}, v{vXw+u}, v{vSel+r}")
    g(f"v_dot2_f32_bf16 v3, v{vXg}, v{vGw}, 0")
    for k in range(1, 8): g(f"v_dot2_f32_bf16 v3, v{vXg+k}, v{vGw+k}, v3")
    g("s_nop 2")
    for sh in (8, 4, 2, 1): g(f"v_add_f32_dpp v3, v3, v3 row_ror:{sh} {DPP}\ns_nop 1")
    g("v_mov_b32 v4, v3\ns_nop 1\nv_permlane16_swap_b32 v3, v4\nv_add_f32 v3, v3, v4")
    g("v_mov_b32 v4, v3\ns_nop 1\nv_permlane32_swap_b32 v3, v4\nv_add_f32 v3, v3, v4")
    g(f"""
    v_mul_f32 v3, {f2u(-1.4426950408889634):#x}, v3
    v_exp_f32 v3, v3
    s_nop 0
    v_add_f32 v3, 1.0, v3
    v_rcp_f32 v{vGate}, v3
    s_nop 0
    v_sub_f32 v{vGate+1}, 1.0, v{vGate}
    v_bfe_u32 v3, v0, 2, 3
    v_lshlrev_b32 v4, 7, v3
    v_lshrrev_b32 v3, 1, v3
    v_lshl_add_u32 v4, v3, 5, v4
    v_and_b32 v3, 3, v0
    v_lshl_add_u32 v4, v3, 3, v4
    v_lshrrev_b32 v3, 5, v0
    v_lshl_add_u32 v4, v3, 10, v4
    """)
    for q in range(4):
        g(f"v_xor_b32 v3, {q*32}, v4\nv_add_u32 v{vTo+q}, s57, v3\nv_add_u32 v{vTo+4+q}, s61, v3")
    g(f"""
    v_lshrrev_b32 v210, 2, v1
    v_lshlrev_b32 v14, 9, v210
    v_lshl_add_u32 v14, v2, 4, v14
    v_lshlrev_b32 v211, 10, v2
    v_lshl_add_u32 v211, v1, 4, v211
    v_and_b32 v3, 3, v0
    v_lshlrev_b32 v15, 4, v3
    v_lshl_add_u32 v15, v2, 7, v15
    v_lshlrev_b32 v20, 3, v3
    s_lshl_b32 s55, {sH}, 2
    s_add_u32 s55, s55, {sQt}
    s_lshl_b32 s55, s55, 9
    s_add_u32 s55, s55, {CTL}
    s_lshl_b32 s63, {sXg}, 4
    s_and_b32 s49, {sIdx}, 12
    s_add_u32 s63, s63, s49
    s_lshl_b32 s63, s63, 3
    s_add_u32 s63, s63, {XC}
    s_lshl_b32 s5, s50, 11
    s_add_u32 s5, s5, {FP}
    s_lshl_b32 s49, s51, 9
    s_add_u32 s54, s5, s49
    s_lshl_b32 s49, s51, 6
    s_add_u32 s5, s5, s49
    """)
    g.stamp('set')
    for k in range(1, XH//2): xh(k)
    sk = g.label("qwt")
    g(f"s_cmp_lg_u32 {sWAVE}, 0\ns_cbranch_scc1 {sk}\n{qwt}\n{sk}:")
    g(f"buffer_load_dwordx2 v[22:23], v20, {SWS}, s63 offen sc1\nbuffer_load_dword v21, v15, {SWS}, s55 offen sc1"); vm.add('H', 2)
    for k in range(10):
        g(f"buffer_load_dwordx4 {ar(vF+4*k,4)}, v57, {SG if k & 1 else SE}, s53 offen {NT}"); vm.add(('F', k))
        if k & 1: g(f"s_add_u32 s53, s53, {2*3456}")
    g(f"buffer_load_dword v60, v165, {SB}, s62 offen"); vm.add('H')
    dl = []
    for gam in range(3):
        for gp in range(2):
            dl.append(f"s_add_u32 m0, s61, {(gam*2+gp)*1024}\ns_add_u32 s49, s58, {gam*512 + gp*8*1280}\n" + ("s_add_u32 s49, s49, s60\n" if gam == 2 else "") + f"buffer_load_dwordx4 v30, {SD}, s49 offen {NT} lds")
    for gam in range(3):
        for rho in range(2):
            for gp in range(2):
                dl.append(f"s_add_u32 m0, s57, {(gam*4+rho*2+gp)*1024}\ns_add_u32 s49, s59, {gam*512 + (8*gp+2*rho)*1280}\n" + ("s_add_u32 s49, s49, s60\n" if gam == 2 else "") + f"buffer_load_dwordx4 v29, {SC}, s49 offen {NT} lds")
    N1, N2 = o['N1'], o['N2']
    for k in range(N1): g(dl[k]); vm.add('D')
    g.stamp('iss1')
    for k in range(10):
        u, m = k >> 1, k & 1
        vm.wait(('F', k))
        g(f"v_mfma_f32_16x16x32_bf16 {vr(32+4*m,4)}, {vr(64+4*u,4)}, {ar(vF+4*k,4)}, {'0' if u == 0 else vr(32+4*m,4)}")
    g("s_nop 7\nds_write_b128 v13, v[32:35]\nds_write_b128 v13, v[36:39] offset:1024\ns_waitcnt lgkmcnt(0)\ns_barrier")
    sk = g.label("skip")
    g(f"s_cmp_lg_u32 {sWAVE}, 3\ns_cbranch_scc1 {sk}")
    d = 128
    for wv in range(4): g(f"ds_read_b128 {vr(d+4*wv,4)}, v{vG} offset:{wv*2048}")
    g("s_waitcnt lgkmcnt(2)")
    for r in range(4): g(f"v_add_f32 v{d+r}, v{d+r}, v{d+4+r}")
    g("s_waitcnt lgkmcnt(0)")
    for r in range(4): g(f"v_add_f32 v{d+8+r}, v{d+8+r}, v{d+12+r}")
    for r in range(4): g(f"v_add_f32 v{d+r}, v{d+r}, v{d+8+r}")
    g(f"s_nop 0\nv_permlane32_swap_b32 v{d}, v{d+2}\nv_permlane32_swap_b32 v{d+1}, v{d+3}")
    g(f"v_add_f32 v{d}, v{d}, v{d+2}\nv_add_f32 v{d+1}, v{d+1}, v{d+3}")
    g(f"v_bfi_b32 v{d}, v{vFF}, v{vTa}, v{d}\nv_bfi_b32 v{d+1}, v{vFF}, v{vTb}, v{d+1}")
    g(f"buffer_store_dwordx2 {vr(d,2)}, v{vG+1}, {SWS}, s54 offen sc1")
    g(f"{sk}:")
    g.stamp('fp')
    for k in range(N1, N2): g(dl[k]); vm.add('D')
    fpl = f"buffer_load_dwordx4 v[48:51], v14, {SWS}, s5 offen sc1\nbuffer_load_dwordx4 v[52:55], v14, {SWS}, s5 offen offset:256 sc1"
    g(fpl); vm.add('P', 2)
    for k in range(N2, 18): g(dl[k]); vm.add('D2')
    g.stamp('iss2')
    g(f"""
    s_getreg_b32 s49, hwreg(HW_REG_XCC_ID, 0, 4)
    v_xor_b32 v3, {sT[0]}, v23
    v_bitop3_b32 v3, v3, v22, s49 bitop3:0xf6
    v_cmp_ne_u32 vcc, 0, v3
    s_nop 1
    s_cmp_eq_u64 vcc, 0
    s_cselect_b32 s49, 0, {CTG-CTL}
    s_add_u32 s55, s55, s49
    s_lshl_b32 s4, {sXg}, 4
    s_add_u32 s4, s4, {sIdx}
    s_mul_i32 s4, s4, 2560
    s_lshl_b32 s49, {sWAVE}, 8
    s_add_u32 s4, s4, s49
    s_add_u32 s4, s4, {OP}
    v_cmp_eq_u32 s[50:51], 0, v210
    v_cmp_eq_u32 s[52:53], 1, v210
    v_cmp_eq_u32 s[58:59], 2, v210
    s_cmp_ge_u32 {sWAVE}, 2
    s_cselect_b32 s61, 0, 0xffff
    s_mov_b32 {sSpin}, 0
    """)
    vm.wait('P')
    assert N2 >= 6
    aD, aO = 0, 24
    for gam in range(3):
        for q in range(4): g(f"ds_read_b64_tr_b16 {ar(aD+(gam*4+q)*2,2)}, v{vTo+4+q} offset:{gam*2048}")
    Lf, Lfok = g.label("fp"), g.label("fpok")
    g(f"{Lf}:\nv_xor_b32 v3, {sT[0]}, v48")
    for k in range(1, 8): g(f"v_bitop3_b32 v3, v3, v{48+k}, {sT[k&3]} bitop3:0xf6")
    g(f"v_and_b32 v3, 0xff, v3\nv_cmp_ne_u32 vcc, 0, v3\ns_cbranch_vccz {Lfok}")
    g(fpl)
    spin_check(g)
    g(f"s_waitcnt vmcnt(0)\ns_branch {Lf}\n{Lfok}:")
    g.stamp('fpok')
    ror_sum(g, 48, 8)
    for k in range(4): g(f"v_cvt_pk_bf16_f32 v{32+k}, v{48+k}, v{52+k}")
    for k in range(4): g(f"v_lshlrev_b32 v{24+k}, 16, v{32+k}\nv_and_b32 v{28+k}, 0xffff0000, v{32+k}")
    c1 = -2*0.7978845608028654*1.4426950408889634
    g(f"s_mov_b32 s49, {f2u(c1*0.044715):#x}\nv_mov_b32 v3, {f2u(c1):#x}")
    for k in range(4): g(f"v_mul_f32 v{32+k}, v{24+k}, v{24+k}")
    for k in range(4): g(f"v_fma_f32 v{32+k}, v{32+k}, s49, v3")
    for k in range(4): g(f"v_mul_f32 v{32+k}, v{32+k}, v{24+k}")
    for k in range(4): g(f"v_exp_f32 v{32+k}, v{32+k}")
    for k in range(4): g(f"v_add_f32 v{32+k}, 1.0, v{32+k}")
    for k in range(4): g(f"v_rcp_f32 v{32+k}, v{32+k}")
    for k in range(4): g(f"v_mul_f32 v{32+k}, v{32+k}, v{24+k}")
    for k in range(4): g(f"v_cvt_pk_bf16_f32 v{32+k}, v{32+k}, v{32+k}")
    for k in range(4): g(f"v_and_b32 v{32+k}, 0xffff0000, v{32+k}\nv_mul_f32 v{32+k}, v{32+k}, v{28+k}")
    g("v_cvt_pk_bf16_f32 v24, v32, v33\nv_cvt_pk_bf16_f32 v25, v34, v35")
    for gam in range(3):
        g(f"v_cmp_eq_u32 vcc, {4*gam}, v1\ns_nop 1\nv_cndmask_b32 v{26+2*gam}, 0, v24, vcc\nv_cndmask_b32 v{27+2*gam}, 0, v25, vcc")
    g("s_waitcnt lgkmcnt(0)")
    vOa = 176
    for gam in range(3):
        for q in range(4):
            g(f"v_mfma_f32_16x16x16_bf16 {vr(vOa+4*q,4)}, {vr(26+2*gam,2)}, {ar(aD+(gam*4+q)*2,2)}, {'0' if gam == 0 else vr(vOa+4*q,4)}")
    g("s_waitcnt vmcnt(0)")
    g.stamp('strm')
    for gam in range(3):
        for rho in range(2):
            for q in range(4): g(f"ds_read_b64_tr_b16 {ar(aO+(gam*4+q)*4+2*rho,2)}, v{vTo+q} offset:{gam*4096+rho*2048}")
    for q in range(4): g(f"v_mul_f32 v{204+q}, v{vGate+1}, v{vOa+4*q}")
    g(f"s_mov_b32 {sSpin}, 0\ns_waitcnt lgkmcnt(0)")
    Lx = g.label("ct")
    g(f"{Lx}:\nbuffer_load_dwordx4 v[24:27], v15, {SWS}, s55 offen sc1\nbuffer_load_dwordx4 v[28:31], v15, {SWS}, s55 offen offset:64 sc1")
    spin_check(g)
    g(f"s_waitcnt vmcnt(1)\nv_xor_b32 v3, {sT[0]}, v24")
    for k in range(1, 8):
        if k == 4: g("v_cvt_pk_bf16_f32 v32, v24, v25\nv_cvt_pk_bf16_f32 v33, v26, v27\ns_waitcnt vmcnt(0)")
        g(f"v_bitop3_b32 v3, v3, v{24+k}, {sT[k&3]} bitop3:0xf6")
    g(f"v_and_b32 v3, 0xff, v3\nv_cmp_ne_u32 vcc, 0, v3\nv_cvt_pk_bf16_f32 v34, v28, v29\nv_cvt_pk_bf16_f32 v35, v30, v31\ns_cbranch_vccnz {Lx}")
    g.stamp('ct')
    msk = ['s[50:51]', 's[52:53]', 's[58:59]']
    for k in range(4): g(f"v_cndmask_b32 v{112+k}, 0, v{32+k}, {msk[0]}")
    g(f"v_cndmask_b32 v116, 0, v32, {msk[1]}\nv_cndmask_b32 v117, 0, v33, {msk[1]}")
    fl = [f"v_cndmask_b32 v118, 0, v34, {msk[1]}", f"v_cndmask_b32 v119, 0, v35, {msk[1]}"] + [f"v_cndmask_b32 v{120+k}, 0, v{32+k}, {msk[2]}" for k in range(4)]
    i = 0
    for gam in range(3):
        for q in range(4):
            g(f"v_mfma_f32_16x16x32_bf16 {vr(vOa+4*q,4)}, {vr(112+4*gam,4)}, {ar(aO+(gam*4+q)*4,4)}, {'0' if gam == 0 else vr(vOa+4*q,4)}")
            if i < len(fl): g(fl[i])
            i += 1
    g("s_nop 4")
    for q in range(4):
        g(f"v_pk_add_f32 {vr(vOa+4*q,2)}, {vr(vOa+4*q,2)}, {vr(vOa+4*q+2,2)}")
    for q in range(4): g(f"v_add_f32 v{24+q}, v{vOa+4*q}, v{vOa+4*q+1}")
    for q in range(4): g(f"v_fma_f32 v{24+q}, v{24+q}, v{vGate}, v{204+q}")
    for q in range(4): g(f"v_bfi_b32 v{24+q}, v{vFF}, {sT[q]}, v{24+q}")
    g(f"s_mov_b32 exec_hi, s61\nbuffer_store_dwordx4 v[24:27], v211, {SWS}, s4 offen sc1")
    g.stamp('op')

def build(**opt):
    g = G(**opt)
    g.o.append(HEADER.rstrip('\n'))
    g.o.append("; @launch grid=(256,1,1) block=(256,1,1) lds=163840")
    g.o.append('.amdgcn_target "amdgcn-amd-amdhsa--gfx950"')
    g.o.append(f".text\n.globl {KN}\n.p2align 8\n.type {KN},@function\n{KN}:")
    g.stamp('st')
    g(f"""
    v_lshrrev_b32 v1, 6, v0
    s_cmp_ge_u32 s2, 256
    s_cbranch_scc1 L_end
    v_readfirstlane_b32 {sWAVE}, v1
    v_and_b32 v0, 63, v0
    s_cmp_ge_u32 s2, 128
    s_cbranch_scc1 L_wgt
    """)
    attention(g)
    weight(g)
    g("L_fin:")
    if g.opt.get('PADTO'):
        g(f"""
        s_lshl_b32 s49, {sWAVE}, 16
        s_or_b32 s49, s2, s49
        s_cmp_lg_u32 s49, {g.opt.get('PADWG', 0)}
        s_cbranch_scc1 L_padend
        L_pad:
        s_memrealtime s[98:99]
        s_waitcnt lgkmcnt(0)
        s_sub_u32 s49, s98, s64
        s_cmp_lt_u32 s49, {g.opt['PADTO']}
        s_cbranch_scc1 L_pad
        L_padend:
        """)
    if g.opt['STAMPS']:
        g(('s_memtime' if g.opt.get('CLK') else 's_memrealtime') + " s[100:101]\ns_waitcnt lgkmcnt(0)\ns_mov_b64 exec, 1")
        g(f"s_lshl_b32 s49, s2, 2\ns_add_u32 s49, s49, {sWAVE}\ns_lshl_b32 s49, s49, 7\ns_add_u32 s49, s49, {STAMP}\nv_mov_b32 v1, 0")
        g.o.append("; STAMPS att " + " ".join(g.names['att']))
        g.o.append("; STAMPS wgt " + " ".join(g.names['wgt']))
        for q in range(5):
            for k in range(4):
                idx = 4*q+k
                g(f"v_mov_b32 v{4+k}, s{64+2*idx}" if idx <= 18 else f"v_mov_b32 v{4+k}, {sSpin}")
            g(f"buffer_store_dwordx4 v[4:7], v1, {SWS}, s49 offen offset:{16*q}\ns_nop 1")
    g("L_end:\ns_endpgm")
    g.o.append(f""".section .rodata,"a"
.p2align 6
.amdhsa_kernel {KN}
  .amdhsa_next_free_vgpr 512
  .amdhsa_next_free_sgpr 102
  .amdhsa_accum_offset 256
  .amdhsa_group_segment_fixed_size 0
  .amdhsa_kernarg_size 112
  .amdhsa_user_sgpr_count 2
  .amdhsa_user_sgpr_kernarg_segment_ptr 1
  .amdhsa_system_sgpr_workgroup_id_x 1
  .amdhsa_float_denorm_mode_32 3
.end_amdhsa_kernel""")
    return g.text()

if __name__ == '__main__':
    out = sys.argv[1]
    opt = {}
    for a in sys.argv[2:]:
        k, v = a.split('=')
        try: v = int(v, 0)
        except ValueError: pass
        opt[k] = v
    t = build(**opt)
    open(out, 'w').write(t)
    import hazard
    for p in hazard.check(t): print("HAZARD", p)
```

```python
import sys, struct
KN = "gated_mix__compressed_kv_cla__geglu_ffn__decode_kernel"
HEADER = open('gated_mix__compressed_kv_cla__geglu_ffn__decode.s.ref').read().split('; Override launch')[0]

EPOCH = 0
XC   = 0x1000
QP   = 0x10000
QA   = 0x20000
QPG  = 0xC0000
ML   = 0x30000
FP   = 0x40000
OP   = 0x50000
CT   = 0x100000
PART = 0x200000
STAMP = 0x600000
WSSZ = 0x700000
SPIN = 1 << 17
QB = 131072
SCALE = 0.08838834764831845 * 1.4426950408889634
DPP = "row_mask:0xf bank_mask:0xf"

def f2u(f): return struct.unpack('<I', struct.pack('<f', f))[0]

class G:
    def __init__(self, **opt):
        self.o = []
        self.opt = dict(WSB=0, STAMPS=0, NT='nt', WIN=6, PF1=2, WQNT='nt', UKNT='nt', HMAP='adj',
                        PF1W=0, PF2W=0, NS=6, LA=2, LQ=2, NX=2, NXE=0, XH=2, ORD='o01234567', ROT=1, NLOC=24, FW=10, N1=8, N2=18, CPF=1, UVA=1, UV0=12, QW=4)
        self.opt.update(opt)
        self.names = {'att': [], 'wgt': []}; self.role = 'att'
        self.lab = 0
        self.tailcode = []
    def __call__(self, s):
        for l in s.strip('\n').split('\n'):
            l = l.strip()
            if l: self.o.append(l if l.endswith(':') else '    ' + l)
    def label(self, p):
        self.lab += 1
        return f"L_{p}_{self.lab}"
    def stamp(self, name):
        if self.opt['STAMPS']:
            L = self.names[self.role]
            if name not in L: L.append(name)
            k = L.index(name)
            if k >= 18: L.pop(); return
            self(f"{'s_memtime' if self.opt.get('CLK') else 's_memrealtime'} s[{64+2*k}:{65+2*k}]")
    def text(self): return '\n'.join(self.o) + '\n'

def vr(b, n=1): return f"v{b}" if n == 1 else f"v[{b}:{b+n-1}]"
def ar(b, n=1): return f"a{b}" if n == 1 else f"a[{b}:{b+n-1}]"

sWAVE = 's3'
SX, SA, SB, SC, SWS, SD, SE, SF, SG = 's[4:7]', 's[8:11]', 's[12:15]', 's[16:19]', 's[20:23]', 's[24:27]', 's[28:31]', 's[32:35]', 's[36:39]'
sT = ['s40', 's41', 's42', 's43']
sXg, sIdx, sH, sQt = 's44', 's45', 's46', 's47'
sSpin = 's48'

def srd_tail(g, base, size):
    g(f"s_mov_b32 s{base+2}, {size}\ns_mov_b32 s{base+3}, 0x20000")
def common_epoch(g):
    if g.opt['WSB']:
        g(f"s_add_u32 s20, s20, {g.opt['WSB']}\ns_addc_u32 s21, s21, 0")
    g(f"s_load_dword s40, s[20:21], {EPOCH}")
def epoch_finish(g):
    g("s_waitcnt lgkmcnt(0)")
    g("s_add_u32 s40, s40, 0x01010101\ns_lshr_b32 s41, s40, 8\ns_lshr_b32 s42, s40, 16\ns_lshr_b32 s43, s40, 24")
def spin_check(g):
    g(f"s_add_u32 {sSpin}, {sSpin}, 1\ns_cmp_gt_u32 {sSpin}, {SPIN}\ns_cbranch_scc1 L_end")
def head_id(g):
    if g.opt['HMAP'] == 'adj':
        g(f"s_lshr_b32 s49, {sIdx}, 2\ns_lshl_b32 {sH}, {sXg}, 2\ns_add_u32 {sH}, {sH}, s49")
    else:
        g(f"s_lshr_b32 s49, {sIdx}, 2\ns_lshl_b32 {sH}, s49, 3\ns_add_u32 {sH}, {sH}, {sXg}")
    g(f"s_and_b32 {sQt}, {sIdx}, 3")
def quad_sum(g, base, n):
    for k in range(n): g(f"v_add_f32_dpp v{base+k}, v{base+k}, v{base+k} quad_perm:[1,0,3,2] {DPP}")
    for k in range(n): g(f"v_add_f32_dpp v{base+k}, v{base+k}, v{base+k} quad_perm:[2,3,0,1] {DPP}")
def ror_sum(g, base, n):
    for sh in (4, 8):
        for k in range(n): g(f"v_add_f32_dpp v{base+k}, v{base+k}, v{base+k} row_ror:{sh} {DPP}")

class Pend:
    def __init__(self, g, cnt, cap): self.g, self.cnt, self.cap, self.q = g, cnt, cap, []
    def add(self, tag, n=1): self.q += [tag]*n
    def wait(self, tag):
        if tag in self.q:
            idx = max(i for i, t in enumerate(self.q) if t == tag)
            n = len(self.q) - 1 - idx
            self.g(f"s_waitcnt {self.cnt}({min(n, self.cap)})")
            del self.q[:len(self.q) - min(n, self.cap)]
    def clear(self): self.q = []

vAa, vQa, vTr, vMask, vFF, vE, vQo = 36, 240, 192, 16, 214, 196, 248
ZR, CL, MW = QB + 11264, QB + 12288, QB + 13312

def att_setup(g):
    g(f"""
    v_lshlrev_b32 v7, 4, v0
    v_and_b32 v220, 15, v0
    v_mov_b32 v{vFF}, 0xff
    v_mov_b32 v215, 0x10001
    v_mov_b32 v11, 0
    v_and_b32 v3, 6, v0
    v_bfe_u32 v4, v0, 3, 1
    v_or_b32 v3, v3, v4
    v_lshrrev_b32 v4, 5, v0
    v_xor_b32 v3, v3, v4
    v_lshlrev_b32 v3, 4, v3
    v_and_b32 v5, 7, v0
    v_lshl_add_u32 v3, v5, 7, v3
    v_bfe_u32 v5, v0, 3, 2
    v_lshl_add_u32 v3, v5, 13, v3
    v_add_u32 v{vAa}, s54, v3
    s_lshl_b32 s49, {sWAVE}, 13
    s_add_u32 s34, s49, {QA}
    s_add_u32 s35, s49, {QB}
    """)
    for s in range(1, 4): g(f"v_xor_b32 v{vAa+s}, {s*32}, v{vAa}")
    g(f"""
    v_xor_b32 v3, v220, v4
    v_lshlrev_b32 v3, 4, v3
    v_and_b32 v5, 31, v0
    v_lshl_add_u32 v3, v5, 10, v3
    s_mul_i32 s49, {sWAVE}, {256*g.opt['ROT']}
    s_add_u32 s49, s49, {QB}
    v_add_u32 v{vQa}, s49, v3
    s_and_b32 s49, {sWAVE}, 1
    s_lshl_b32 s49, s49, 7
    v_xor_b32 v{vQo}, s49, v7
    v_add_u32 v{vQo}, s35, v{vQo}
    """)
    for s in range(1, 8): g(f"v_xor_b32 v{vQa+s}, {s*32}, v{vQa}\nv_xor_b32 v{vQo+s}, {s*16}, v{vQo}")
    g(f"""
    v_bfe_u32 v3, v0, 2, 3
    v_and_b32 v4, 6, v3
    v_bfe_u32 v5, v0, 1, 1
    v_xor_b32 v4, v4, v5
    v_lshlrev_b32 v4, 4, v4
    v_lshl_add_u32 v4, v3, 7, v4
    v_and_b32 v5, 1, v0
    v_lshl_add_u32 v4, v5, 3, v4
    v_lshrrev_b32 v5, 5, v0
    v_lshl_add_u32 v4, v5, 14, v4
    s_lshl_b32 s49, {sWAVE}, 5
    v_xor_b32 v{vTr}, s49, v4
    v_xor_b32 v{vTr+1}, 16, v{vTr}
    v_add_u32 v{vTr+1}, 8192, v{vTr+1}
    v_add_u32 v{vTr+2}, 0x10000, v{vTr}
    v_add_u32 v{vTr+3}, 0x10000, v{vTr+1}
    v_lshlrev_b32 v4, 7, v3
    v_lshrrev_b32 v3, 1, v3
    v_lshl_add_u32 v4, v3, 5, v4
    v_and_b32 v3, 3, v0
    v_lshl_add_u32 v4, v3, 3, v4
    v_lshl_add_u32 v4, v5, 13, v4
    v_add_u32 v44, s54, v4
    v_xor_b32 v45, 32, v44
    v_xor_b32 v46, 64, v44
    v_xor_b32 v47, 96, v44
    v_bfe_u32 v3, v0, 3, 1
    v_lshlrev_b32 v3, 6, v3
    v_lshl_add_u32 v3, v5, 2, v3
    v_bfe_u32 v4, v0, 4, 1
    v_add_u32 v3, v3, v4
    v_lshlrev_b32 v10, 13, v3
    v_lshrrev_b32 v3, 4, v0
    v_bfe_u32 v4, v0, 1, 2
    v_xor_b32 v3, v3, v4
    v_lshl_add_u32 v10, v3, 5, v10
    v_and_b32 v3, 1, v0
    v_lshl_add_u32 v10, v3, 4, v10
    v_lshlrev_b32 v3, 4, v3
    v_mov_b32 v4, 0xffff
    v_lshlrev_b32 v3, v3, v4
    v_bfe_u32 v4, v0, 1, 3
    """)
    for k in range(4):
        g(f"v_cmp_eq_u32 vcc, {k}, v4\nv_mov_b32 v{204+k}, 0\ns_nop 0\nv_cndmask_b32 v{vMask+k}, 0, v3, vcc")
    g(f"""
    v_and_b32 v3, 31, v0
    v_lshlrev_b32 v223, 5, v3
    v_add_u32 v223, {QB}, v223
    v_lshrrev_b32 v4, 5, v0
    v_lshl_add_u32 v222, v4, 2, v223
    s_lshl_b32 s49, {sWAVE}, 3
    v_add_u32 v222, s49, v222
    s_add_u32 s49, s49, {MW}
    v_bfe_u32 v5, v0, 1, 2
    v_lshlrev_b32 v231, 4, v5
    v_lshlrev_b32 v5, 5, v5
    v_add_u32 v210, s49, v5
    v_lshlrev_b32 v226, 4, v220
    v_lshl_add_u32 v226, v4, 8, v226
    v_bfe_u32 v4, v0, 4, 1
    v_lshl_add_u32 v226, v4, 10, v226
    s_lshl_b32 s49, {sWAVE}, 11
    s_add_u32 s49, s49, {QB+2048}
    v_add_u32 v226, s49, v226
    v_add_u32 v227, {QB+2048}, v7
    v_lshlrev_b32 v228, 4, v3
    v_lshlrev_b32 v212, 3, v3
    v_lshrrev_b32 v4, 4, v0
    v_lshlrev_b32 v229, 4, v220
    v_lshl_add_u32 v230, v4, 15, v229
    v_lshl_add_u32 v229, v4, 12, v229
    v_lshlrev_b32 v208, 2, v220
    v_lshl_add_u32 v208, v4, 9, v208
    s_lshl_b32 s49, {sWAVE}, 6
    s_add_u32 s49, s49, {CL}
    v_add_u32 v208, s49, v208
    v_bfe_u32 v3, v0, 3, 1
    v_and_b32 v5, 1, v0
    v_lshl_add_u32 v3, v3, 1, v5
    v_lshl_add_u32 v3, v3, 2, v4
    v_lshl_add_u32 v231, v3, 9, v231
    v_and_b32 v3, 3, v0
    v_lshlrev_b32 v3, 6, v3
    v_lshl_add_u32 v3, v4, 4, v3
    s_lshl_b32 s49, {sWAVE}, 8
    s_add_u32 s49, s49, {CL}
    v_add_u32 v3, s49, v3
    v_mov_b32 v209, {ZR}
    s_lshl_b32 s49, {sWAVE}, 5
    s_add_u32 s49, s49, {MW}
    v_mov_b32 v211, s49
    v_lshrrev_b32 v6, 1, v220
    v_lshlrev_b32 v6, 8, v6
    v_lshl_add_u32 v6, v4, 11, v6
    v_lshl_add_u32 v6, v5, 3, v6
    v_bfe_u32 v4, v0, 2, 2
    """)
    for k in range(4):
        g(f"v_cmp_eq_u32 vcc, {k}, v4\ns_nop 1\nv_cndmask_b32 v{200+k}, v209, v3, vcc")
    g(f"""
    s_lshl_b32 s58, {sWAVE}, 20
    s_lshl_b32 s49, s50, 8
    s_add_u32 s58, s58, s49
    s_add_u32 s58, s58, {PART}
    s_lshl_b32 s4, s50, 15
    s_lshl_b32 s49, {sWAVE}, 10
    s_add_u32 s4, s4, s49
    s_add_u32 s4, s4, {PART}
    s_add_u32 s5, s4, 16384
    s_lshl_b32 s59, {sWAVE}, 14
    s_lshl_b32 s49, {sXg}, 6
    s_add_u32 s59, s59, s49
    s_add_u32 s59, s59, {ML}
    s_add_u32 s36, s59, 8192
    s_lshl_b32 s6, {sXg}, 2
    s_add_u32 s6, s6, {sWAVE}
    s_lshl_b32 s60, s6, 8
    s_lshl_b32 s6, s6, 13
    s_lshl_b32 s49, {sIdx}, 4
    s_add_u32 s6, s6, s49
    s_add_u32 s6, s6, {CT}
    s_lshl_b32 s49, {sQt}, 20
    s_add_u32 s60, s60, s49
    s_lshr_b32 s49, {sIdx}, 2
    s_lshl_b32 s49, s49, 17
    s_add_u32 s60, s60, s49
    s_lshl_b32 s7, {sXg}, 8
    s_add_u32 s7, s7, {XC}
    s_lshl_b32 s49, {sWAVE}, 3
    s_lshl_b32 s62, 0xff, s49
    s_mov_b32 s63, 0
    s_lshl_b32 s32, s50, 9
    s_add_u32 s32, s32, {ML}
    s_mov_b32 s37, {f2u(SCALE):#x}
    """)
    epoch_finish(g)
    g(f"""
    v_mov_b32 v234, {sT[0]}
    v_mov_b32 v235, {sT[0]}
    v_lshlrev_b32 v3, 4, v5
    v_lshrrev_b32 v12, v3, v234
    v_lshrrev_b32 v13, 8, v12
    v_and_b32 v3, 3, v0
    v_lshlrev_b32 v3, 3, v3
    v_lshrrev_b32 v3, v3, v234
    v_bfe_i32 v5, v0, 4, 1
    s_bfe_i32 s49, s50, 0x10000
    """)
    for j in range(4):
        g(f"v_bfe_u32 v4, v3, {2*j}, 2\nv_lshl_or_b32 v{vE+j}, v4, 15, v4\nv_xor_b32 v{20+j}, s49, v{vE+j}\nv_xor_b32 v{40+j}, v5, v{vE+j}")

def xc_publish(g, vz):
    sk = g.label("xc")
    g(f"""
    s_getreg_b32 s56, hwreg(HW_REG_XCC_ID, 0, 4)
    s_cmp_lg_u32 {sWAVE}, 1
    s_cbranch_scc1 {sk}
    v_mov_b32 v4, s56
    v_mov_b32 v5, {sT[0]}
    v_mov_b32 v3, 0
    s_lshl_b32 s49, {sXg}, 8
    s_and_b32 m0, s2, 0xf8
    s_add_u32 s49, s49, m0
    s_add_u32 s49, s49, {XC}
    s_mov_b64 exec, 1
    buffer_store_dwordx2 v[4:5], v3, {SWS}, s49 offen sc1
    s_mov_b64 exec, -1
    {sk}:
    """)

def attention(g):
    o = g.opt
    NT = o['NT']
    g("L_att:")
    g("""
    s_load_dwordx2 s[12:13], s[0:1], 16
    s_load_dwordx2 s[24:25], s[0:1], 24
    s_load_dwordx2 s[8:9], s[0:1], 8
    s_load_dwordx2 s[20:21], s[0:1], 104
    s_load_dwordx2 s[16:17], s[0:1], 88
    s_load_dwordx2 s[28:29], s[0:1], 32
    """)
    srd_tail(g, 12, 640*8192); srd_tail(g, 24, 512*8192); srd_tail(g, 8, 16384*1024); srd_tail(g, 20, WSSZ); srd_tail(g, 16, 1280); srd_tail(g, 28, 512*8192)
    vDma = 14
    g(f"s_and_b32 {sXg}, s2, 7\ns_lshr_b32 {sIdx}, s2, 3")
    if o['CPF']:
        g(f"""
        s_getpc_b64 s[38:39]
        L_pc:
        s_sub_u32 s38, s38, L_pc-{KN}
        s_subb_u32 s39, s39, 0
        s_lshl_b32 s49, {sIdx}, 2
        s_add_u32 s49, s49, {sWAVE}
        s_lshl_b32 s49, s49, 7
        v_lshlrev_b32 v3, 13, v0
        v_add_u32 v3, s49, v3
        v_cmp_gt_u32 vcc, L_end-{KN}, v3
        s_nop 0
        s_and_saveexec_b64 s[32:33], vcc
        global_load_dword v213, v3, s[38:39]
        s_mov_b64 exec, -1
        """)
    head_id(g)
    g(f"""
    v_lshrrev_b32 v3, 3, v0
    v_lshlrev_b32 v2, 13, v3
    v_and_b32 v3, 7, v0
    v_lshl_add_u32 v2, v3, 7, v2
    v_bfe_u32 v3, v0, 2, 2
    v_mul_u32_u24 v1, 40, v3
    v_bfe_u32 v3, v0, 1, 1
    v_add_u32 v1, v1, v3
    v_lshrrev_b32 v3, 4, v0
    v_lshl_add_u32 v1, v3, 1, v1
    v_lshlrev_b32 v1, 13, v1
    v_and_b32 v3, 1, v0
    v_lshl_add_u32 v1, v3, 7, v1
    s_mul_i32 s51, {sQt}, 160
    s_mul_i32 s49, {sWAVE}, 10
    s_add_u32 s51, s51, s49
    s_add_u32 s51, s51, {10-2*o['PF1']}
    s_lshl_b32 s51, s51, 13
    s_lshl_b32 s49, {sH}, 8
    s_add_u32 s51, s51, s49
    s_lshl_b32 s49, {sXg}, 10
    s_lshl_b32 s50, {sXg}, 4
    s_add_u32 s50, s50, {sIdx}
    s_lshl_b32 s52, {sIdx}, 2
    s_add_u32 s52, s52, {sWAVE}
    s_lshl_b32 s52, s52, 16
    s_add_u32 s52, s52, s49
    v_lshrrev_b32 v3, 3, v0
    v_and_b32 v4, 6, v3
    v_and_b32 v5, 7, v0
    v_xor_b32 v4, v4, v5
    v_lshlrev_b32 v4, 4, v4
    v_lshl_add_u32 v{vDma}, v3, 10, v4
    v_xor_b32 v{vDma+1}, 16, v{vDma}
    s_lshl_b32 s53, s50, 17
    s_lshl_b32 s54, {sWAVE}, 15
    s_add_u32 s53, s53, s54
    s_mul_i32 s49, {sWAVE}, {256*o['ROT']}
    s_add_u32 s53, s53, s49
    s_waitcnt lgkmcnt(0)
    """)
    g.stamp('karg')
    if o['PF1']: g(f"s_mov_b32 exec_hi, {[0,0,0,0xffff,-1][o['PF1']]}\ns_mov_b32 exec_lo, {'0xffff' if o['PF1'] == 1 else '-1'}\nbuffer_load_dword v8, v1, {SB}, s51 offen\ns_mov_b64 exec, -1")
    pfuk = f"buffer_load_dword v9, v2, {SD}, s52 offen"
    if not o['PF1W']: g(pfuk)
    common_epoch(g)
    att_setup(g)
    if o['PF1W']: g("s_waitcnt vmcnt(0)\n" + pfuk)
    if o['PF2W']: g("s_waitcnt vmcnt(0)")
    xc_publish(g, 11)
    g.stamp('go')
    vS, vQr, vOw = 48, 128, 64
    def qld():
        for i in range(8):
            if i == 4: g("s_add_u32 s49, s34, 4096")
            g(f"buffer_load_dwordx4 {vr(vOw+4*i,4)}, v7, {SWS}, {'s34' if i < 4 else 's49'} offen offset:{(i&3)*1024} sc1")
    lg = Pend(g, 'lgkmcnt', 15)
    def rdA(cb):
        for s in range(4*cb, 4*cb+4): g(f"ds_read_b128 {ar(4*s,4)}, v{vAa+(s&3)} offset:{cb*1024}"); lg.add(('A', s))
    def rdT1(sl, t, rho):
        ct = sl ^ (2*t*o['ROT'])
        g(f"ds_read_b64_tr_b16 {ar(128+(ct*4+t)*4+2*rho,2)}, v{vTr+(t>>1)*2+rho} offset:{(t&1)*32768+sl*1024}"); lg.add(('T', ct, t, rho))
    NS, LA, LQ, NX = o['NS'], o['LA'], o['LQ'], o['NX']
    ORD = [int(c) for c in str(o['ORD'])[1:]]
    assert sorted(ORD) == list(range(8)) and set(ORD[:2]) == {0, 1}
    vm = Pend(g, 'vmcnt', 63)
    def cdma1(cb, ro):
        g(f"s_add_u32 m0, s54, {ro*8192+cb*1024}\ns_xor_b32 s49, s53, {ro*8192+cb*128}")
        g(f"buffer_load_dwordx4 v{vDma+(ro&1)}, {SA}, s49 offen {NT} lds")
        vm.add(('C', cb))
    done = 0
    def consume(cb):
        vm.wait(('C', cb))
        if o.get('DIAGA'): g.stamp(f'b{cb}')
        rdA(cb); g("s_barrier")
        for t in range(4):
            for rho in range(2): rdT1(cb, t, rho)
    for i in range(NS):
        for ro in range(4): cdma1(ORD[i], ro)
        if i >= LA: consume(ORD[done]); done += 1
    while done < NS - LQ: consume(ORD[done]); done += 1
    g.stamp('pre')
    qld()
    for i in range(8): vm.add(('Q', i))
    dq = [(i, ro) for i in range(NS, 8) for ro in range(4)]
    if o['NXE']:
        for _ in range(4*o['NXE']): x = dq.pop(0); cdma1(ORD[x[0]], x[1])
    late = ORD[done:NS]
    assert done >= 2
    for cb in late:
        vm.wait(('C', cb)); rdA(cb)
    g(f"s_mov_b32 {sSpin}, 0")
    Lq, Lqr = g.label("q"), g.label("qr")
    def qstage(first):
        nx = 4*NX
        for i in range(8):
            if first: vm.wait(('Q', i))
            else: g(f"s_waitcnt vmcnt({7-i})")
            if first and i == 0: g.stamp('q0')
            g(f"ds_write_b128 v{vQo+i}, {vr(vOw+4*i,4)} offset:{i*1024}")
            for j in range(4):
                if i == 0 and j == 0: g(f"v_xor_b32 v2, v{vOw}, v{vE}")
                else: g(f"v_bitop3_b32 v2, v2, v{vOw+4*i+j}, v{vE+j} bitop3:0xf6")
            if first:
                for _ in range((4*NX+7)//8):
                    if dq and nx: x = dq.pop(0); cdma1(ORD[x[0]], x[1]); nx -= 1
        g(f"v_and_b32 v2, 0x10001, v2\nv_cmp_ne_u32 vcc, 0, v2\ns_waitcnt lgkmcnt(0)\ns_cbranch_vccnz {Lqr}")
    qstage(True)
    g(f"{Lq}:\ns_barrier")
    lg.clear()
    def qretry():
        g(f"{Lqr}:")
        qld()
        spin_check(g)
        qstage(False)
        g(f"s_branch {Lq}")
    g.tailcode.append(qretry)
    g.stamp('qok')
    def ks(i): return 4*ORD[i >> 2] + (i & 3)
    def rdQ(i):
        s = ks(i)
        if o['ROT']:
            assert s == i
            g(f"ds_read_b128 {vr(vQr+4*(i%16),4)}, v{vQa+(s&7)}")
            if s < 24: g(f"v_xor_b32 v{vQa+(s&7)}, {((s>>3) ^ ((s>>3)+1))*256}, v{vQa+(s&7)}")
        else: g(f"ds_read_b128 {vr(vQr+4*(i%16),4)}, v{vQa+(s&7)} offset:{(s>>3)*256}")
        lg.add(('Q', i))
    def mm(i): g(f"v_mfma_f32_32x32x16_bf16 {vr(vS,16)}, {ar(4*ks(i),4)}, {vr(vQr+4*(i%16),4)}, {'0' if i == 0 else vr(vS,16)}")
    def uvdma(k):
        rg, dh = k >> 1, k & 1
        g(f"s_add_u32 m0, s54, {rg*8192+dh*1024}\ns_add_u32 s49, s60, {(2*(rg>>1)+8*(rg&1))*8192+dh*128}")
        g(f"buffer_load_dwordx4 v10, {SE}, s49 offen {NT} lds")
    D = 4
    tl = [(ct, t, rho) for ct in late for t in range(4) for rho in range(2)]
    qn = 0
    while qn < D: rdQ(qn); qn += 1
    nuv = 0
    SB_ = 27
    for s in range(32):
        nb = (s >> 2) + 1
        if s & 3 == 0 and NS <= nb < 8:
            while any(x[0] <= nb for x in dq): x = dq.pop(0); cdma1(ORD[x[0]], x[1])
            vm.wait(('C', ORD[nb])); rdA(ORD[nb])
        lg.wait(('Q', s)); lg.wait(('A', ks(s))); mm(s)
        while qn < min(32, s + 1 + D + max(0, s - 18)): rdQ(qn); qn += 1
        for _ in range(2):
            if tl: rdT1(*tl.pop(0))
        if dq: x = dq.pop(0); cdma1(ORD[x[0]], x[1])
        elif o['UVA'] and s >= o['UV0'] and nuv < 8: uvdma(nuv); vm.add('U'); nuv += 1
        if s == SB_:
            lg.wait(('Q', 31)); g("s_barrier")
            g.stamp('qk0')
            tl = sorted([(sl, t, rho) for sl in ORD[NS:] for t in range(4) for rho in range(2)], key=lambda x: (x[0] ^ (2*x[1]*o['ROT']), x[1], x[2]))
    while o['UVA'] and nuv < 8: uvdma(nuv); nuv += 1
    g.stamp('qk')
    for _ in range(12):
        if tl: rdT1(*tl.pop(0))
        else: g("s_nop 0")
    tailT = tl
    if o.get('DIAGA'): g('s_waitcnt vmcnt(0)'); g.stamp('pv'); g('s_branch L_fin')
    g(f"v_max3_f32 v3, v{vS}, v{vS+1}, v{vS+2}\nv_max3_f32 v4, v{vS+3}, v{vS+4}, v{vS+5}")
    for k in range(6, 14, 4): g(f"v_max3_f32 v3, v3, v{vS+k}, v{vS+k+1}\nv_max3_f32 v4, v4, v{vS+k+2}, v{vS+k+3}")
    g(f"v_max3_f32 v3, v3, v{vS+14}, v{vS+15}\nv_max_f32 v3, v3, v4")
    g(f"ds_write_b32 v222, v3\nds_write_b128 v209, v[204:207]\nbuffer_load_dwordx2 v[8:9], v212, {SWS}, s7 offen sc1")
    for k in range(8): g(f"v_mul_f32 v{vS+k}, s37, v{vS+k}")
    g("s_waitcnt lgkmcnt(0)\ns_barrier")
    g.stamp('mx')
    g("ds_read_b128 v[24:27], v223\nds_read_b128 v[28:31], v223 offset:16")
    vM = 232
    for k in range(8, 16): g(f"v_mul_f32 v{vS+k}, s37, v{vS+k}")
    g(f"s_waitcnt lgkmcnt(1)\nv_max3_f32 v{vM}, v24, v25, v26\ns_waitcnt lgkmcnt(0)\nv_max3_f32 v3, v27, v28, v29\nv_max3_f32 v{vM}, v{vM}, v30, v31\nv_max_f32 v{vM}, v{vM}, v3\nv_mul_f32 v{vM}, s37, v{vM}")
    for hb in range(2):
        for k in range(8*hb, 8*hb+8): g(f"v_sub_f32 v{vS+k}, v{vS+k}, v{vM}")
        for k in range(8*hb, 8*hb+8): g(f"v_exp_f32 v{vS+k}, v{vS+k}")
        for k in range(4*hb, 4*hb+4): g(f"v_cvt_pk_bf16_f32 v{24+k}, v{vS+2*k}, v{vS+2*k+1}")
        g(f"ds_write_b128 v226, {vr(24+4*hb,4)} offset:{512*hb}")
    for k in range(4): g(f"v_pk_add_f32 {vr(vS+2*k,2)}, {vr(vS+2*k,2)}, {vr(vS+8+2*k,2)}")
    for k in range(2): g(f"v_pk_add_f32 {vr(vS+2*k,2)}, {vr(vS+2*k,2)}, {vr(vS+4+2*k,2)}")
    g(f"v_pk_add_f32 {vr(vS,2)}, {vr(vS,2)}, {vr(vS+2,2)}\nv_add_f32 v{vS}, v{vS}, v{vS+1}")
    g(f"ds_write_b32 v222, v{vS} offset:1024\ns_waitcnt lgkmcnt(0)\ns_barrier")
    g.stamp('P')
    vP, vAcc, vO = 128, 64, 160
    lg.clear()
    for ht in range(2):
        for t in range(4):
            g(f"ds_read_b128 {vr(vP+(t*2+ht)*4,4)}, v227 offset:{(t*2+ht)*1024}"); lg.add(('P', t, ht))
        if ht == 0: g("ds_read_b128 v[48:51], v223 offset:1024\nds_read_b128 v[52:55], v223 offset:1040"); lg.add('L', 2)
    fill = {}
    def add(n, txt): fill.setdefault(n, []).append(txt)
    b = 3
    add(b, ('W', 'L')); add(b, "v_add_f32 v48, v48, v52\nv_add_f32 v49, v49, v53")
    add(b+1, "v_add_f32 v50, v50, v54\nv_add_f32 v51, v51, v55")
    add(b+2, "v_add_f32 v48, v48, v50\nv_add_f32 v49, v49, v51")
    add(b+3, f"v_add_f32 v{vM+1}, v48, v49")
    add(b+4, f"s_mov_b64 exec, s[62:63]\nbuffer_store_dwordx4 {vr(vM,4)}, v228, {SWS}, s32 offen sc1\ns_mov_b64 exec, -1")
    slots = [0, 1, 2, 8, 9, 10, 11, 12]
    for k, x in enumerate(tailT): add(slots[k//2], ('T',) + x)
    def cvt(ht, k, r): return f"v_cvt_pk_bf16_f32 v{vO+(k*2+ht)*4+r}, v{vAcc+(ht*8+2*k)*4+r}, v{vAcc+(ht*8+2*k+1)*4+r}"
    def tag(ht, k, r): return f"v_bfi_b32 v{vO+(k*2+ht)*4+r}, v215, v{20+r}, v{vO+(k*2+ht)*4+r}"
    def pst(ht, k): return f"buffer_store_dwordx4 {vr(vO+(k*2+ht)*4,4)}, v229, {SWS}, s{4+ht} offen offset:{k*256} sc1"
    groups = [(k, ht) for k in range(4) for ht in range(2)]
    for G_, (k, ht) in enumerate(groups[:-1]):
        b = 8*(G_+1)
        add(b+5, cvt(ht, k, 0) + "\n" + cvt(ht, k, 1)); add(b+6, cvt(ht, k, 2) + "\n" + cvt(ht, k, 3))
        add(b+7, tag(ht, k, 0) + "\n" + tag(ht, k, 1))
        if G_ < 6: add(b+8, tag(ht, k, 2) + "\n" + tag(ht, k, 3)); add(b+9, pst(ht, k))
    if not tailT: add(8, "s_nop 1")
    nm = 0
    for (k, ht) in groups:
        for ct in (2*k, 2*k+1):
            for t in range(4):
                assert not any(isinstance(f, tuple) and f[0] == 'T' and (f[1] ^ (2*f[2]*o['ROT']), f[2]) == (ct, t) for n, L in fill.items() if n >= nm for f in L)
                lg.wait(('P', t, ht)); lg.wait(('T', ct, t, 1))
                acc = vAcc + (ht*8+ct)*4
                g(f"v_mfma_f32_16x16x32_bf16 {vr(acc,4)}, {vr(vP+(t*2+ht)*4,4)}, {ar(128+(ct*4+t)*4,4)}, {'0' if t == 0 else vr(acc,4)}")
                for f in fill.get(nm, []):
                    if isinstance(f, tuple) and f[0] == 'T': rdT1(*f[1:])
                    elif isinstance(f, tuple) and f[0] == 'W': lg.wait(f[1])
                    else: g(f)
                nm += 1
    g.stamp('pv')
    g(tag(0, 3, 2) + "\n" + tag(0, 3, 3) + "\n" + pst(0, 3) + f"\ns_mov_b32 {sSpin}, 0\ns_nop 1")
    for r in range(4): g(cvt(1, 3, r))
    for r in range(4): g(tag(1, 3, r))
    g(pst(1, 3))
    if not o['UVA']:
        for k in range(8): uvdma(k)
    vML = 24
    mll = f"buffer_load_dwordx3 v[24:26], v231, {SWS}, s59 offen sc1\nbuffer_load_dwordx3 v[28:30], v231, {SWS}, s36 offen sc1"
    g(mll)
    Lm, Lmok = g.label("ml"), g.label("mlok")
    g(f"s_waitcnt vmcnt(0)")
    g.stamp('ack')
    g(f"{Lm}:\nv_xor_b32 v3, {sT[0]}, v26\nv_bitop3_b32 v3, v3, v30, {sT[0]} bitop3:0xf6\nv_cmp_ne_u32 vcc, 0, v3\ns_cbranch_vccz {Lmok}\n{mll}")
    spin_check(g)
    g(f"s_waitcnt vmcnt(0)\ns_branch {Lm}\n{Lmok}:")
    g.stamp('ml')
    def red16(reg, tmp, op):
        for m in ("quad_perm:[1,0,3,2]", "row_ror:8"): g(f"s_nop 1\n{op}_dpp v{reg}, v{reg}, v{reg} {m} {DPP}")
        g(f"v_mov_b32 v{tmp}, v{reg}\ns_nop 1\nv_permlane16_swap_b32 v{reg}, v{tmp}\n{op} v{reg}, v{reg}, v{tmp}")
        g(f"v_mov_b32 v{tmp}, v{reg}\ns_nop 1\nv_permlane32_swap_b32 v{reg}, v{tmp}\n{op} v{reg}, v{reg}, v{tmp}")
    vRB, vRA = 128, 64
    def pld(u): g(f"s_add_u32 s49, s58, {u*0x20000}\nbuffer_load_dwordx4 {vr(vRB+4*u,4)}, v230, {SWS}, s49 offen sc1")
    for u in range(8): pld(u)
    for dh in range(2):
        for rho in range(2):
            for q in range(4): g(f"ds_read_b64_tr_b16 {ar((dh*4+q)*4+2*rho,2)}, v{44+q} offset:{rho*16384+dh*1024}")
    g(f"v_xor_b32 v3, {sT[0]}, v9\nv_bitop3_b32 v3, v3, v8, s56 bitop3:0xf6\nv_cmp_ne_u32 s[38:39], 0, v3")
    g("v_max_f32 v48, v24, v28")
    red16(48, 3, "v_max_f32")
    g(f"""
    v_sub_f32 v24, v24, v48
    v_sub_f32 v28, v28, v48
    v_exp_f32 v24, v24
    v_exp_f32 v28, v28
    s_nop 0
    v_cvt_pk_bf16_f32 v24, v24, v24
    v_cvt_pk_bf16_f32 v28, v28, v28
    v_and_b32 v26, 0xffff0000, v24
    v_and_b32 v30, 0xffff0000, v28
    v_mov_b32_dpp v27, v24 row_ror:8 {DPP}
    v_mov_b32_dpp v31, v28 row_ror:8 {DPP}
    v_mul_f32 v49, v26, v25
    v_fmac_f32 v49, v30, v29
    """)
    for u in range(8):
        src = [24, 27, 28, 31][u >> 1]; b = u & 1
        for r in range(4): g(f"v_and_b32_dpp v{vRA+4*u+r}, v{src}, v{vMask+r} quad_perm:[{b},{b},{2+b},{2+b}] {DPP}")
    red16(49, 3, "v_add_f32")
    g(f"ds_write_b64 v210, v[48:49]\ns_mov_b32 {sSpin}, 0")
    rl = [(g.label("pr"), g.label("pc")) for _ in range(8)]
    def pchk(u):
        g(f"v_xor_b32 v3, v{vRB+4*u}, v40")
        for j in range(1, 4): g(f"v_bitop3_b32 v3, v3, v{vRB+4*u+j}, v{40+j} bitop3:0xf6")
        g("v_and_b32 v3, 0x10001, v3\nv_cmp_ne_u32 vcc, 0, v3")
    for u in range(8):
        g(f"{rl[u][1]}:\ns_waitcnt vmcnt({7-u})")
        pchk(u)
        g(f"s_cbranch_vccnz {rl[u][0]}")
        g(f"v_mfma_f32_16x16x32_bf16 v[32:35], {vr(vRA+4*u,4)}, {vr(vRB+4*u,4)}, {'0' if u == 0 else 'v[32:35]'}")
    def pretry():
        for u in range(8):
            g(f"{rl[u][0]}:")
            for k in range(u, 8): pld(k)
            spin_check(g)
            g(f"s_branch {rl[u][1]}")
    g.tailcode.append(pretry)
    g.stamp('red')
    g("s_mov_b32 exec_hi, 0\ns_nop 6\nv_cvt_pk_bf16_f32 v32, v32, v33\nv_cvt_pk_bf16_f32 v33, v34, v35\nds_write2st64_b32 v208, v32, v33 offset1:1\ns_mov_b32 exec_hi, -1\ns_waitcnt lgkmcnt(0)\ns_barrier")
    g(f"ds_read_b128 v[64:67], v200\nds_read_b128 v[24:27], v211\nds_read_b128 v[28:31], v211 offset:16")
    for sx in range(1, 4): g(f"ds_read_b128 {vr(64+4*sx,4)}, v{200+sx}")
    fl = ["s_waitcnt lgkmcnt(3)\nv_max3_f32 v3, v24, v26, v28\nv_max_f32 v3, v3, v30",
          "v_sub_f32 v24, v24, v3\nv_sub_f32 v26, v26, v3", "v_sub_f32 v28, v28, v3\nv_sub_f32 v30, v30, v3",
          "v_exp_f32 v24, v24\nv_exp_f32 v26, v26", "v_exp_f32 v28, v28\nv_exp_f32 v30, v30",
          "v_mul_f32 v3, v24, v25\nv_fmac_f32 v3, v26, v27", "v_fmac_f32 v3, v28, v29\nv_fmac_f32 v3, v30, v31", "v_rcp_f32 v3, v3"]
    i = 0
    for sx in range(4):
        g(f"s_waitcnt lgkmcnt({5 if sx == 0 else 3-sx})")
        for dt in range(2):
            g(f"v_mfma_f32_16x16x32_bf16 {vr(96+4*dt,4)}, {vr(64+4*sx,4)}, {ar((2*sx+dt)*4,4)}, {'0' if sx == 0 else vr(96+4*dt,4)}")
            g(fl[i]); i += 1
    g("s_cmp_eq_u64 s[38:39], 0\ns_nop 2")
    g("v_mul_f32 v32, v24, v96\nv_fmac_f32 v32, v26, v97\nv_fmac_f32 v32, v28, v98\nv_fmac_f32 v32, v30, v99")
    g("v_mul_f32 v33, v24, v100\nv_fmac_f32 v33, v26, v101\nv_fmac_f32 v33, v28, v102\nv_fmac_f32 v33, v30, v103")
    g(f"v_mul_f32 v32, v3, v32\nv_mul_f32 v33, v3, v33\nv_bfi_b32 v32, v{vFF}, v12, v32\nv_bfi_b32 v33, v{vFF}, v13, v33")
    a, b = g.label("cs"), g.label("ce")
    g(f"s_cbranch_scc0 {a}\nbuffer_store_dwordx2 v[32:33], v6, {SWS}, s6 offen\n{b}:")
    g.tailcode.append(lambda: g(f"{a}:\nbuffer_store_dwordx2 v[32:33], v6, {SWS}, s6 offen sc1\ns_branch {b}"))
    g.stamp('ct')
    g("s_barrier")
    g(f"""
    s_lshl_b32 s49, {sWAVE}, 4
    s_add_u32 s49, s49, {sIdx}
    s_and_b32 s50, s49, 0xf8
    s_add_u32 s50, s50, {sXg}
    s_cmp_ge_u32 s50, 20
    s_cbranch_scc1 L_fin
    s_and_b32 s49, s49, 7
    s_lshl_b32 s51, s50, 3
    s_add_u32 s51, s51, s49
    s_lshl_b32 s52, s51, 4
    s_add_u32 s52, s52, {OP}
    s_add_u32 s53, s52, {64*2560}
    v_mul_u32_u24 v3, 2560, v0
    s_lshr_b32 s54, s51, 4
    s_lshl_b32 s54, s54, 7
    s_and_b32 s51, s51, 15
    s_lshl_b32 s51, s51, 1
    s_add_u32 s54, s54, s51
    v_bfe_u32 v4, v0, 4, 1
    v_lshlrev_b32 v4, 6, v4
    v_lshrrev_b32 v5, 5, v0
    v_lshl_add_u32 v4, v5, 5, v4
    s_mov_b32 {sSpin}, 0
    """)
    Lo = g.label("o")
    g(f"{Lo}:")
    g(f"buffer_load_dwordx4 v[24:27], v3, {SWS}, s52 offen sc1\nbuffer_load_dwordx4 v[28:31], v3, {SWS}, s53 offen sc1")
    spin_check(g)
    g(f"s_waitcnt vmcnt(1)\nv_xor_b32 v5, {sT[0]}, v24")
    for r in range(1, 4): g(f"v_bitop3_b32 v5, v5, v{24+r}, {sT[r]} bitop3:0xf6")
    g("s_waitcnt vmcnt(0)")
    for r in range(4): g(f"v_bitop3_b32 v5, v5, v{28+r}, {sT[r]} bitop3:0xf6")
    g(f"v_and_b32 v5, 0xff, v5\nv_cmp_ne_u32 vcc, 0, v5\ns_cbranch_vccnz {Lo}")
    g.stamp('op')
    g(f"""
    v_pk_add_f32 v[24:25], v[24:25], v[28:29]
    v_pk_add_f32 v[26:27], v[26:27], v[30:31]
    s_nop 0
    v_permlane32_swap_b32 v24, v25
    v_permlane32_swap_b32 v26, v27
    v_add_f32 v24, v24, v25
    v_add_f32 v26, v26, v27
    s_nop 1
    v_permlane16_swap_b32 v24, v26
    v_add_f32 v24, v24, v26
    s_nop 1
    v_add_f32_dpp v24, v24, v24 row_ror:8 {DPP}
    s_nop 1
    v_add_f32_dpp v24, v24, v24 row_ror:4 {DPP}
    s_nop 1
    v_add_f32_dpp v24, v24, v24 row_ror:2 {DPP}
    s_nop 1
    v_add_f32_dpp v24, v24, v24 row_ror:1 {DPP}
    v_cvt_pk_bf16_f32 v24, v24, v24
    s_mov_b32 exec_lo, 0x00010001
    s_mov_b32 exec_hi, 0x00010001
    buffer_store_short v24, v4, {SC}, s54 offen
    s_or_b32 s49, s2, {sWAVE}
    s_cmp_lg_u32 s49, 0
    s_cbranch_scc1 L_fin
    s_mov_b64 exec, 1
    buffer_store_dword v234, v11, {SWS}, 0 offen sc1
    s_branch L_fin
    """)
    for f in g.tailcode: f()
    g.tailcode = []

def sel_setup(g, vSel, vt):
    t0, t1, t2 = vt, vt+1, vt+2
    g(f"""
    v_bfe_u32 v{t0}, v0, 3, 1
    v_mul_u32_u24 v{t0}, 0x0202, v{t0}
    v_add_u32 v{t0}, 0x0100, v{t0}
    v_or_b32 v{t1}, 0x0c0c0000, v{t0}
    v_lshlrev_b32 v{t0}, 16, v{t0}
    v_or_b32 v{t0}, 0x0c0c, v{t0}
    v_and_b32 v{t2}, 1, v0
    v_cmp_eq_u32 vcc, 1, v{t2}
    v_bfe_u32 v{t2}, v0, 1, 2
    v_mov_b32 v{vSel+3}, 0x0c0c0c0c
    v_cndmask_b32 v{t0}, v{t1}, v{t0}, vcc
    """)
    for r in range(4):
        g(f"v_cmp_eq_u32 vcc, {r}, v{t2}\ns_nop 1\nv_cndmask_b32 v{vSel+r}, v{vSel+3}, v{t0}, vcc")

def weight(g):
    o = g.opt
    NT = o['NT']
    g.role = "wgt"; g.names["wgt"].append("st")
    g("L_wgt:")
    g("""
    s_load_dwordx2 s[4:5], s[0:1], 0
    s_load_dwordx2 s[32:33], s[0:1], 16
    s_load_dwordx2 s[20:21], s[0:1], 104
    s_load_dwordx2 s[8:9], s[0:1], 24
    s_load_dwordx2 s[28:29], s[0:1], 80
    """)
    srd_tail(g, 4, 1280); srd_tail(g, 8, 512*8192); srd_tail(g, 32, 640*8192); srd_tail(g, 20, WSSZ); srd_tail(g, 28, 1280)
    LWO, LWD, LSCR, LUK = 0, 49152, 106496, 115712
    ORD = [int(c) for c in str(o['ORD'])[1:]]
    HB = ORD[8-o['XH']:]
    XD = 128*(HB[1]-HB[0]) if HB else 0
    assert all(128*(HB[k+1]-HB[k]) == XD for k in range(0, len(HB), 2)) and XD >= 0
    g(f"s_and_b32 {sXg}, s2, 7\ns_lshr_b32 {sIdx}, s2, 3\ns_sub_u32 {sIdx}, {sIdx}, 16")
    head_id(g)
    g(f"""
    v_and_b32 v1, 15, v0
    v_lshrrev_b32 v2, 4, v0
    v_mul_u32_u24 v4, 80, v2
    s_mul_i32 s50, {sQt}, 160
    s_mul_i32 s49, {sWAVE}, 10
    s_add_u32 s50, s50, s49
    s_lshl_b32 s52, s50, 13
    s_lshl_b32 s50, s50, 1
    s_lshl_b32 s49, {sH}, 8
    s_add_u32 s52, s52, s49
    v_mul_u32_u24 v6, 40, v2
    v_bfe_u32 v3, v0, 3, 1
    v_add_u32 v6, v6, v3
    v_lshlrev_b32 v5, 13, v6
    v_and_b32 v3, 7, v0
    v_lshl_add_u32 v5, v3, 4, v5
    v_lshrrev_b32 v210, 2, v1
    v_lshlrev_b32 v14, 9, v210
    v_lshl_add_u32 v14, v2, 7, v14
    v_and_b32 v3, 3, v0
    v_lshl_add_u32 v14, v3, 4, v14
    s_lshl_b32 s54, {sH}, 11
    s_add_u32 s54, s54, {QP}
    v_lshlrev_b32 v7, 4, v0
    s_and_b32 s51, s2, 3
    s_mul_i32 s53, s51, 160
    s_mul_i32 s49, {sWAVE}, 10
    s_add_u32 s53, s53, s49
    s_lshl_b32 s6, s53, 1
    v_add_u32 v11, s6, v4
    s_mov_b32 s6, 1280
    """)
    g("s_waitcnt lgkmcnt(0)")
    g.stamp('karg')
    common_epoch(g)
    vXq = 224
    vXg, vGw, vXw = 144, 152, 160
    WIN = o['WIN']
    def ldq(k):
        g(f"buffer_load_dwordx4 {ar(4*k,4)}, v5, {SF}, s52 offen offset:{128*(k&1)} {o['WQNT']}")
        if k & 1: g("s_add_u32 s52, s52, 16384")
    g(f"buffer_load_dwordx4 {vr(vXq,4)}, v4, {SX}, s50 offen\nbuffer_load_dword v{vXq+4}, v4, {SX}, s50 offen offset:16")
    g(f"buffer_load_dword v48, v14, {SWS}, s54 offen sc1")
    for k in range(WIN): ldq(k)
    g(f"""
    s_load_dwordx2 s[12:13], s[0:1], 32
    s_load_dwordx2 s[16:17], s[0:1], 40
    s_load_dwordx2 s[24:25], s[0:1], 72
    s_load_dwordx2 s[36:37], s[0:1], 64
    """)
    NXL = 1
    srd_tail(g, 12, 512*8192); srd_tail(g, 16, 4096*1280); srd_tail(g, 24, 1728*1280); srd_tail(g, 36, 640*3456)
    vSel = 16
    sel_setup(g, vSel, 8)
    vUd = 176
    vG, vTa, vTb, vFF, vTo, vGate = 44, 216, 217, 218, 244, 220
    g(f"""
    s_lshl_b32 s63, {sQt}, 2
    s_add_u32 s63, s63, {sWAVE}
    s_lshl_b32 s55, s63, 6
    s_lshl_b32 s63, s63, 18
    s_lshl_b32 s49, {sH}, 8
    s_add_u32 s63, s63, s49
    s_lshl_b32 s49, {sH}, 10
    s_add_u32 s55, s55, s49
    s_add_u32 s55, s55, {QA}
    s_lshl_b32 s62, {sWAVE}, 13
    s_add_u32 s62, s62, {LUK}
    v_lshrrev_b32 v3, 5, v0
    v_xor_b32 v3, v1, v3
    v_lshlrev_b32 v3, 4, v3
    v_lshl_add_u32 v{vUd}, v2, 13, v3
    v_xor_b32 v3, v1, v2
    v_lshlrev_b32 v3, 4, v3
    v_lshl_add_u32 v3, v1, 9, v3
    v_add_u32 v20, s62, v3
    v_xor_b32 v21, 64, v20
    v_xor_b32 v22, 128, v20
    v_xor_b32 v23, 192, v20
    v_lshlrev_b32 v15, 2, v1
    v_and_b32 v3, 3, v1
    v_lshlrev_b32 v3, 1, v3
    v_bfe_u32 v9, v0, 4, 1
    v_add_u32 v3, v3, v9
    v_lshlrev_b32 v3, 2, v3
    v_bfe_u32 v9, v0, 2, 1
    v_add_u32 v3, v3, v9
    v_lshrrev_b32 v9, 5, v0
    v_lshl_add_u32 v3, v9, 1, v3
    v_lshlrev_b32 v12, 4, v3
    s_lshl_b32 s49, {sQt}, 9
    s_add_u32 s56, s54, s49
    v_mov_b32 v24, 0x07060302
    v_mov_b32 v25, 0x00010001
    """)
    for b in range(1, 8): g(f"v_xor_b32 v{vUd+b}, {32*b}, v{vUd}")
    g(f"""
    v_lshrrev_b32 v3, 1, v0
    v_lshlrev_b32 v56, 10, v3
    v_and_b32 v9, 1, v0
    v_mul_u32_u24 v3, {XD}, v9
    v_add_u32 v56, v56, v3
    v_lshrrev_b32 v3, 3, v0
    v_lshlrev_b32 v165, 13, v3
    v_and_b32 v3, 7, v0
    v_lshl_add_u32 v165, v3, 7, v165
    v_lshrrev_b32 v8, 5, v0
    v_mul_u32_u24 v57, 3456, v6
    v_and_b32 v3, 7, v0
    v_lshl_add_u32 v57, v3, 4, v57
    s_sub_u32 s50, s2, 128
    s_lshr_b32 s50, s50, 2
    s_mul_i32 s53, s53, 3456
    s_lshl_b32 s49, s50, 7
    s_add_u32 s53, s53, s49
    s_cmp_ge_u32 s50, {0 if o.get('DIAGW') else 27}
    s_cselect_b32 s57, 0x10000000, 0
    s_add_u32 s53, s53, s57
    v_mul_u32_u24 v{vG}, 640, v8
    v_lshl_add_u32 v{vG}, v9, 8, v{vG}
    v_bfe_u32 v3, v0, 1, 3
    v_lshl_add_u32 v{vG}, v3, 4, v{vG}
    v_bfe_u32 v3, v0, 4, 1
    v_lshl_add_u32 v{vG}, v3, 10, v{vG}
    v_add_u32 v{vG}, {LSCR}, v{vG}
    v_and_b32 v10, 31, v0
    v_lshlrev_b32 v10, 4, v10
    v_lshl_add_u32 v{vG+1}, v8, 3, v10
    v_mov_b32 v{vFF}, 0xff
    s_lshl_b32 s49, {sWAVE}, 11
    s_add_u32 s49, s49, {LSCR}
    v_add_u32 v13, s49, v7
    v_bfe_u32 v10, v0, 1, 2
    v_xor_b32 v10, v2, v10
    v_lshlrev_b32 v10, 5, v10
    v_lshl_add_u32 v10, v9, 4, v10
    v_lshrrev_b32 v9, 3, v0
    v_mul_u32_u24 v30, 1280, v9
    v_add_u32 v30, v30, v10
    v_bfe_u32 v9, v0, 3, 1
    v_lshl_add_u32 v3, v9, 4, v3
    v_lshl_add_u32 v3, v8, 2, v3
    v_mul_u32_u24 v29, 1280, v3
    v_add_u32 v29, v29, v10
    s_lshl_b32 s58, s50, 2
    s_add_u32 s58, s58, s51
    s_mul_i32 s58, s58, {16*1280}
    s_lshl_b32 s49, {sWAVE}, 7
    s_add_u32 s58, s58, s49
    s_add_u32 s58, s58, s57
    s_lshl_b32 s59, {sH}, 2
    s_add_u32 s59, s59, {sQt}
    s_mul_i32 s59, s59, {32*1280}
    s_add_u32 s59, s59, s49
    s_add_u32 s59, s59, {0x10000000 if o.get('DIAGW') else 0}
    s_cmp_ge_u32 {sWAVE}, 2
    s_cselect_b32 s60, 0x10000000, 0
    s_mul_i32 s61, {sWAVE}, 6144
    s_add_u32 s61, s61, {LWD}
    s_mul_i32 s57, {sWAVE}, 12288
    v_lshlrev_b32 v8, 4, v8
    v_lshlrev_b32 v3, 1, v1
    """)
    epoch_finish(g)
    g(f"""
    v_mov_b32 v42, {sT[0]}
    v_mov_b32 v43, {sT[0]}
    v_lshrrev_b32 v3, v3, v42
    v_and_b32 v3, 3, v3
    v_lshl_or_b32 v26, v3, 15, v3
    v_not_b32 v3, v26
    v_and_b32 v28, 0x10000, v3
    v_lshlrev_b32 v3, 16, v3
    v_and_b32 v27, 0x10000, v3
    v_lshrrev_b32 v{vTa}, v8, v42
    v_lshrrev_b32 v{vTb}, 8, v{vTa}
    """)
    vUk = 184
    g(f"s_lshl_b32 s49, {sWAVE}, 10\ns_add_u32 s49, s49, {LSCR}\nv_add_u32 v31, s49, v7\nv_add_u32 v46, {LSCR}, v7")
    for k in range(WIN, 10): ldq(k)
    g(f"s_waitcnt vmcnt(11)")
    g.stamp('k0')
    for u in range(5):
        for r in range(4): g(f"v_perm_b32 v{64+4*u+r}, v{vXq+u}, v{vXq+u}, v{vSel+r}")
    for k in range(10):
        u, m = k >> 1, k & 1
        g(f"s_waitcnt vmcnt({9-k})")
        g(f"v_mfma_f32_16x16x32_bf16 {vr(32+4*m,4)}, {vr(64+4*u,4)}, {ar(4*k,4)}, {'0' if u == 0 else vr(32+4*m,4)}")
    g("s_nop 7")
    for r in range(4): g(f"v_permlane32_swap_b32 v{32+r}, v{36+r}")
    for r in range(4): g(f"v_add_f32_dpp v{32+r}, v{36+r}, v{32+r} row_ror:8 {DPP}")
    g("ds_write_b128 v31, v[32:35]\ns_waitcnt lgkmcnt(0)\ns_barrier")
    Lw1 = g.label("now1")
    g(f"s_cmp_lg_u32 {sWAVE}, 0\ns_cbranch_scc1 {Lw1}")
    g("ds_read_b128 v[36:39], v46 offset:1024\nds_read_b128 v[64:67], v46 offset:2048\nds_read_b128 v[68:71], v46 offset:3072")
    g("s_mov_b32 exec_lo, 0x00ff00ff\ns_mov_b32 exec_hi, 0x00ff00ff\ns_waitcnt lgkmcnt(2)\nv_pk_add_f32 v[32:33], v[32:33], v[36:37]\nv_pk_add_f32 v[34:35], v[34:35], v[38:39]")
    g("s_waitcnt lgkmcnt(0)\nv_pk_add_f32 v[64:65], v[64:65], v[68:69]\nv_pk_add_f32 v[66:67], v[66:67], v[70:71]\nv_pk_add_f32 v[32:33], v[32:33], v[64:65]\nv_pk_add_f32 v[34:35], v[34:35], v[66:67]")
    g("v_cvt_pk_bf16_f32 v40, v32, v33\nv_cvt_pk_bf16_f32 v41, v34, v35")
    g(f"buffer_store_dwordx4 v[40:43], v12, {SWS}, s56 offen\ns_mov_b64 exec, -1")
    g(f"{Lw1}:")
    g.stamp('w1')
    g("s_barrier")
    for b in range(8):
        g(f"s_add_u32 m0, s62, {b*1024}\ns_add_u32 s49, s63, {b*4*8192}")
        g(f"buffer_load_dwordx4 v{vUd+b}, {SA}, s49 offen {o['UKNT']} lds")
    Lq, Lqs = g.label("qp"), g.label("qps")
    qpl = f"buffer_load_dwordx4 v[48:51], v14, {SWS}, s54 offen sc1\nbuffer_load_dwordx4 v[52:55], v14, {SWS}, s54 offen offset:64 sc1"
    qwt = f"s_mov_b32 exec_lo, 0x00ff00ff\ns_mov_b32 exec_hi, 0x00ff00ff\ns_add_u32 s49, s56, {QPG-QP}\nbuffer_store_dwordx4 v[40:43], v12, {SWS}, s49 offen sc1\ns_mov_b64 exec, -1"
    g(f"""
    s_mov_b32 {sSpin}, 0
    {qpl}
    s_load_dwordx2 s[32:33], s[0:1], 8
    s_mov_b32 s34, {16384*1024}
    s_lshl_b32 s52, {sXg}, 4
    s_add_u32 s52, s52, {sIdx}
    s_lshl_b32 s52, s52, 2
    s_add_u32 s52, s52, {sWAVE}
    s_lshl_b32 s52, s52, 15
    s_mul_i32 s49, {sWAVE}, {256*o['ROT']}
    s_add_u32 s52, s52, s49
    s_lshl_b32 s62, {sQt}, 1
    s_lshr_b32 s49, {sWAVE}, 1
    s_add_u32 s62, s62, s49
    s_lshl_b32 s62, s62, 3
    s_lshr_b32 s49, {sIdx}, 2
    s_lshl_b32 s49, s49, 1
    s_add_u32 s62, s62, s49
    s_and_b32 s49, {sWAVE}, 1
    s_add_u32 s62, s62, s49
    s_lshl_b32 s62, s62, 16
    s_lshl_b32 s49, {sXg}, 10
    s_add_u32 s62, s62, s49
    s_waitcnt vmcnt(2)
    """)
    for ct in range(2):
        for sx in range(4): g(f"ds_read_b128 {vr(vUk+(ct*4+sx)*4,4)}, v{20+sx} offset:{ct*256}")
    g(f"{Lq}:\ns_waitcnt vmcnt(0)\nv_xor_b32 v3, {sT[0]}, v50\nv_bitop3_b32 v3, v3, v54, {sT[0]} bitop3:0xf6\nv_cmp_ne_u32 vcc, 0, v3\ns_cbranch_vccz {Lqs}")
    g(qpl)
    spin_check(g)
    g(f"s_cmp_lg_u32 {sSpin}, {o['NLOC']}\ns_cbranch_scc1 {Lq}\ns_add_u32 s54, s54, {QPG-QP}\ns_cmp_lg_u32 {sWAVE}, 0\ns_cbranch_scc1 {Lq}")
    g(f"{qwt}\ns_branch {Lq}")
    g(f"{Lqs}:")
    g.stamp('qp')
    vB = 64
    src = [48, 49, 52, 53]
    for sx in range(4):
        for k in range(4): g(f"v_mov_b32_dpp v{vB+4*sx+k}, v{src[k]} quad_perm:[{sx},{sx},{sx},{sx}] {DPP}")
        if sx == 1: g("s_waitcnt lgkmcnt(0)")
        if sx >= 1:
            for ct in range(2):
                g(f"v_mfma_f32_16x16x32_bf16 {vr(32+4*ct,4)}, {vr(vB+4*(sx-1),4)}, {vr(vUk+(ct*4+sx-1)*4,4)}, {'0' if sx == 1 else vr(32+4*ct,4)}")
    for ct in range(2):
        g(f"v_mfma_f32_16x16x32_bf16 {vr(32+4*ct,4)}, {vr(vB+12,4)}, {vr(vUk+(ct*4+3)*4,4)}, {vr(32+4*ct,4)}")
    g(f"""
    s_nop 7
    v_permlane32_swap_b32 v32, v36
    v_add_f32 v32, v32, v36
    v_mov_b32 v33, v32
    s_nop 1
    v_permlane16_swap_b32 v32, v33
    v_add_f32 v32, v32, v33
    v_mov_b32 v33, v32
    s_nop 1
    v_permlane32_swap_b32 v32, v33
    v_add_u32 v32, v32, v27
    v_add_u32 v33, v33, v28
    v_perm_b32 v32, v33, v32, v24
    v_bfi_b32 v32, v25, v26, v32
    s_mov_b64 exec, 0xffff
    buffer_store_dword v32, v15, {SWS}, s55 offen sc1
    s_mov_b64 exec, -1
    """)
    g.stamp('qa')
    sk = g.label("qwt")
    g(f"s_cmp_lg_u32 {sWAVE}, 0\ns_cbranch_scc1 {sk}\n{qwt}\n{sk}:")
    g("s_barrier")
    xc_publish(g, 3)
    vm = Pend(g, 'vmcnt', 63)
    vF = 0
    XH = o['XH']
    def xh(k): g(f"s_xor_b32 s49, s52, {128*HB[2*k]}\nbuffer_load_dword v{58+k}, v56, {SF}, s49 offen"); vm.add('H')
    g(f"""
    buffer_load_dwordx4 {vr(vXw,4)}, v11, {SX}, 0 offen
    buffer_load_dword v{vXw+4}, v11, {SX}, 0 offen offset:16
    buffer_load_dwordx4 {vr(vXg,4)}, v7, {SX}, 0 offen
    buffer_load_dwordx4 {vr(vXg+4,4)}, v7, {SX}, 0 offen offset:1024
    buffer_load_dwordx4 {vr(vGw,4)}, v7, {SE}, 0 offen
    buffer_load_dwordx4 {vr(vGw+4,4)}, v7, {SE}, 0 offen offset:1024
    s_load_dwordx2 s[28:29], s[0:1], 56
    s_mov_b32 s30, {640*3456}
    """); vm.add('X', 6)
    def gatecode():
        vm.wait('X')
        for u in range(5):
            for r in range(4): g(f"v_perm_b32 v{64+4*u+r}, v{vXw+u}, v{vXw+u}, v{vSel+r}")
        g(f"v_dot2_f32_bf16 v3, v{vXg}, v{vGw}, 0")
        for k in range(1, 8): g(f"v_dot2_f32_bf16 v3, v{vXg+k}, v{vGw+k}, v3")
        g("s_nop 2")
        for sh in (8, 4, 2, 1): g(f"v_add_f32_dpp v3, v3, v3 row_ror:{sh} {DPP}\ns_nop 1")
        g("v_mov_b32 v4, v3\ns_nop 1\nv_permlane16_swap_b32 v3, v4\nv_add_f32 v3, v3, v4")
        g("v_mov_b32 v4, v3\ns_nop 1\nv_permlane32_swap_b32 v3, v4\nv_add_f32 v3, v3, v4")
        g(f"""
    v_mul_f32 v3, {f2u(-1.4426950408889634):#x}, v3
    v_exp_f32 v3, v3
    s_nop 0
    v_add_f32 v3, 1.0, v3
    v_rcp_f32 v{vGate}, v3
    s_nop 0
    v_sub_f32 v{vGate+1}, 1.0, v{vGate}
        """)
    XE = XH//2 if o['QW'] == 3 else (1 if XH and not o['QW'] else 0)
    for k in range(XE): xh(k)
    g(f"""
    v_bfe_u32 v3, v0, 2, 3
    v_lshlrev_b32 v4, 7, v3
    v_lshrrev_b32 v3, 1, v3
    v_lshl_add_u32 v4, v3, 5, v4
    v_and_b32 v3, 3, v0
    v_lshl_add_u32 v4, v3, 3, v4
    v_lshrrev_b32 v3, 5, v0
    v_lshl_add_u32 v4, v3, 10, v4
    """)
    for q in range(4):
        g(f"v_xor_b32 v3, {q*32}, v4\nv_add_u32 v{vTo+q}, s57, v3\nv_add_u32 v{vTo+4+q}, s61, v3")
    g(f"""
    v_lshrrev_b32 v210, 2, v1
    v_lshlrev_b32 v14, 9, v210
    v_lshl_add_u32 v14, v2, 4, v14
    v_lshlrev_b32 v211, 10, v2
    v_lshl_add_u32 v211, v1, 4, v211
    v_lshlrev_b32 v15, 4, v1
    v_lshl_add_u32 v15, v2, 9, v15
    v_lshlrev_b32 v20, 7, v1
    s_lshl_b32 s55, {sH}, 2
    s_add_u32 s55, s55, {sQt}
    s_lshl_b32 s55, s55, 11
    s_add_u32 s55, s55, {CT}
    s_lshl_b32 s5, s50, 11
    s_add_u32 s5, s5, {FP}
    s_lshl_b32 s49, s51, 9
    s_add_u32 s54, s5, s49
    s_lshl_b32 s49, s51, 6
    s_add_u32 s5, s5, s49
    """)
    g("s_waitcnt lgkmcnt(0)")
    if o['QW'] == 4: gatecode()
    if o['QW'] in (1, 2, 3):
        Lw = g.label("qw")
        g(f"""
        v_and_b32 v3, 3, v0
        v_lshlrev_b32 v3, 3, v3
        v_lshrrev_b32 v3, v3, v42
        v_and_b32 v9, 31, v0
        v_lshlrev_b32 v9, 4, v9
        s_lshl_b32 s56, {sIdx}, 2
        s_add_u32 s56, s56, {sWAVE}
        s_lshl_b32 s56, s56, 9
        s_add_u32 s56, s56, {QA}
        s_mov_b32 {sSpin}, 0
        """)
        for j in range(4): g(f"v_bfe_u32 v4, v3, {2*j}, 2\nv_lshl_or_b32 v{24+j}, v4, 15, v4")
        gatecode()
        g(f"{Lw}:\nbuffer_load_dwordx4 v[48:51], v9, {SWS}, s56 offen sc1")
        spin_check(g)
        g("s_waitcnt vmcnt(0)\nv_xor_b32 v3, v48, v24")
        for j in range(1, 4): g(f"v_bitop3_b32 v3, v3, v{48+j}, v{24+j} bitop3:0xf6")
        g(f"v_and_b32 v3, 0x10001, v3\nv_cmp_ne_u32 vcc, 0, v3\ns_cbranch_vccnz {Lw}")
        vm.clear()
        if o['QW'] == 2: g("s_barrier")
    g.stamp('set')
    for k in range(XE, XH//2): xh(k)
    if o.get('XW'): vm.wait('H')
    if o.get('DIAGW'): g.stamp('xi'); g('s_waitcnt vmcnt(1)'); g.stamp('x0'); g('s_waitcnt vmcnt(0)'); g.stamp('x1')
    if o['UVA'] == 2: g(f"buffer_load_dword v60, v165, {SB}, s62 offen"); vm.add('H')
    for k in range(10):
        if k >= o['FW']: vm.wait(('F', k-o['FW']))
        g(f"buffer_load_dwordx4 {ar(vF+4*k,4)}, v57, {SG if k & 1 else SE}, s53 offen {NT}"); vm.add(('F', k))
        if k & 1: g(f"s_add_u32 s53, s53, {2*3456}")
    if not o['UVA']: g(f"buffer_load_dword v60, v165, {SB}, s62 offen"); vm.add('H')
    dl = []
    for gam in range(3):
        for gp in range(2):
            dl.append(f"s_add_u32 m0, s61, {(gam*2+gp)*1024}\ns_add_u32 s49, s58, {gam*512 + gp*8*1280}\n" + ("s_add_u32 s49, s49, s60\n" if gam == 2 else "") + f"buffer_load_dwordx4 v30, {SD}, s49 offen {NT} lds")
    for gam in range(3):
        for rho in range(2):
            for gp in range(2):
                dl.append(f"s_add_u32 m0, s57, {(gam*4+rho*2+gp)*1024}\ns_add_u32 s49, s59, {gam*512 + (8*gp+2*rho)*1280}\n" + ("s_add_u32 s49, s49, s60\n" if gam == 2 else "") + f"buffer_load_dwordx4 v29, {SC}, s49 offen {NT} lds")
    N1, N2 = o['N1'], o['N2']
    for k in range(N1): g(dl[k]); vm.add('D')
    g.stamp('iss1')
    if not o['QW']: gatecode()
    for k in range(10):
        u, m = k >> 1, k & 1
        vm.wait(('F', k))
        g(f"v_mfma_f32_16x16x32_bf16 {vr(32+4*m,4)}, {vr(64+4*u,4)}, {ar(vF+4*k,4)}, {'0' if u == 0 else vr(32+4*m,4)}")
    g("s_nop 7\nds_write_b128 v13, v[32:35]\nds_write_b128 v13, v[36:39] offset:1024\ns_waitcnt lgkmcnt(0)\ns_barrier")
    sk = g.label("skip")
    g(f"s_cmp_lg_u32 {sWAVE}, 3\ns_cbranch_scc1 {sk}")
    d = 128
    for wv in range(4): g(f"ds_read_b128 {vr(d+4*wv,4)}, v{vG} offset:{wv*2048}")
    g("s_waitcnt lgkmcnt(2)")
    for r in range(4): g(f"v_add_f32 v{d+r}, v{d+r}, v{d+4+r}")
    g("s_waitcnt lgkmcnt(0)")
    for r in range(4): g(f"v_add_f32 v{d+8+r}, v{d+8+r}, v{d+12+r}")
    for r in range(4): g(f"v_add_f32 v{d+r}, v{d+r}, v{d+8+r}")
    g(f"s_nop 0\nv_permlane32_swap_b32 v{d}, v{d+2}\nv_permlane32_swap_b32 v{d+1}, v{d+3}")
    g(f"v_add_f32 v{d}, v{d}, v{d+2}\nv_add_f32 v{d+1}, v{d+1}, v{d+3}")
    g(f"v_bfi_b32 v{d}, v{vFF}, v{vTa}, v{d}\nv_bfi_b32 v{d+1}, v{vFF}, v{vTb}, v{d+1}")
    g(f"buffer_store_dwordx2 {vr(d,2)}, v{vG+1}, {SWS}, s54 offen sc1")
    g(f"{sk}:")
    g.stamp('fp')
    for k in range(N1, N2): g(dl[k]); vm.add('D')
    fpl = f"buffer_load_dwordx4 v[48:51], v14, {SWS}, s5 offen sc1\nbuffer_load_dwordx4 v[52:55], v14, {SWS}, s5 offen offset:256 sc1"
    g(f"buffer_load_dword v21, v20, {SWS}, s55 offen sc1"); vm.add('H')
    g(fpl); vm.add('P', 2)
    for k in range(N2, 18): g(dl[k]); vm.add('D2')
    g.stamp('iss2')
    g(f"""
    s_lshl_b32 s4, {sXg}, 4
    s_add_u32 s4, s4, {sIdx}
    s_mul_i32 s4, s4, 2560
    s_lshl_b32 s49, {sWAVE}, 8
    s_add_u32 s4, s4, s49
    s_add_u32 s4, s4, {OP}
    v_cmp_eq_u32 s[50:51], 0, v210
    v_cmp_eq_u32 s[52:53], 1, v210
    v_cmp_eq_u32 s[58:59], 2, v210
    s_cmp_ge_u32 {sWAVE}, 2
    s_cselect_b32 s61, 0, 0xffff
    s_mov_b32 {sSpin}, 0
    """)
    vm.wait('P')
    g.stamp('p1')
    assert N2 >= 6
    aD, aO = 0, 24
    for gam in range(3):
        for q in range(4): g(f"ds_read_b64_tr_b16 {ar(aD+(gam*4+q)*2,2)}, v{vTo+4+q} offset:{gam*2048}")
    Lf, Lfok = g.label("fp"), g.label("fpok")
    g(f"{Lf}:\nv_xor_b32 v3, {sT[0]}, v48")
    for k in range(1, 8): g(f"v_bitop3_b32 v3, v3, v{48+k}, {sT[k&3]} bitop3:0xf6")
    g(f"v_and_b32 v3, 0xff, v3\nv_cmp_ne_u32 vcc, 0, v3\ns_cbranch_vccz {Lfok}")
    g(fpl)
    spin_check(g)
    g(f"s_waitcnt vmcnt(0)\ns_branch {Lf}\n{Lfok}:")
    g.stamp('fpok')
    ror_sum(g, 48, 8)
    for k in range(4): g(f"v_cvt_pk_bf16_f32 v{32+k}, v{48+k}, v{52+k}")
    for k in range(4): g(f"v_lshlrev_b32 v{24+k}, 16, v{32+k}\nv_and_b32 v{28+k}, 0xffff0000, v{32+k}")
    c1 = -2*0.7978845608028654*1.4426950408889634
    g(f"s_mov_b32 s49, {f2u(c1*0.044715):#x}\nv_mov_b32 v3, {f2u(c1):#x}")
    for k in range(4): g(f"v_mul_f32 v{32+k}, v{24+k}, v{24+k}")
    for k in range(4): g(f"v_fma_f32 v{32+k}, v{32+k}, s49, v3")
    for k in range(4): g(f"v_mul_f32 v{32+k}, v{32+k}, v{24+k}")
    for k in range(4): g(f"v_exp_f32 v{32+k}, v{32+k}")
    for k in range(4): g(f"v_add_f32 v{32+k}, 1.0, v{32+k}")
    for k in range(4): g(f"v_rcp_f32 v{32+k}, v{32+k}")
    for k in range(4): g(f"v_mul_f32 v{32+k}, v{32+k}, v{24+k}")
    for k in range(4): g(f"v_cvt_pk_bf16_f32 v{32+k}, v{32+k}, v{32+k}")
    for k in range(4): g(f"v_and_b32 v{32+k}, 0xffff0000, v{32+k}\nv_mul_f32 v{32+k}, v{32+k}, v{28+k}")
    g("v_cvt_pk_bf16_f32 v24, v32, v33\nv_cvt_pk_bf16_f32 v25, v34, v35")
    for gam in range(3):
        g(f"v_cmp_eq_u32 vcc, {4*gam}, v1\ns_nop 1\nv_cndmask_b32 v{26+2*gam}, 0, v24, vcc\nv_cndmask_b32 v{27+2*gam}, 0, v25, vcc")
    g("s_waitcnt lgkmcnt(0)")
    vOa = 176
    for gam in range(3):
        for q in range(4):
            g(f"v_mfma_f32_16x16x16_bf16 {vr(vOa+4*q,4)}, {vr(26+2*gam,2)}, {ar(aD+(gam*4+q)*2,2)}, {'0' if gam == 0 else vr(vOa+4*q,4)}")
    g("s_waitcnt vmcnt(0)")
    g.stamp('strm')
    for gam in range(3):
        for rho in range(2):
            for q in range(4): g(f"ds_read_b64_tr_b16 {ar(aO+(gam*4+q)*4+2*rho,2)}, v{vTo+q} offset:{gam*4096+rho*2048}")
    for q in range(4): g(f"v_mul_f32 v{204+q}, v{vGate+1}, v{vOa+4*q}")
    g(f"s_mov_b32 {sSpin}, 0\ns_waitcnt lgkmcnt(0)")
    if o.get('DIAGA'): g('s_branch L_fin')
    Lx = g.label("ct")
    g(f"{Lx}:\nbuffer_load_dwordx4 v[24:27], v15, {SWS}, s55 offen sc1\nbuffer_load_dwordx4 v[28:31], v15, {SWS}, s55 offen offset:256 sc1")
    spin_check(g)
    g(f"s_waitcnt vmcnt(1)\nv_xor_b32 v3, {sT[0]}, v24")
    for k in range(1, 8):
        if k == 4: g("s_waitcnt vmcnt(0)")
        g(f"v_bitop3_b32 v3, v3, v{24+k}, {sT[k&3]} bitop3:0xf6")
    g(f"v_and_b32 v3, 0xff, v3\nv_cmp_ne_u32 vcc, 0, v3\ns_cbranch_vccnz {Lx}")
    g.stamp('ct')
    ror_sum(g, 24, 8)
    for k in range(4): g(f"v_cvt_pk_bf16_f32 v{32+k}, v{24+2*k}, v{25+2*k}")
    msk = ['s[50:51]', 's[52:53]', 's[58:59]']
    for k in range(4): g(f"v_cndmask_b32 v{112+k}, 0, v{32+k}, {msk[0]}")
    g(f"v_cndmask_b32 v116, 0, v32, {msk[1]}\nv_cndmask_b32 v117, 0, v33, {msk[1]}")
    fl = [f"v_cndmask_b32 v118, 0, v34, {msk[1]}", f"v_cndmask_b32 v119, 0, v35, {msk[1]}"] + [f"v_cndmask_b32 v{120+k}, 0, v{32+k}, {msk[2]}" for k in range(4)]
    i = 0
    for gam in range(3):
        for q in range(4):
            g(f"v_mfma_f32_16x16x32_bf16 {vr(vOa+4*q,4)}, {vr(112+4*gam,4)}, {ar(aO+(gam*4+q)*4,4)}, {'0' if gam == 0 else vr(vOa+4*q,4)}")
            if i < len(fl): g(fl[i])
            i += 1
    g("s_nop 4")
    for q in range(4):
        g(f"v_pk_add_f32 {vr(vOa+4*q,2)}, {vr(vOa+4*q,2)}, {vr(vOa+4*q+2,2)}")
    for q in range(4): g(f"v_add_f32 v{24+q}, v{vOa+4*q}, v{vOa+4*q+1}")
    for q in range(4): g(f"v_fma_f32 v{24+q}, v{24+q}, v{vGate}, v{204+q}")
    for q in range(4): g(f"v_bfi_b32 v{24+q}, v{vFF}, {sT[q]}, v{24+q}")
    g(f"s_mov_b32 exec_hi, s61\nbuffer_store_dwordx4 v[24:27], v211, {SWS}, s4 offen sc1")
    g.stamp('op')

def build(**opt):
    g = G(**opt)
    g.o.append(HEADER.rstrip('\n'))
    g.o.append("; @launch grid=(256,1,1) block=(256,1,1) lds=163840")
    g.o.append('.amdgcn_target "amdgcn-amd-amdhsa--gfx950"')
    g.o.append(f".text\n.globl {KN}\n.p2align 8\n.type {KN},@function\n{KN}:")
    g.stamp('st')
    g(f"""
    v_lshrrev_b32 v1, 6, v0
    s_cmp_ge_u32 s2, 256
    s_cbranch_scc1 L_end
    v_readfirstlane_b32 {sWAVE}, v1
    v_and_b32 v0, 63, v0
    s_cmp_ge_u32 s2, 128
    s_cbranch_scc1 L_wgt
    """)
    attention(g)
    weight(g)

    g("L_fin:")
    if g.opt.get('PADTO'):
        g(f"""
        s_lshl_b32 s49, {sWAVE}, 16
        s_or_b32 s49, s2, s49
        s_cmp_lg_u32 s49, {g.opt.get('PADWG', 0)}
        s_cbranch_scc1 L_padend
        L_pad:
        s_memrealtime s[98:99]
        s_waitcnt lgkmcnt(0)
        s_sub_u32 s49, s98, s64
        s_cmp_lt_u32 s49, {g.opt['PADTO']}
        s_cbranch_scc1 L_pad
        L_padend:
        """)
    if g.opt['STAMPS']:
        g(('s_memtime' if g.opt.get('CLK') else 's_memrealtime') + " s[100:101]\ns_waitcnt lgkmcnt(0)\ns_mov_b64 exec, 1")
        g(f"s_lshl_b32 s49, s2, 2\ns_add_u32 s49, s49, {sWAVE}\ns_lshl_b32 s49, s49, 7\ns_add_u32 s49, s49, {STAMP}\nv_mov_b32 v1, 0")
        g.o.append("; STAMPS att " + " ".join(g.names['att']))
        g.o.append("; STAMPS wgt " + " ".join(g.names['wgt']))
        for q in range(5):
            for k in range(4):
                idx = 4*q+k
                g(f"v_mov_b32 v{4+k}, s{64+2*idx}" if idx <= 18 else f"v_mov_b32 v{4+k}, {sSpin}")
            g(f"buffer_store_dwordx4 v[4:7], v1, {SWS}, s49 offen offset:{16*q}\ns_nop 1")
    g("L_end:\ns_endpgm")
    g.o.append(f""".section .rodata,"a"
.p2align 6
.amdhsa_kernel {KN}
  .amdhsa_next_free_vgpr 512
  .amdhsa_next_free_sgpr 102
  .amdhsa_accum_offset 256
  .amdhsa_group_segment_fixed_size 0
  .amdhsa_kernarg_size 112
  .amdhsa_user_sgpr_count 2
  .amdhsa_user_sgpr_kernarg_segment_ptr 1
  .amdhsa_system_sgpr_workgroup_id_x 1
  .amdhsa_float_denorm_mode_32 3
.end_amdhsa_kernel""")
    return g.text()

if __name__ == '__main__':
    out = sys.argv[1]
    opt = {}
    for a in sys.argv[2:]:
        k, v = a.split('=')
        try: v = int(v, 0)
        except ValueError: pass
        opt[k] = v
    t = build(**opt)
    open(out, 'w').write(t)
    import hazard
    for p in hazard.check(t): print("HAZARD", p)
```

```python
import sys, struct
KN = "gated_mix__compressed_kv_cla__geglu_ffn__decode_kernel"
HEADER = open('gated_mix__compressed_kv_cla__geglu_ffn__decode.s.ref').read().split('; Override launch')[0]

EPOCH = 0
XC   = 0x1000
QP   = 0x10000
QA   = 0x20000
QPG  = 0xC0000
ML   = 0x30000
FP   = 0x40000
OP   = 0x50000
CT   = 0x100000
PART = 0x200000
STAMP = 0x600000
WSSZ = 0x700000
SPIN = 1 << 17
QB = 131072
SCALE = 0.08838834764831845 * 1.4426950408889634
DPP = "row_mask:0xf bank_mask:0xf"

def f2u(f): return struct.unpack('<I', struct.pack('<f', f))[0]

class G:
    def __init__(self, **opt):
        self.o = []
        self.opt = dict(WSB=0, STAMPS=0, NT='nt', WIN=6, PF1=2, WQNT='nt', UKNT='nt', HMAP='adj',
                        PF1W=1, PF2W=0, NS=4, LA=2, LQ=0, NX=2, NXE=0, XH=4, ORD='o01234567', ROT=1, NLOC=24, FW=10, N1=8, N2=18, CPF=1, UVA=1, UV0=12, QW=0)
        self.opt.update(opt)
        self.names = {'att': [], 'wgt': []}; self.role = 'att'
        self.lab = 0
        self.tailcode = []
    def __call__(self, s):
        for l in s.strip('\n').split('\n'):
            l = l.strip()
            if l: self.o.append(l if l.endswith(':') else '    ' + l)
    def label(self, p):
        self.lab += 1
        return f"L_{p}_{self.lab}"
    def stamp(self, name):
        if self.opt['STAMPS']:
            L = self.names[self.role]
            if name not in L: L.append(name)
            k = L.index(name)
            if k >= 18: L.pop(); return
            self(f"{'s_memtime' if self.opt.get('CLK') else 's_memrealtime'} s[{64+2*k}:{65+2*k}]")
    def text(self): return '\n'.join(self.o) + '\n'

def vr(b, n=1): return f"v{b}" if n == 1 else f"v[{b}:{b+n-1}]"
def ar(b, n=1): return f"a{b}" if n == 1 else f"a[{b}:{b+n-1}]"

sWAVE = 's3'
SX, SA, SB, SC, SWS, SD, SE, SF, SG = 's[4:7]', 's[8:11]', 's[12:15]', 's[16:19]', 's[20:23]', 's[24:27]', 's[28:31]', 's[32:35]', 's[36:39]'
sT = ['s40', 's41', 's42', 's43']
sXg, sIdx, sH, sQt = 's44', 's45', 's46', 's47'
sSpin = 's48'

def srd_tail(g, base, size):
    g(f"s_mov_b32 s{base+2}, {size}\ns_mov_b32 s{base+3}, 0x20000")
def common_epoch(g):
    if g.opt['WSB']:
        g(f"s_add_u32 s20, s20, {g.opt['WSB']}\ns_addc_u32 s21, s21, 0")
    g(f"s_load_dword s40, s[20:21], {EPOCH}")
def epoch_finish(g):
    g("s_waitcnt lgkmcnt(0)")
    g("s_add_u32 s40, s40, 0x01010101\ns_lshr_b32 s41, s40, 8\ns_lshr_b32 s42, s40, 16\ns_lshr_b32 s43, s40, 24")
def spin_check(g):
    g(f"s_add_u32 {sSpin}, {sSpin}, 1\ns_cmp_gt_u32 {sSpin}, {SPIN}\ns_cbranch_scc1 L_end")
def head_id(g):
    if g.opt['HMAP'] == 'adj':
        g(f"s_lshr_b32 s49, {sIdx}, 2\ns_lshl_b32 {sH}, {sXg}, 2\ns_add_u32 {sH}, {sH}, s49")
    else:
        g(f"s_lshr_b32 s49, {sIdx}, 2\ns_lshl_b32 {sH}, s49, 3\ns_add_u32 {sH}, {sH}, {sXg}")
    g(f"s_and_b32 {sQt}, {sIdx}, 3")
def quad_sum(g, base, n):
    for k in range(n): g(f"v_add_f32_dpp v{base+k}, v{base+k}, v{base+k} quad_perm:[1,0,3,2] {DPP}")
    for k in range(n): g(f"v_add_f32_dpp v{base+k}, v{base+k}, v{base+k} quad_perm:[2,3,0,1] {DPP}")
def ror_sum(g, base, n):
    for sh in (4, 8):
        for k in range(n): g(f"v_add_f32_dpp v{base+k}, v{base+k}, v{base+k} row_ror:{sh} {DPP}")

class Pend:
    def __init__(self, g, cnt, cap): self.g, self.cnt, self.cap, self.q = g, cnt, cap, []
    def add(self, tag, n=1): self.q += [tag]*n
    def wait(self, tag):
        if tag in self.q:
            idx = max(i for i, t in enumerate(self.q) if t == tag)
            n = len(self.q) - 1 - idx
            self.g(f"s_waitcnt {self.cnt}({min(n, self.cap)})")
            del self.q[:len(self.q) - min(n, self.cap)]
    def clear(self): self.q = []

vAa, vQa, vTr, vMask, vFF, vE, vQo = 36, 240, 192, 16, 214, 196, 248
ZR, CL, MW = QB + 11264, QB + 12288, QB + 13312

def att_setup(g):
    g(f"""
    v_lshlrev_b32 v7, 4, v0
    v_and_b32 v220, 15, v0
    v_mov_b32 v{vFF}, 0xff
    v_mov_b32 v215, 0x10001
    v_mov_b32 v11, 0
    v_and_b32 v3, 6, v0
    v_bfe_u32 v4, v0, 3, 1
    v_or_b32 v3, v3, v4
    v_lshrrev_b32 v4, 5, v0
    v_xor_b32 v3, v3, v4
    v_lshlrev_b32 v3, 4, v3
    v_and_b32 v5, 7, v0
    v_lshl_add_u32 v3, v5, 7, v3
    v_bfe_u32 v5, v0, 3, 2
    v_lshl_add_u32 v3, v5, 13, v3
    v_add_u32 v{vAa}, s54, v3
    s_lshl_b32 s49, {sWAVE}, 13
    s_add_u32 s34, s49, {QA}
    s_add_u32 s35, s49, {QB}
    """)
    for s in range(1, 4): g(f"v_xor_b32 v{vAa+s}, {s*32}, v{vAa}")
    g(f"""
    v_xor_b32 v3, v220, v4
    v_lshlrev_b32 v3, 4, v3
    v_and_b32 v5, 31, v0
    v_lshl_add_u32 v3, v5, 10, v3
    s_mul_i32 s49, {sWAVE}, {256*g.opt['ROT']}
    s_add_u32 s49, s49, {QB}
    v_add_u32 v{vQa}, s49, v3
    s_and_b32 s49, {sWAVE}, 1
    s_lshl_b32 s49, s49, 7
    v_xor_b32 v{vQo}, s49, v7
    v_add_u32 v{vQo}, s35, v{vQo}
    """)
    for s in range(1, 8): g(f"v_xor_b32 v{vQa+s}, {s*32}, v{vQa}\nv_xor_b32 v{vQo+s}, {s*16}, v{vQo}")
    g(f"""
    v_bfe_u32 v3, v0, 2, 3
    v_and_b32 v4, 6, v3
    v_bfe_u32 v5, v0, 1, 1
    v_xor_b32 v4, v4, v5
    v_lshlrev_b32 v4, 4, v4
    v_lshl_add_u32 v4, v3, 7, v4
    v_and_b32 v5, 1, v0
    v_lshl_add_u32 v4, v5, 3, v4
    v_lshrrev_b32 v5, 5, v0
    v_lshl_add_u32 v4, v5, 14, v4
    s_lshl_b32 s49, {sWAVE}, 5
    v_xor_b32 v{vTr}, s49, v4
    v_xor_b32 v{vTr+1}, 16, v{vTr}
    v_add_u32 v{vTr+1}, 8192, v{vTr+1}
    v_add_u32 v{vTr+2}, 0x10000, v{vTr}
    v_add_u32 v{vTr+3}, 0x10000, v{vTr+1}
    v_lshlrev_b32 v4, 7, v3
    v_lshrrev_b32 v3, 1, v3
    v_lshl_add_u32 v4, v3, 5, v4
    v_and_b32 v3, 3, v0
    v_lshl_add_u32 v4, v3, 3, v4
    v_lshl_add_u32 v4, v5, 13, v4
    v_add_u32 v44, s54, v4
    v_xor_b32 v45, 32, v44
    v_xor_b32 v46, 64, v44
    v_xor_b32 v47, 96, v44
    v_bfe_u32 v3, v0, 3, 1
    v_lshlrev_b32 v3, 6, v3
    v_lshl_add_u32 v3, v5, 2, v3
    v_bfe_u32 v4, v0, 4, 1
    v_add_u32 v3, v3, v4
    v_lshlrev_b32 v10, 13, v3
    v_lshrrev_b32 v3, 4, v0
    v_bfe_u32 v4, v0, 1, 2
    v_xor_b32 v3, v3, v4
    v_lshl_add_u32 v10, v3, 5, v10
    v_and_b32 v3, 1, v0
    v_lshl_add_u32 v10, v3, 4, v10
    v_lshlrev_b32 v3, 4, v3
    v_mov_b32 v4, 0xffff
    v_lshlrev_b32 v3, v3, v4
    v_bfe_u32 v4, v0, 1, 3
    """)
    for k in range(4):
        g(f"v_cmp_eq_u32 vcc, {k}, v4\nv_mov_b32 v{204+k}, 0\ns_nop 0\nv_cndmask_b32 v{vMask+k}, 0, v3, vcc")
    g(f"""
    v_and_b32 v3, 31, v0
    v_lshlrev_b32 v223, 5, v3
    v_add_u32 v223, {QB}, v223
    v_lshrrev_b32 v4, 5, v0
    v_lshl_add_u32 v222, v4, 2, v223
    s_lshl_b32 s49, {sWAVE}, 3
    v_add_u32 v222, s49, v222
    s_add_u32 s49, s49, {MW}
    v_bfe_u32 v5, v0, 1, 2
    v_lshlrev_b32 v231, 4, v5
    v_lshlrev_b32 v5, 5, v5
    v_add_u32 v210, s49, v5
    v_lshlrev_b32 v226, 4, v220
    v_lshl_add_u32 v226, v4, 8, v226
    v_bfe_u32 v4, v0, 4, 1
    v_lshl_add_u32 v226, v4, 10, v226
    s_lshl_b32 s49, {sWAVE}, 11
    s_add_u32 s49, s49, {QB+2048}
    v_add_u32 v226, s49, v226
    v_add_u32 v227, {QB+2048}, v7
    v_lshlrev_b32 v228, 4, v3
    v_lshlrev_b32 v212, 3, v3
    v_lshrrev_b32 v4, 4, v0
    v_lshlrev_b32 v229, 4, v220
    v_lshl_add_u32 v230, v4, 15, v229
    v_lshl_add_u32 v229, v4, 12, v229
    v_lshlrev_b32 v208, 2, v220
    v_lshl_add_u32 v208, v4, 9, v208
    s_lshl_b32 s49, {sWAVE}, 6
    s_add_u32 s49, s49, {CL}
    v_add_u32 v208, s49, v208
    v_bfe_u32 v3, v0, 3, 1
    v_and_b32 v5, 1, v0
    v_lshl_add_u32 v3, v3, 1, v5
    v_lshl_add_u32 v3, v3, 2, v4
    v_lshl_add_u32 v231, v3, 9, v231
    v_and_b32 v3, 3, v0
    v_lshlrev_b32 v3, 6, v3
    v_lshl_add_u32 v3, v4, 4, v3
    s_lshl_b32 s49, {sWAVE}, 8
    s_add_u32 s49, s49, {CL}
    v_add_u32 v3, s49, v3
    v_mov_b32 v209, {ZR}
    s_lshl_b32 s49, {sWAVE}, 5
    s_add_u32 s49, s49, {MW}
    v_mov_b32 v211, s49
    v_lshrrev_b32 v6, 1, v220
    v_lshlrev_b32 v6, 8, v6
    v_lshl_add_u32 v6, v4, 11, v6
    v_lshl_add_u32 v6, v5, 3, v6
    v_bfe_u32 v4, v0, 2, 2
    """)
    for k in range(4):
        g(f"v_cmp_eq_u32 vcc, {k}, v4\ns_nop 1\nv_cndmask_b32 v{200+k}, v209, v3, vcc")
    g(f"""
    s_lshl_b32 s58, {sWAVE}, 20
    s_lshl_b32 s49, s50, 8
    s_add_u32 s58, s58, s49
    s_add_u32 s58, s58, {PART}
    s_lshl_b32 s4, s50, 15
    s_lshl_b32 s49, {sWAVE}, 10
    s_add_u32 s4, s4, s49
    s_add_u32 s4, s4, {PART}
    s_add_u32 s5, s4, 16384
    s_lshl_b32 s59, {sWAVE}, 14
    s_lshl_b32 s49, {sXg}, 6
    s_add_u32 s59, s59, s49
    s_add_u32 s59, s59, {ML}
    s_add_u32 s36, s59, 8192
    s_lshl_b32 s6, {sXg}, 2
    s_add_u32 s6, s6, {sWAVE}
    s_lshl_b32 s60, s6, 8
    s_lshl_b32 s6, s6, 13
    s_lshl_b32 s49, {sIdx}, 4
    s_add_u32 s6, s6, s49
    s_add_u32 s6, s6, {CT}
    s_lshl_b32 s49, {sQt}, 20
    s_add_u32 s60, s60, s49
    s_lshr_b32 s49, {sIdx}, 2
    s_lshl_b32 s49, s49, 17
    s_add_u32 s60, s60, s49
    s_lshl_b32 s7, {sXg}, 8
    s_add_u32 s7, s7, {XC}
    s_lshl_b32 s49, {sWAVE}, 3
    s_lshl_b32 s62, 0xff, s49
    s_mov_b32 s63, 0
    s_lshl_b32 s32, s50, 9
    s_add_u32 s32, s32, {ML}
    s_mov_b32 s37, {f2u(SCALE):#x}
    """)
    epoch_finish(g)
    g(f"""
    v_mov_b32 v234, {sT[0]}
    v_mov_b32 v235, {sT[0]}
    v_lshlrev_b32 v3, 4, v5
    v_lshrrev_b32 v12, v3, v234
    v_lshrrev_b32 v13, 8, v12
    v_and_b32 v3, 3, v0
    v_lshlrev_b32 v3, 3, v3
    v_lshrrev_b32 v3, v3, v234
    v_bfe_i32 v5, v0, 4, 1
    s_bfe_i32 s49, s50, 0x10000
    """)
    for j in range(4):
        g(f"v_bfe_u32 v4, v3, {2*j}, 2\nv_lshl_or_b32 v{vE+j}, v4, 15, v4\nv_xor_b32 v{20+j}, s49, v{vE+j}\nv_xor_b32 v{40+j}, v5, v{vE+j}")

def xc_publish(g, vz):
    sk = g.label("xc")
    g(f"""
    s_getreg_b32 s56, hwreg(HW_REG_XCC_ID, 0, 4)
    s_cmp_lg_u32 {sWAVE}, 1
    s_cbranch_scc1 {sk}
    v_mov_b32 v4, s56
    v_mov_b32 v5, {sT[0]}
    v_mov_b32 v3, 0
    s_lshl_b32 s49, {sXg}, 8
    s_and_b32 m0, s2, 0xf8
    s_add_u32 s49, s49, m0
    s_add_u32 s49, s49, {XC}
    s_mov_b64 exec, 1
    buffer_store_dwordx2 v[4:5], v3, {SWS}, s49 offen sc1
    s_mov_b64 exec, -1
    {sk}:
    """)

def attention(g):
    o = g.opt
    NT = o['NT']
    g("L_att:")
    g("""
    s_load_dwordx2 s[12:13], s[0:1], 16
    s_load_dwordx2 s[24:25], s[0:1], 24
    s_load_dwordx2 s[8:9], s[0:1], 8
    s_load_dwordx2 s[16:17], s[0:1], 88
    s_load_dwordx2 s[28:29], s[0:1], 32
    """)
    srd_tail(g, 12, 640*8192); srd_tail(g, 24, 512*8192); srd_tail(g, 8, 16384*1024); srd_tail(g, 20, WSSZ); srd_tail(g, 16, 1280); srd_tail(g, 28, 512*8192)
    vDma = 14
    g(f"s_and_b32 {sXg}, s2, 7\ns_lshr_b32 {sIdx}, s2, 3")
    head_id(g)
    g(f"""
    v_lshrrev_b32 v3, 3, v0
    v_lshlrev_b32 v2, 13, v3
    v_and_b32 v3, 7, v0
    v_lshl_add_u32 v2, v3, 7, v2
    v_bfe_u32 v3, v0, 2, 2
    v_mul_u32_u24 v1, 40, v3
    v_bfe_u32 v3, v0, 1, 1
    v_add_u32 v1, v1, v3
    v_lshrrev_b32 v3, 4, v0
    v_lshl_add_u32 v1, v3, 1, v1
    v_lshlrev_b32 v1, 13, v1
    v_and_b32 v3, 1, v0
    v_lshl_add_u32 v1, v3, 7, v1
    s_mul_i32 s51, {sQt}, 160
    s_mul_i32 s49, {sWAVE}, 10
    s_add_u32 s51, s51, s49
    s_add_u32 s51, s51, {10-2*o['PF1']}
    s_lshl_b32 s51, s51, 13
    s_lshl_b32 s49, {sH}, 8
    s_add_u32 s51, s51, s49
    s_lshl_b32 s49, {sXg}, 10
    s_lshl_b32 s50, {sXg}, 4
    s_add_u32 s50, s50, {sIdx}
    s_lshl_b32 s52, {sIdx}, 2
    s_add_u32 s52, s52, {sWAVE}
    s_lshl_b32 s52, s52, 16
    s_add_u32 s52, s52, s49
    v_lshrrev_b32 v3, 3, v0
    v_and_b32 v4, 6, v3
    v_and_b32 v5, 7, v0
    v_xor_b32 v4, v4, v5
    v_lshlrev_b32 v4, 4, v4
    v_lshl_add_u32 v{vDma}, v3, 10, v4
    v_xor_b32 v{vDma+1}, 16, v{vDma}
    s_lshl_b32 s53, s50, 17
    s_lshl_b32 s54, {sWAVE}, 15
    s_add_u32 s53, s53, s54
    s_mul_i32 s49, {sWAVE}, {256*o['ROT']}
    s_add_u32 s53, s53, s49
    s_waitcnt lgkmcnt(0)
    """)
    g.stamp('karg')
    if o['PF1']: g(f"s_mov_b32 exec_hi, {[0,0,0,0xffff,-1][o['PF1']]}\ns_mov_b32 exec_lo, {'0xffff' if o['PF1'] == 1 else '-1'}\nbuffer_load_dword v8, v1, {SB}, s51 offen\ns_mov_b64 exec, -1")
    pfuk = f"buffer_load_dword v9, v2, {SD}, s52 offen"
    if not o['PF1W']: g(pfuk)
    common_epoch(g)
    att_setup(g)
    if o['PF1W']: g("s_waitcnt vmcnt(0)\n" + pfuk)
    if o['PF2W']: g("s_waitcnt vmcnt(0)")
    xc_publish(g, 11)
    g.stamp('go')
    vS, vQr, vOw = 48, 128, 64
    def qld():
        for i in range(8):
            if i == 4: g("s_add_u32 s49, s34, 4096")
            g(f"buffer_load_dwordx4 {vr(vOw+4*i,4)}, v7, {SWS}, {'s34' if i < 4 else 's49'} offen offset:{(i&3)*1024} sc1")
    lg = Pend(g, 'lgkmcnt', 15)
    def rdA(cb):
        for s in range(4*cb, 4*cb+4): g(f"ds_read_b128 {ar(4*s,4)}, v{vAa+(s&3)} offset:{cb*1024}"); lg.add(('A', s))
    def rdT1(sl, t, rho):
        ct = sl ^ (2*t*o['ROT'])
        g(f"ds_read_b64_tr_b16 {ar(128+(ct*4+t)*4+2*rho,2)}, v{vTr+(t>>1)*2+rho} offset:{(t&1)*32768+sl*1024}"); lg.add(('T', ct, t, rho))
    NS, LA, LQ, NX = o['NS'], o['LA'], o['LQ'], o['NX']
    ORD = [int(c) for c in str(o['ORD'])[1:]]
    assert sorted(ORD) == list(range(8)) and set(ORD[:2]) == {0, 1}
    vm = Pend(g, 'vmcnt', 63)
    def cdma1(cb, ro):
        g(f"s_add_u32 m0, s54, {ro*8192+cb*1024}\ns_xor_b32 s49, s53, {ro*8192+cb*128}")
        g(f"buffer_load_dwordx4 v{vDma+(ro&1)}, {SA}, s49 offen {NT} lds")
        vm.add(('C', cb))
    done = 0
    def consume(cb):
        vm.wait(('C', cb))
        if o.get('DIAGA'): g.stamp(f'b{cb}')
        rdA(cb); g("s_barrier")
        for t in range(4):
            for rho in range(2): rdT1(cb, t, rho)
    for i in range(NS):
        for ro in range(4): cdma1(ORD[i], ro)
        if i >= LA: consume(ORD[done]); done += 1
    while done < NS - LQ: consume(ORD[done]); done += 1
    g.stamp('pre')
    qld()
    for i in range(8): vm.add(('Q', i))
    dq = [(i, ro) for i in range(NS, 8) for ro in range(4)]
    if o['NXE']:
        for _ in range(4*o['NXE']): x = dq.pop(0); cdma1(ORD[x[0]], x[1])
    late = ORD[done:NS]
    assert done >= 2
    for cb in late:
        vm.wait(('C', cb)); rdA(cb)
    g(f"s_mov_b32 {sSpin}, 0")
    Lq, Lqr = g.label("q"), g.label("qr")
    def qstage(first):
        nx = 4*NX
        for i in range(8):
            if first: vm.wait(('Q', i))
            else: g(f"s_waitcnt vmcnt({7-i})")
            if first and i == 0: g.stamp('q0')
            g(f"ds_write_b128 v{vQo+i}, {vr(vOw+4*i,4)} offset:{i*1024}")
            for j in range(4):
                if i == 0 and j == 0: g(f"v_xor_b32 v2, v{vOw}, v{vE}")
                else: g(f"v_bitop3_b32 v2, v2, v{vOw+4*i+j}, v{vE+j} bitop3:0xf6")
            if first:
                for _ in range((4*NX+7)//8):
                    if dq and nx: x = dq.pop(0); cdma1(ORD[x[0]], x[1]); nx -= 1
        g(f"v_and_b32 v2, 0x10001, v2\nv_cmp_ne_u32 vcc, 0, v2\ns_waitcnt lgkmcnt(0)\ns_cbranch_vccnz {Lqr}")
    qstage(True)
    g(f"{Lq}:\ns_barrier")
    lg.clear()
    def qretry():
        g(f"{Lqr}:")
        qld()
        spin_check(g)
        qstage(False)
        g(f"s_branch {Lq}")
    g.tailcode.append(qretry)
    g.stamp('qok')
    def ks(i): return 4*ORD[i >> 2] + (i & 3)
    def rdQ(i):
        s = ks(i)
        if o['ROT']:
            assert s == i
            g(f"ds_read_b128 {vr(vQr+4*(i%16),4)}, v{vQa+(s&7)}")
            if s < 24: g(f"v_xor_b32 v{vQa+(s&7)}, {((s>>3) ^ ((s>>3)+1))*256}, v{vQa+(s&7)}")
        else: g(f"ds_read_b128 {vr(vQr+4*(i%16),4)}, v{vQa+(s&7)} offset:{(s>>3)*256}")
        lg.add(('Q', i))
    def mm(i): g(f"v_mfma_f32_32x32x16_bf16 {vr(vS,16)}, {ar(4*ks(i),4)}, {vr(vQr+4*(i%16),4)}, {'0' if i == 0 else vr(vS,16)}")
    def uvdma(k):
        rg, dh = k >> 1, k & 1
        g(f"s_add_u32 m0, s54, {rg*8192+dh*1024}\ns_add_u32 s49, s60, {(2*(rg>>1)+8*(rg&1))*8192+dh*128}")
        g(f"buffer_load_dwordx4 v10, {SE}, s49 offen {NT} lds")
    D = 4
    tl = [(ct, t, rho) for ct in late for t in range(4) for rho in range(2)]
    qn = 0
    while qn < D: rdQ(qn); qn += 1
    nuv = 0
    SB_ = 27
    for s in range(32):
        nb = (s >> 2) + 1
        if s & 3 == 0 and NS <= nb < 8:
            while any(x[0] <= nb for x in dq): x = dq.pop(0); cdma1(ORD[x[0]], x[1])
            vm.wait(('C', ORD[nb])); rdA(ORD[nb])
        lg.wait(('Q', s)); lg.wait(('A', ks(s))); mm(s)
        while qn < min(32, s + 1 + D + max(0, s - 18)): rdQ(qn); qn += 1
        for _ in range(2):
            if tl: rdT1(*tl.pop(0))
        if dq: x = dq.pop(0); cdma1(ORD[x[0]], x[1])
        elif o['UVA'] and s >= o['UV0'] and nuv < 8: uvdma(nuv); vm.add('U'); nuv += 1
        if s == SB_:
            lg.wait(('Q', 31)); g("s_barrier")
            g.stamp('qk0')
            tl = sorted([(sl, t, rho) for sl in ORD[NS:] for t in range(4) for rho in range(2)], key=lambda x: (x[0] ^ (2*x[1]*o['ROT']), x[1], x[2]))
    while o['UVA'] and nuv < 8: uvdma(nuv); nuv += 1
    g.stamp('qk')
    for _ in range(12):
        if tl: rdT1(*tl.pop(0))
        else: g("s_nop 0")
    tailT = tl
    if o.get('DIAGA'): g('s_waitcnt vmcnt(0)'); g.stamp('pv'); g('s_branch L_fin')
    g(f"v_max3_f32 v3, v{vS}, v{vS+1}, v{vS+2}\nv_max3_f32 v4, v{vS+3}, v{vS+4}, v{vS+5}")
    for k in range(6, 14, 4): g(f"v_max3_f32 v3, v3, v{vS+k}, v{vS+k+1}\nv_max3_f32 v4, v4, v{vS+k+2}, v{vS+k+3}")
    g(f"v_max3_f32 v3, v3, v{vS+14}, v{vS+15}\nv_max_f32 v3, v3, v4")
    g(f"ds_write_b32 v222, v3\nds_write_b128 v209, v[204:207]\nbuffer_load_dwordx2 v[8:9], v212, {SWS}, s7 offen sc1")
    for k in range(8): g(f"v_mul_f32 v{vS+k}, s37, v{vS+k}")
    g("s_waitcnt lgkmcnt(0)\ns_barrier")
    g.stamp('mx')
    g("ds_read_b128 v[24:27], v223\nds_read_b128 v[28:31], v223 offset:16")
    vM = 232
    for k in range(8, 16): g(f"v_mul_f32 v{vS+k}, s37, v{vS+k}")
    g(f"s_waitcnt lgkmcnt(1)\nv_max3_f32 v{vM}, v24, v25, v26\ns_waitcnt lgkmcnt(0)\nv_max3_f32 v3, v27, v28, v29\nv_max3_f32 v{vM}, v{vM}, v30, v31\nv_max_f32 v{vM}, v{vM}, v3\nv_mul_f32 v{vM}, s37, v{vM}")
    for hb in range(2):
        for k in range(8*hb, 8*hb+8): g(f"v_sub_f32 v{vS+k}, v{vS+k}, v{vM}")
        for k in range(8*hb, 8*hb+8): g(f"v_exp_f32 v{vS+k}, v{vS+k}")
        for k in range(4*hb, 4*hb+4): g(f"v_cvt_pk_bf16_f32 v{24+k}, v{vS+2*k}, v{vS+2*k+1}")
        g(f"ds_write_b128 v226, {vr(24+4*hb,4)} offset:{512*hb}")
    for k in range(4): g(f"v_pk_add_f32 {vr(vS+2*k,2)}, {vr(vS+2*k,2)}, {vr(vS+8+2*k,2)}")
    for k in range(2): g(f"v_pk_add_f32 {vr(vS+2*k,2)}, {vr(vS+2*k,2)}, {vr(vS+4+2*k,2)}")
    g(f"v_pk_add_f32 {vr(vS,2)}, {vr(vS,2)}, {vr(vS+2,2)}\nv_add_f32 v{vS}, v{vS}, v{vS+1}")
    g(f"ds_write_b32 v222, v{vS} offset:1024\ns_waitcnt lgkmcnt(0)\ns_barrier")
    g.stamp('P')
    vP, vAcc, vO = 128, 64, 160
    lg.clear()
    for ht in range(2):
        for t in range(4):
            g(f"ds_read_b128 {vr(vP+(t*2+ht)*4,4)}, v227 offset:{(t*2+ht)*1024}"); lg.add(('P', t, ht))
        if ht == 0: g("ds_read_b128 v[48:51], v223 offset:1024\nds_read_b128 v[52:55], v223 offset:1040"); lg.add('L', 2)
    fill = {}
    def add(n, txt): fill.setdefault(n, []).append(txt)
    b = 3
    add(b, ('W', 'L')); add(b, "v_add_f32 v48, v48, v52\nv_add_f32 v49, v49, v53")
    add(b+1, "v_add_f32 v50, v50, v54\nv_add_f32 v51, v51, v55")
    add(b+2, "v_add_f32 v48, v48, v50\nv_add_f32 v49, v49, v51")
    add(b+3, f"v_add_f32 v{vM+1}, v48, v49")
    add(b+4, f"s_mov_b64 exec, s[62:63]\nbuffer_store_dwordx4 {vr(vM,4)}, v228, {SWS}, s32 offen sc1\ns_mov_b64 exec, -1")
    slots = [0, 1, 2, 8, 9, 10, 11, 12]
    for k, x in enumerate(tailT): add(slots[k//2], ('T',) + x)
    def cvt(ht, k, r): return f"v_cvt_pk_bf16_f32 v{vO+(k*2+ht)*4+r}, v{vAcc+(ht*8+2*k)*4+r}, v{vAcc+(ht*8+2*k+1)*4+r}"
    def tag(ht, k, r): return f"v_bfi_b32 v{vO+(k*2+ht)*4+r}, v215, v{20+r}, v{vO+(k*2+ht)*4+r}"
    def pst(ht, k): return f"buffer_store_dwordx4 {vr(vO+(k*2+ht)*4,4)}, v229, {SWS}, s{4+ht} offen offset:{k*256} sc1"
    groups = [(k, ht) for k in range(4) for ht in range(2)]
    for G_, (k, ht) in enumerate(groups[:-1]):
        b = 8*(G_+1)
        add(b+5, cvt(ht, k, 0) + "\n" + cvt(ht, k, 1)); add(b+6, cvt(ht, k, 2) + "\n" + cvt(ht, k, 3))
        add(b+7, tag(ht, k, 0) + "\n" + tag(ht, k, 1))
        if G_ < 6: add(b+8, tag(ht, k, 2) + "\n" + tag(ht, k, 3)); add(b+9, pst(ht, k))
    if not tailT: add(8, "s_nop 1")
    nm = 0
    for (k, ht) in groups:
        for ct in (2*k, 2*k+1):
            for t in range(4):
                assert not any(isinstance(f, tuple) and f[0] == 'T' and (f[1] ^ (2*f[2]*o['ROT']), f[2]) == (ct, t) for n, L in fill.items() if n >= nm for f in L)
                lg.wait(('P', t, ht)); lg.wait(('T', ct, t, 1))
                acc = vAcc + (ht*8+ct)*4
                g(f"v_mfma_f32_16x16x32_bf16 {vr(acc,4)}, {vr(vP+(t*2+ht)*4,4)}, {ar(128+(ct*4+t)*4,4)}, {'0' if t == 0 else vr(acc,4)}")
                for f in fill.get(nm, []):
                    if isinstance(f, tuple) and f[0] == 'T': rdT1(*f[1:])
                    elif isinstance(f, tuple) and f[0] == 'W': lg.wait(f[1])
                    else: g(f)
                nm += 1
    g.stamp('pv')
    g(tag(0, 3, 2) + "\n" + tag(0, 3, 3) + "\n" + pst(0, 3) + f"\ns_mov_b32 {sSpin}, 0\ns_nop 1")
    for r in range(4): g(cvt(1, 3, r))
    for r in range(4): g(tag(1, 3, r))
    g(pst(1, 3))
    if not o['UVA']:
        for k in range(8): uvdma(k)
    vML = 24
    mll = f"buffer_load_dwordx3 v[24:26], v231, {SWS}, s59 offen sc1\nbuffer_load_dwordx3 v[28:30], v231, {SWS}, s36 offen sc1"
    g(mll)
    Lm, Lmok = g.label("ml"), g.label("mlok")
    g(f"s_waitcnt vmcnt(0)")
    g.stamp('ack')
    g(f"{Lm}:\nv_xor_b32 v3, {sT[0]}, v26\nv_bitop3_b32 v3, v3, v30, {sT[0]} bitop3:0xf6\nv_cmp_ne_u32 vcc, 0, v3\ns_cbranch_vccz {Lmok}\n{mll}")
    spin_check(g)
    g(f"s_waitcnt vmcnt(0)\ns_branch {Lm}\n{Lmok}:")
    g.stamp('ml')
    def red16(reg, tmp, op):
        for m in ("quad_perm:[1,0,3,2]", "row_ror:8"): g(f"s_nop 1\n{op}_dpp v{reg}, v{reg}, v{reg} {m} {DPP}")
        g(f"v_mov_b32 v{tmp}, v{reg}\ns_nop 1\nv_permlane16_swap_b32 v{reg}, v{tmp}\n{op} v{reg}, v{reg}, v{tmp}")
        g(f"v_mov_b32 v{tmp}, v{reg}\ns_nop 1\nv_permlane32_swap_b32 v{reg}, v{tmp}\n{op} v{reg}, v{reg}, v{tmp}")
    vRB, vRA = 128, 64
    def pld(u): g(f"s_add_u32 s49, s58, {u*0x20000}\nbuffer_load_dwordx4 {vr(vRB+4*u,4)}, v230, {SWS}, s49 offen sc1")
    for u in range(8): pld(u)
    for dh in range(2):
        for rho in range(2):
            for q in range(4): g(f"ds_read_b64_tr_b16 {ar((dh*4+q)*4+2*rho,2)}, v{44+q} offset:{rho*16384+dh*1024}")
    g(f"v_xor_b32 v3, {sT[0]}, v9\nv_bitop3_b32 v3, v3, v8, s56 bitop3:0xf6\nv_cmp_ne_u32 s[38:39], 0, v3")
    g("v_max_f32 v48, v24, v28")
    red16(48, 3, "v_max_f32")
    g(f"""
    v_sub_f32 v24, v24, v48
    v_sub_f32 v28, v28, v48
    v_exp_f32 v24, v24
    v_exp_f32 v28, v28
    s_nop 0
    v_cvt_pk_bf16_f32 v24, v24, v24
    v_cvt_pk_bf16_f32 v28, v28, v28
    v_and_b32 v26, 0xffff0000, v24
    v_and_b32 v30, 0xffff0000, v28
    v_mov_b32_dpp v27, v24 row_ror:8 {DPP}
    v_mov_b32_dpp v31, v28 row_ror:8 {DPP}
    v_mul_f32 v49, v26, v25
    v_fmac_f32 v49, v30, v29
    """)
    for u in range(8):
        src = [24, 27, 28, 31][u >> 1]; b = u & 1
        for r in range(4): g(f"v_and_b32_dpp v{vRA+4*u+r}, v{src}, v{vMask+r} quad_perm:[{b},{b},{2+b},{2+b}] {DPP}")
    red16(49, 3, "v_add_f32")
    g(f"ds_write_b64 v210, v[48:49]\ns_mov_b32 {sSpin}, 0")
    rl = [(g.label("pr"), g.label("pc")) for _ in range(8)]
    def pchk(u):
        g(f"v_xor_b32 v3, v{vRB+4*u}, v40")
        for j in range(1, 4): g(f"v_bitop3_b32 v3, v3, v{vRB+4*u+j}, v{40+j} bitop3:0xf6")
        g("v_and_b32 v3, 0x10001, v3\nv_cmp_ne_u32 vcc, 0, v3")
    for u in range(8):
        g(f"{rl[u][1]}:\ns_waitcnt vmcnt({7-u})")
        pchk(u)
        g(f"s_cbranch_vccnz {rl[u][0]}")
        g(f"v_mfma_f32_16x16x32_bf16 v[32:35], {vr(vRA+4*u,4)}, {vr(vRB+4*u,4)}, {'0' if u == 0 else 'v[32:35]'}")
    def pretry():
        for u in range(8):
            g(f"{rl[u][0]}:")
            for k in range(u, 8): pld(k)
            spin_check(g)
            g(f"s_branch {rl[u][1]}")
    g.tailcode.append(pretry)
    g.stamp('red')
    g("s_mov_b32 exec_hi, 0\ns_nop 6\nv_cvt_pk_bf16_f32 v32, v32, v33\nv_cvt_pk_bf16_f32 v33, v34, v35\nds_write2st64_b32 v208, v32, v33 offset1:1\ns_mov_b32 exec_hi, -1\ns_waitcnt lgkmcnt(0)\ns_barrier")
    g(f"ds_read_b128 v[64:67], v200\nds_read_b128 v[24:27], v211\nds_read_b128 v[28:31], v211 offset:16")
    for sx in range(1, 4): g(f"ds_read_b128 {vr(64+4*sx,4)}, v{200+sx}")
    fl = ["s_waitcnt lgkmcnt(3)\nv_max3_f32 v3, v24, v26, v28\nv_max_f32 v3, v3, v30",
          "v_sub_f32 v24, v24, v3\nv_sub_f32 v26, v26, v3", "v_sub_f32 v28, v28, v3\nv_sub_f32 v30, v30, v3",
          "v_exp_f32 v24, v24\nv_exp_f32 v26, v26", "v_exp_f32 v28, v28\nv_exp_f32 v30, v30",
          "v_mul_f32 v3, v24, v25\nv_fmac_f32 v3, v26, v27", "v_fmac_f32 v3, v28, v29\nv_fmac_f32 v3, v30, v31", "v_rcp_f32 v3, v3"]
    i = 0
    for sx in range(4):
        g(f"s_waitcnt lgkmcnt({5 if sx == 0 else 3-sx})")
        for dt in range(2):
            g(f"v_mfma_f32_16x16x32_bf16 {vr(96+4*dt,4)}, {vr(64+4*sx,4)}, {ar((2*sx+dt)*4,4)}, {'0' if sx == 0 else vr(96+4*dt,4)}")
            g(fl[i]); i += 1
    g("s_cmp_eq_u64 s[38:39], 0\ns_nop 2")
    g("v_mul_f32 v32, v24, v96\nv_fmac_f32 v32, v26, v97\nv_fmac_f32 v32, v28, v98\nv_fmac_f32 v32, v30, v99")
    g("v_mul_f32 v33, v24, v100\nv_fmac_f32 v33, v26, v101\nv_fmac_f32 v33, v28, v102\nv_fmac_f32 v33, v30, v103")
    g(f"v_mul_f32 v32, v3, v32\nv_mul_f32 v33, v3, v33\nv_bfi_b32 v32, v{vFF}, v12, v32\nv_bfi_b32 v33, v{vFF}, v13, v33")
    a, b = g.label("cs"), g.label("ce")
    g(f"s_cbranch_scc0 {a}\nbuffer_store_dwordx2 v[32:33], v6, {SWS}, s6 offen\n{b}:")
    g.tailcode.append(lambda: g(f"{a}:\nbuffer_store_dwordx2 v[32:33], v6, {SWS}, s6 offen sc1\ns_branch {b}"))
    g.stamp('ct')
    g("s_barrier")
    g(f"""
    s_lshl_b32 s49, {sWAVE}, 4
    s_add_u32 s49, s49, {sIdx}
    s_and_b32 s50, s49, 0xf8
    s_add_u32 s50, s50, {sXg}
    s_cmp_ge_u32 s50, 20
    s_cbranch_scc1 L_fin
    s_and_b32 s49, s49, 7
    s_lshl_b32 s51, s50, 3
    s_add_u32 s51, s51, s49
    s_lshl_b32 s52, s51, 4
    s_add_u32 s52, s52, {OP}
    s_add_u32 s53, s52, {64*2560}
    v_mul_u32_u24 v3, 2560, v0
    s_lshr_b32 s54, s51, 4
    s_lshl_b32 s54, s54, 7
    s_and_b32 s51, s51, 15
    s_lshl_b32 s51, s51, 1
    s_add_u32 s54, s54, s51
    v_bfe_u32 v4, v0, 4, 1
    v_lshlrev_b32 v4, 6, v4
    v_lshrrev_b32 v5, 5, v0
    v_lshl_add_u32 v4, v5, 5, v4
    s_mov_b32 {sSpin}, 0
    """)
    Lo = g.label("o")
    g(f"{Lo}:")
    g(f"buffer_load_dwordx4 v[24:27], v3, {SWS}, s52 offen sc1\nbuffer_load_dwordx4 v[28:31], v3, {SWS}, s53 offen sc1")
    spin_check(g)
    g(f"s_waitcnt vmcnt(1)\nv_xor_b32 v5, {sT[0]}, v24")
    for r in range(1, 4): g(f"v_bitop3_b32 v5, v5, v{24+r}, {sT[r]} bitop3:0xf6")
    g("s_waitcnt vmcnt(0)")
    for r in range(4): g(f"v_bitop3_b32 v5, v5, v{28+r}, {sT[r]} bitop3:0xf6")
    g(f"v_and_b32 v5, 0xff, v5\nv_cmp_ne_u32 vcc, 0, v5\ns_cbranch_vccnz {Lo}")
    g.stamp('op')
    g(f"""
    v_pk_add_f32 v[24:25], v[24:25], v[28:29]
    v_pk_add_f32 v[26:27], v[26:27], v[30:31]
    s_nop 0
    v_permlane32_swap_b32 v24, v25
    v_permlane32_swap_b32 v26, v27
    v_add_f32 v24, v24, v25
    v_add_f32 v26, v26, v27
    s_nop 1
    v_permlane16_swap_b32 v24, v26
    v_add_f32 v24, v24, v26
    s_nop 1
    v_add_f32_dpp v24, v24, v24 row_ror:8 {DPP}
    s_nop 1
    v_add_f32_dpp v24, v24, v24 row_ror:4 {DPP}
    s_nop 1
    v_add_f32_dpp v24, v24, v24 row_ror:2 {DPP}
    s_nop 1
    v_add_f32_dpp v24, v24, v24 row_ror:1 {DPP}
    v_cvt_pk_bf16_f32 v24, v24, v24
    s_mov_b32 exec_lo, 0x00010001
    s_mov_b32 exec_hi, 0x00010001
    buffer_store_short v24, v4, {SC}, s54 offen
    s_or_b32 s49, s2, {sWAVE}
    s_cmp_lg_u32 s49, 0
    s_cbranch_scc1 L_fin
    s_mov_b64 exec, 1
    buffer_store_dword v234, v11, {SWS}, 0 offen sc1
    s_branch L_fin
    """)
    for f in g.tailcode: f()
    g.tailcode = []

def sel_setup(g, vSel, vt):
    t0, t1, t2 = vt, vt+1, vt+2
    g(f"""
    v_bfe_u32 v{t0}, v0, 3, 1
    v_mul_u32_u24 v{t0}, 0x0202, v{t0}
    v_add_u32 v{t0}, 0x0100, v{t0}
    v_or_b32 v{t1}, 0x0c0c0000, v{t0}
    v_lshlrev_b32 v{t0}, 16, v{t0}
    v_or_b32 v{t0}, 0x0c0c, v{t0}
    v_and_b32 v{t2}, 1, v0
    v_cmp_eq_u32 vcc, 1, v{t2}
    v_bfe_u32 v{t2}, v0, 1, 2
    v_mov_b32 v{vSel+3}, 0x0c0c0c0c
    v_cndmask_b32 v{t0}, v{t1}, v{t0}, vcc
    """)
    for r in range(4):
        g(f"v_cmp_eq_u32 vcc, {r}, v{t2}\ns_nop 1\nv_cndmask_b32 v{vSel+r}, v{vSel+3}, v{t0}, vcc")

def weight(g):
    o = g.opt
    NT = o['NT']
    g.role = "wgt"; g.names["wgt"].append("st")
    g("L_wgt:")
    srd_tail(g, 4, 1280); srd_tail(g, 32, 640*8192); srd_tail(g, 20, WSSZ)
    LWO, LWD, LSCR, LUK = 0, 49152, 106496, 115712
    ORD = [int(c) for c in str(o['ORD'])[1:]]
    HB = ORD[8-o['XH']:]
    XD = 128*(HB[1]-HB[0]) if HB else 0
    assert all(128*(HB[k+1]-HB[k]) == XD for k in range(0, len(HB), 2)) and XD >= 0
    g(f"s_and_b32 {sXg}, s2, 7\ns_lshr_b32 {sIdx}, s2, 3\ns_sub_u32 {sIdx}, {sIdx}, 16")
    head_id(g)
    g(f"""
    v_and_b32 v1, 15, v0
    v_lshrrev_b32 v2, 4, v0
    v_mul_u32_u24 v4, 80, v2
    s_mul_i32 s50, {sQt}, 160
    s_mul_i32 s49, {sWAVE}, 10
    s_add_u32 s50, s50, s49
    s_lshl_b32 s52, s50, 13
    s_lshl_b32 s50, s50, 1
    s_lshl_b32 s49, {sH}, 8
    s_add_u32 s52, s52, s49
    v_mul_u32_u24 v6, 40, v2
    v_bfe_u32 v3, v0, 3, 1
    v_add_u32 v6, v6, v3
    v_lshlrev_b32 v5, 13, v6
    v_and_b32 v3, 7, v0
    v_lshl_add_u32 v5, v3, 4, v5
    v_lshrrev_b32 v210, 2, v1
    v_lshlrev_b32 v14, 9, v210
    v_lshl_add_u32 v14, v2, 7, v14
    v_and_b32 v3, 3, v0
    v_lshl_add_u32 v14, v3, 4, v14
    s_lshl_b32 s54, {sH}, 11
    s_add_u32 s54, s54, {QP}
    """)
    g("s_waitcnt lgkmcnt(0)")
    g.stamp('karg')
    common_epoch(g)
    vXq = 224
    vXg, vGw, vXw = 144, 152, 160
    WIN = o['WIN']
    def ldq(k):
        g(f"buffer_load_dwordx4 {ar(4*k,4)}, v5, {SF}, s52 offen offset:{128*(k&1)} {o['WQNT']}")
        if k & 1: g("s_add_u32 s52, s52, 16384")
    g(f"buffer_load_dwordx4 {vr(vXq,4)}, v4, {SX}, s50 offen\nbuffer_load_dword v{vXq+4}, v4, {SX}, s50 offen offset:16")
    g(f"buffer_load_dword v48, v14, {SWS}, s54 offen sc1")
    for k in range(WIN): ldq(k)
    g(f"""
    s_load_dwordx2 s[8:9], s[0:1], 24
    s_load_dwordx2 s[28:29], s[0:1], 80
    s_load_dwordx2 s[12:13], s[0:1], 32
    s_load_dwordx2 s[16:17], s[0:1], 40
    s_load_dwordx2 s[24:25], s[0:1], 72
    s_load_dwordx2 s[36:37], s[0:1], 64
    """)
    NXL = 1
    srd_tail(g, 8, 512*8192); srd_tail(g, 28, 1280); srd_tail(g, 12, 512*8192); srd_tail(g, 16, 4096*1280); srd_tail(g, 24, 1728*1280); srd_tail(g, 36, 640*3456)
    g(f"""
    v_lshlrev_b32 v7, 4, v0
    s_and_b32 s51, s2, 3
    s_mul_i32 s53, s51, 160
    s_mul_i32 s49, {sWAVE}, 10
    s_add_u32 s53, s53, s49
    s_lshl_b32 s49, s53, 1
    v_add_u32 v11, s49, v4
    """)
    vSel = 16
    sel_setup(g, vSel, 8)
    vUd = 176
    vG, vTa, vTb, vFF, vTo, vGate = 44, 216, 217, 218, 244, 220
    g(f"""
    s_lshl_b32 s63, {sQt}, 2
    s_add_u32 s63, s63, {sWAVE}
    s_lshl_b32 s55, s63, 6
    s_lshl_b32 s63, s63, 18
    s_lshl_b32 s49, {sH}, 8
    s_add_u32 s63, s63, s49
    s_lshl_b32 s49, {sH}, 10
    s_add_u32 s55, s55, s49
    s_add_u32 s55, s55, {QA}
    s_lshl_b32 s62, {sWAVE}, 13
    s_add_u32 s62, s62, {LUK}
    v_lshrrev_b32 v3, 5, v0
    v_xor_b32 v3, v1, v3
    v_lshlrev_b32 v3, 4, v3
    v_lshl_add_u32 v{vUd}, v2, 13, v3
    v_xor_b32 v3, v1, v2
    v_lshlrev_b32 v3, 4, v3
    v_lshl_add_u32 v3, v1, 9, v3
    v_add_u32 v20, s62, v3
    v_xor_b32 v21, 64, v20
    v_xor_b32 v22, 128, v20
    v_xor_b32 v23, 192, v20
    v_lshlrev_b32 v15, 2, v1
    v_and_b32 v3, 3, v1
    v_lshlrev_b32 v3, 1, v3
    v_bfe_u32 v9, v0, 4, 1
    v_add_u32 v3, v3, v9
    v_lshlrev_b32 v3, 2, v3
    v_bfe_u32 v9, v0, 2, 1
    v_add_u32 v3, v3, v9
    v_lshrrev_b32 v9, 5, v0
    v_lshl_add_u32 v3, v9, 1, v3
    v_lshlrev_b32 v12, 4, v3
    s_lshl_b32 s49, {sQt}, 9
    s_add_u32 s56, s54, s49
    v_mov_b32 v24, 0x07060302
    v_mov_b32 v25, 0x00010001
    """)
    for b in range(1, 8): g(f"v_xor_b32 v{vUd+b}, {32*b}, v{vUd}")
    g(f"""
    v_lshrrev_b32 v3, 1, v0
    v_lshlrev_b32 v56, 10, v3
    v_and_b32 v9, 1, v0
    v_mul_u32_u24 v3, {XD}, v9
    v_add_u32 v56, v56, v3
    v_lshrrev_b32 v3, 3, v0
    v_lshlrev_b32 v165, 13, v3
    v_and_b32 v3, 7, v0
    v_lshl_add_u32 v165, v3, 7, v165
    v_lshrrev_b32 v8, 5, v0
    v_mul_u32_u24 v57, 3456, v6
    v_and_b32 v3, 7, v0
    v_lshl_add_u32 v57, v3, 4, v57
    s_sub_u32 s50, s2, 128
    s_lshr_b32 s50, s50, 2
    s_mul_i32 s53, s53, 3456
    s_lshl_b32 s49, s50, 7
    s_add_u32 s53, s53, s49
    s_cmp_ge_u32 s50, {0 if o.get('DIAGW') else 27}
    s_cselect_b32 s57, 0x10000000, 0
    s_add_u32 s53, s53, s57
    v_mul_u32_u24 v{vG}, 640, v8
    v_lshl_add_u32 v{vG}, v9, 8, v{vG}
    v_bfe_u32 v3, v0, 1, 3
    v_lshl_add_u32 v{vG}, v3, 4, v{vG}
    v_bfe_u32 v3, v0, 4, 1
    v_lshl_add_u32 v{vG}, v3, 10, v{vG}
    v_add_u32 v{vG}, {LSCR}, v{vG}
    v_and_b32 v10, 31, v0
    v_lshlrev_b32 v10, 4, v10
    v_lshl_add_u32 v{vG+1}, v8, 3, v10
    v_mov_b32 v{vFF}, 0xff
    s_lshl_b32 s49, {sWAVE}, 11
    s_add_u32 s49, s49, {LSCR}
    v_add_u32 v13, s49, v7
    v_bfe_u32 v10, v0, 1, 2
    v_xor_b32 v10, v2, v10
    v_lshlrev_b32 v10, 5, v10
    v_lshl_add_u32 v10, v9, 4, v10
    v_lshrrev_b32 v9, 3, v0
    v_mul_u32_u24 v30, 1280, v9
    v_add_u32 v30, v30, v10
    v_bfe_u32 v9, v0, 3, 1
    v_lshl_add_u32 v3, v9, 4, v3
    v_lshl_add_u32 v3, v8, 2, v3
    v_mul_u32_u24 v29, 1280, v3
    v_add_u32 v29, v29, v10
    s_lshl_b32 s58, s50, 2
    s_add_u32 s58, s58, s51
    s_mul_i32 s58, s58, {16*1280}
    s_lshl_b32 s49, {sWAVE}, 7
    s_add_u32 s58, s58, s49
    s_add_u32 s58, s58, s57
    s_lshl_b32 s59, {sH}, 2
    s_add_u32 s59, s59, {sQt}
    s_mul_i32 s59, s59, {32*1280}
    s_add_u32 s59, s59, s49
    s_add_u32 s59, s59, {0x10000000 if o.get('DIAGW') else 0}
    s_cmp_ge_u32 {sWAVE}, 2
    s_cselect_b32 s60, 0x10000000, 0
    s_mul_i32 s61, {sWAVE}, 6144
    s_add_u32 s61, s61, {LWD}
    s_mul_i32 s57, {sWAVE}, 12288
    v_lshlrev_b32 v8, 4, v8
    v_lshlrev_b32 v3, 1, v1
    """)
    epoch_finish(g)
    g(f"""
    v_mov_b32 v42, {sT[0]}
    v_mov_b32 v43, {sT[0]}
    v_lshrrev_b32 v3, v3, v42
    v_and_b32 v3, 3, v3
    v_lshl_or_b32 v26, v3, 15, v3
    v_not_b32 v3, v26
    v_and_b32 v28, 0x10000, v3
    v_lshlrev_b32 v3, 16, v3
    v_and_b32 v27, 0x10000, v3
    v_lshrrev_b32 v{vTa}, v8, v42
    v_lshrrev_b32 v{vTb}, 8, v{vTa}
    """)
    vUk = 184
    g(f"s_lshl_b32 s49, {sWAVE}, 10\ns_add_u32 s49, s49, {LSCR}\nv_add_u32 v31, s49, v7\nv_add_u32 v46, {LSCR}, v7")
    for k in range(WIN, 10): ldq(k)
    g(f"s_waitcnt vmcnt(11)")
    g.stamp('k0')
    for u in range(5):
        for r in range(4): g(f"v_perm_b32 v{64+4*u+r}, v{vXq+u}, v{vXq+u}, v{vSel+r}")
    for k in range(10):
        u, m = k >> 1, k & 1
        g(f"s_waitcnt vmcnt({9-k})")
        g(f"v_mfma_f32_16x16x32_bf16 {vr(32+4*m,4)}, {vr(64+4*u,4)}, {ar(4*k,4)}, {'0' if u == 0 else vr(32+4*m,4)}")
    g("s_nop 7")
    for r in range(4): g(f"v_permlane32_swap_b32 v{32+r}, v{36+r}")
    for r in range(4): g(f"v_add_f32_dpp v{32+r}, v{36+r}, v{32+r} row_ror:8 {DPP}")
    g("ds_write_b128 v31, v[32:35]\ns_waitcnt lgkmcnt(0)\ns_barrier")
    Lw1 = g.label("now1")
    g(f"s_cmp_lg_u32 {sWAVE}, 0\ns_cbranch_scc1 {Lw1}")
    g("ds_read_b128 v[36:39], v46 offset:1024\nds_read_b128 v[64:67], v46 offset:2048\nds_read_b128 v[68:71], v46 offset:3072")
    g("s_mov_b32 exec_lo, 0x00ff00ff\ns_mov_b32 exec_hi, 0x00ff00ff\ns_waitcnt lgkmcnt(2)\nv_pk_add_f32 v[32:33], v[32:33], v[36:37]\nv_pk_add_f32 v[34:35], v[34:35], v[38:39]")
    g("s_waitcnt lgkmcnt(0)\nv_pk_add_f32 v[64:65], v[64:65], v[68:69]\nv_pk_add_f32 v[66:67], v[66:67], v[70:71]\nv_pk_add_f32 v[32:33], v[32:33], v[64:65]\nv_pk_add_f32 v[34:35], v[34:35], v[66:67]")
    g("v_cvt_pk_bf16_f32 v40, v32, v33\nv_cvt_pk_bf16_f32 v41, v34, v35")
    g(f"buffer_store_dwordx4 v[40:43], v12, {SWS}, s56 offen\ns_mov_b64 exec, -1")
    g(f"{Lw1}:")
    g.stamp('w1')
    g("s_barrier")
    for b in range(8):
        g(f"s_add_u32 m0, s62, {b*1024}\ns_add_u32 s49, s63, {b*4*8192}")
        g(f"buffer_load_dwordx4 v{vUd+b}, {SA}, s49 offen {o['UKNT']} lds")
    Lq, Lqs = g.label("qp"), g.label("qps")
    qpl = f"buffer_load_dwordx4 v[48:51], v14, {SWS}, s54 offen sc1\nbuffer_load_dwordx4 v[52:55], v14, {SWS}, s54 offen offset:64 sc1"
    qwt = f"s_mov_b32 exec_lo, 0x00ff00ff\ns_mov_b32 exec_hi, 0x00ff00ff\ns_add_u32 s49, s56, {QPG-QP}\nbuffer_store_dwordx4 v[40:43], v12, {SWS}, s49 offen sc1\ns_mov_b64 exec, -1"
    g(f"""
    s_mov_b32 {sSpin}, 0
    {qpl}
    s_load_dwordx2 s[32:33], s[0:1], 8
    s_mov_b32 s34, {16384*1024}
    s_lshl_b32 s52, {sXg}, 4
    s_add_u32 s52, s52, {sIdx}
    s_lshl_b32 s52, s52, 2
    s_add_u32 s52, s52, {sWAVE}
    s_lshl_b32 s52, s52, 15
    s_mul_i32 s49, {sWAVE}, {256*o['ROT']}
    s_add_u32 s52, s52, s49
    s_lshl_b32 s62, {sQt}, 1
    s_lshr_b32 s49, {sWAVE}, 1
    s_add_u32 s62, s62, s49
    s_lshl_b32 s62, s62, 3
    s_lshr_b32 s49, {sIdx}, 2
    s_lshl_b32 s49, s49, 1
    s_add_u32 s62, s62, s49
    s_and_b32 s49, {sWAVE}, 1
    s_add_u32 s62, s62, s49
    s_lshl_b32 s62, s62, 16
    s_lshl_b32 s49, {sXg}, 10
    s_add_u32 s62, s62, s49
    s_waitcnt vmcnt(2)
    """)
    for ct in range(2):
        for sx in range(4): g(f"ds_read_b128 {vr(vUk+(ct*4+sx)*4,4)}, v{20+sx} offset:{ct*256}")
    g(f"{Lq}:\ns_waitcnt vmcnt(0)\nv_xor_b32 v3, {sT[0]}, v50\nv_bitop3_b32 v3, v3, v54, {sT[0]} bitop3:0xf6\nv_cmp_ne_u32 vcc, 0, v3\ns_cbranch_vccz {Lqs}")
    g(qpl)
    spin_check(g)
    g(f"s_cmp_lg_u32 {sSpin}, {o['NLOC']}\ns_cbranch_scc1 {Lq}\ns_add_u32 s54, s54, {QPG-QP}\ns_cmp_lg_u32 {sWAVE}, 0\ns_cbranch_scc1 {Lq}")
    g(f"{qwt}\ns_branch {Lq}")
    g(f"{Lqs}:")
    g.stamp('qp')
    vB = 64
    src = [48, 49, 52, 53]
    for sx in range(4):
        for k in range(4): g(f"v_mov_b32_dpp v{vB+4*sx+k}, v{src[k]} quad_perm:[{sx},{sx},{sx},{sx}] {DPP}")
        if sx == 1: g("s_waitcnt lgkmcnt(0)")
        if sx >= 1:
            for ct in range(2):
                g(f"v_mfma_f32_16x16x32_bf16 {vr(32+4*ct,4)}, {vr(vB+4*(sx-1),4)}, {vr(vUk+(ct*4+sx-1)*4,4)}, {'0' if sx == 1 else vr(32+4*ct,4)}")
    for ct in range(2):
        g(f"v_mfma_f32_16x16x32_bf16 {vr(32+4*ct,4)}, {vr(vB+12,4)}, {vr(vUk+(ct*4+3)*4,4)}, {vr(32+4*ct,4)}")
    g(f"""
    s_nop 7
    v_permlane32_swap_b32 v32, v36
    v_add_f32 v32, v32, v36
    v_mov_b32 v33, v32
    s_nop 1
    v_permlane16_swap_b32 v32, v33
    v_add_f32 v32, v32, v33
    v_mov_b32 v33, v32
    s_nop 1
    v_permlane32_swap_b32 v32, v33
    v_add_u32 v32, v32, v27
    v_add_u32 v33, v33, v28
    v_perm_b32 v32, v33, v32, v24
    v_bfi_b32 v32, v25, v26, v32
    s_mov_b64 exec, 0xffff
    buffer_store_dword v32, v15, {SWS}, s55 offen sc1
    s_mov_b64 exec, -1
    """)
    g.stamp('qa')
    sk = g.label("qwt")
    g(f"s_cmp_lg_u32 {sWAVE}, 0\ns_cbranch_scc1 {sk}\n{qwt}\n{sk}:")
    g("s_barrier")
    xc_publish(g, 3)
    vm = Pend(g, 'vmcnt', 63)
    vF = 0
    XH = o['XH']
    def xh(k): g(f"s_xor_b32 s49, s52, {128*HB[2*k]}\nbuffer_load_dword v{58+k}, v56, {SF}, s49 offen"); vm.add('H')
    g(f"""
    buffer_load_dwordx4 {vr(vXw,4)}, v11, {SX}, 0 offen
    buffer_load_dword v{vXw+4}, v11, {SX}, 0 offen offset:16
    buffer_load_dwordx4 {vr(vXg,4)}, v7, {SX}, 0 offen
    buffer_load_dwordx4 {vr(vXg+4,4)}, v7, {SX}, 0 offen offset:1024
    buffer_load_dwordx4 {vr(vGw,4)}, v7, {SE}, 0 offen
    buffer_load_dwordx4 {vr(vGw+4,4)}, v7, {SE}, 0 offen offset:1024
    s_load_dwordx2 s[28:29], s[0:1], 56
    s_mov_b32 s30, {640*3456}
    """); vm.add('X', 6)
    def gatecode():
        vm.wait('X')
        for u in range(5):
            for r in range(4): g(f"v_perm_b32 v{64+4*u+r}, v{vXw+u}, v{vXw+u}, v{vSel+r}")
        g(f"v_dot2_f32_bf16 v3, v{vXg}, v{vGw}, 0")
        for k in range(1, 8): g(f"v_dot2_f32_bf16 v3, v{vXg+k}, v{vGw+k}, v3")
        g("s_nop 2")
        for sh in (8, 4, 2, 1): g(f"v_add_f32_dpp v3, v3, v3 row_ror:{sh} {DPP}\ns_nop 1")
        g("v_mov_b32 v4, v3\ns_nop 1\nv_permlane16_swap_b32 v3, v4\nv_add_f32 v3, v3, v4")
        g("v_mov_b32 v4, v3\ns_nop 1\nv_permlane32_swap_b32 v3, v4\nv_add_f32 v3, v3, v4")
        g(f"""
    v_mul_f32 v3, {f2u(-1.4426950408889634):#x}, v3
    v_exp_f32 v3, v3
    s_nop 0
    v_add_f32 v3, 1.0, v3
    v_rcp_f32 v{vGate}, v3
    s_nop 0
    v_sub_f32 v{vGate+1}, 1.0, v{vGate}
        """)
    XE = XH//2 if o['QW'] == 3 else (1 if XH and not o['QW'] else 0)
    for k in range(XE): xh(k)
    g(f"""
    v_bfe_u32 v3, v0, 2, 3
    v_lshlrev_b32 v4, 7, v3
    v_lshrrev_b32 v3, 1, v3
    v_lshl_add_u32 v4, v3, 5, v4
    v_and_b32 v3, 3, v0
    v_lshl_add_u32 v4, v3, 3, v4
    v_lshrrev_b32 v3, 5, v0
    v_lshl_add_u32 v4, v3, 10, v4
    """)
    for q in range(4):
        g(f"v_xor_b32 v3, {q*32}, v4\nv_add_u32 v{vTo+q}, s57, v3\nv_add_u32 v{vTo+4+q}, s61, v3")
    g(f"""
    v_lshrrev_b32 v210, 2, v1
    v_lshlrev_b32 v14, 9, v210
    v_lshl_add_u32 v14, v2, 4, v14
    v_lshlrev_b32 v211, 10, v2
    v_lshl_add_u32 v211, v1, 4, v211
    v_lshlrev_b32 v15, 4, v1
    v_lshl_add_u32 v15, v2, 9, v15
    v_lshlrev_b32 v20, 7, v1
    s_lshl_b32 s55, {sH}, 2
    s_add_u32 s55, s55, {sQt}
    s_lshl_b32 s55, s55, 11
    s_add_u32 s55, s55, {CT}
    s_lshl_b32 s5, s50, 11
    s_add_u32 s5, s5, {FP}
    s_lshl_b32 s49, s51, 9
    s_add_u32 s54, s5, s49
    s_lshl_b32 s49, s51, 6
    s_add_u32 s5, s5, s49
    """)
    g("s_waitcnt lgkmcnt(0)")
    if o['QW'] == 4: gatecode()
    if o['QW'] in (1, 2, 3):
        Lw = g.label("qw")
        g(f"""
        v_and_b32 v3, 3, v0
        v_lshlrev_b32 v3, 3, v3
        v_lshrrev_b32 v3, v3, v42
        v_and_b32 v9, 31, v0
        v_lshlrev_b32 v9, 4, v9
        s_lshl_b32 s56, {sIdx}, 2
        s_add_u32 s56, s56, {sWAVE}
        s_lshl_b32 s56, s56, 9
        s_add_u32 s56, s56, {QA}
        s_mov_b32 {sSpin}, 0
        """)
        for j in range(4): g(f"v_bfe_u32 v4, v3, {2*j}, 2\nv_lshl_or_b32 v{24+j}, v4, 15, v4")
        gatecode()
        g(f"{Lw}:\nbuffer_load_dwordx4 v[48:51], v9, {SWS}, s56 offen sc1")
        spin_check(g)
        g("s_waitcnt vmcnt(0)\nv_xor_b32 v3, v48, v24")
        for j in range(1, 4): g(f"v_bitop3_b32 v3, v3, v{48+j}, v{24+j} bitop3:0xf6")
        g(f"v_and_b32 v3, 0x10001, v3\nv_cmp_ne_u32 vcc, 0, v3\ns_cbranch_vccnz {Lw}")
        vm.clear()
        if o['QW'] == 2: g("s_barrier")
    g.stamp('set')
    for k in range(XE, XH//2): xh(k)
    if o.get('XW'): vm.wait('H')
    if o.get('DIAGW'): g.stamp('xi'); g('s_waitcnt vmcnt(1)'); g.stamp('x0'); g('s_waitcnt vmcnt(0)'); g.stamp('x1')
    if o['UVA'] == 2: g(f"buffer_load_dword v60, v165, {SB}, s62 offen"); vm.add('H')
    for k in range(10):
        if k >= o['FW']: vm.wait(('F', k-o['FW']))
        g(f"buffer_load_dwordx4 {ar(vF+4*k,4)}, v57, {SG if k & 1 else SE}, s53 offen {NT}"); vm.add(('F', k))
        if k & 1: g(f"s_add_u32 s53, s53, {2*3456}")
    if not o['UVA']: g(f"buffer_load_dword v60, v165, {SB}, s62 offen"); vm.add('H')
    dl = []
    for gam in range(3):
        for gp in range(2):
            dl.append(f"s_add_u32 m0, s61, {(gam*2+gp)*1024}\ns_add_u32 s49, s58, {gam*512 + gp*8*1280}\n" + ("s_add_u32 s49, s49, s60\n" if gam == 2 else "") + f"buffer_load_dwordx4 v30, {SD}, s49 offen {NT} lds")
    for gam in range(3):
        for rho in range(2):
            for gp in range(2):
                dl.append(f"s_add_u32 m0, s57, {(gam*4+rho*2+gp)*1024}\ns_add_u32 s49, s59, {gam*512 + (8*gp+2*rho)*1280}\n" + ("s_add_u32 s49, s49, s60\n" if gam == 2 else "") + f"buffer_load_dwordx4 v29, {SC}, s49 offen {NT} lds")
    N1, N2 = o['N1'], o['N2']
    for k in range(N1): g(dl[k]); vm.add('D')
    g.stamp('iss1')
    if not o['QW']: gatecode()
    for k in range(10):
        u, m = k >> 1, k & 1
        vm.wait(('F', k))
        g(f"v_mfma_f32_16x16x32_bf16 {vr(32+4*m,4)}, {vr(64+4*u,4)}, {ar(vF+4*k,4)}, {'0' if u == 0 else vr(32+4*m,4)}")
    g("s_nop 7\nds_write_b128 v13, v[32:35]\nds_write_b128 v13, v[36:39] offset:1024\ns_waitcnt lgkmcnt(0)\ns_barrier")
    sk = g.label("skip")
    g(f"s_cmp_lg_u32 {sWAVE}, 3\ns_cbranch_scc1 {sk}")
    d = 128
    for wv in range(4): g(f"ds_read_b128 {vr(d+4*wv,4)}, v{vG} offset:{wv*2048}")
    g("s_waitcnt lgkmcnt(2)")
    for r in range(4): g(f"v_add_f32 v{d+r}, v{d+r}, v{d+4+r}")
    g("s_waitcnt lgkmcnt(0)")
    for r in range(4): g(f"v_add_f32 v{d+8+r}, v{d+8+r}, v{d+12+r}")
    for r in range(4): g(f"v_add_f32 v{d+r}, v{d+r}, v{d+8+r}")
    g(f"s_nop 0\nv_permlane32_swap_b32 v{d}, v{d+2}\nv_permlane32_swap_b32 v{d+1}, v{d+3}")
    g(f"v_add_f32 v{d}, v{d}, v{d+2}\nv_add_f32 v{d+1}, v{d+1}, v{d+3}")
    g(f"v_bfi_b32 v{d}, v{vFF}, v{vTa}, v{d}\nv_bfi_b32 v{d+1}, v{vFF}, v{vTb}, v{d+1}")
    g(f"buffer_store_dwordx2 {vr(d,2)}, v{vG+1}, {SWS}, s54 offen sc1")
    g(f"{sk}:")
    g.stamp('fp')
    for k in range(N1, N2): g(dl[k]); vm.add('D')
    fpl = f"buffer_load_dwordx4 v[48:51], v14, {SWS}, s5 offen sc1\nbuffer_load_dwordx4 v[52:55], v14, {SWS}, s5 offen offset:256 sc1"
    g(f"buffer_load_dword v21, v20, {SWS}, s55 offen sc1"); vm.add('H')
    g(fpl); vm.add('P', 2)
    for k in range(N2, 18): g(dl[k]); vm.add('D2')
    g.stamp('iss2')
    g(f"""
    s_lshl_b32 s4, {sXg}, 4
    s_add_u32 s4, s4, {sIdx}
    s_mul_i32 s4, s4, 2560
    s_lshl_b32 s49, {sWAVE}, 8
    s_add_u32 s4, s4, s49
    s_add_u32 s4, s4, {OP}
    v_cmp_eq_u32 s[50:51], 0, v210
    v_cmp_eq_u32 s[52:53], 1, v210
    v_cmp_eq_u32 s[58:59], 2, v210
    s_cmp_ge_u32 {sWAVE}, 2
    s_cselect_b32 s61, 0, 0xffff
    s_mov_b32 {sSpin}, 0
    """)
    vm.wait('P')
    g.stamp('p1')
    assert N2 >= 6
    aD, aO = 0, 24
    for gam in range(3):
        for q in range(4): g(f"ds_read_b64_tr_b16 {ar(aD+(gam*4+q)*2,2)}, v{vTo+4+q} offset:{gam*2048}")
    Lf, Lfok = g.label("fp"), g.label("fpok")
    g(f"{Lf}:\nv_xor_b32 v3, {sT[0]}, v48")
    for k in range(1, 8): g(f"v_bitop3_b32 v3, v3, v{48+k}, {sT[k&3]} bitop3:0xf6")
    g(f"v_and_b32 v3, 0xff, v3\nv_cmp_ne_u32 vcc, 0, v3\ns_cbranch_vccz {Lfok}")
    g(fpl)
    spin_check(g)
    g(f"s_waitcnt vmcnt(0)\ns_branch {Lf}\n{Lfok}:")
    g.stamp('fpok')
    ror_sum(g, 48, 8)
    for k in range(4): g(f"v_cvt_pk_bf16_f32 v{32+k}, v{48+k}, v{52+k}")
    for k in range(4): g(f"v_lshlrev_b32 v{24+k}, 16, v{32+k}\nv_and_b32 v{28+k}, 0xffff0000, v{32+k}")
    c1 = -2*0.7978845608028654*1.4426950408889634
    g(f"s_mov_b32 s49, {f2u(c1*0.044715):#x}\nv_mov_b32 v3, {f2u(c1):#x}")
    for k in range(4): g(f"v_mul_f32 v{32+k}, v{24+k}, v{24+k}")
    for k in range(4): g(f"v_fma_f32 v{32+k}, v{32+k}, s49, v3")
    for k in range(4): g(f"v_mul_f32 v{32+k}, v{32+k}, v{24+k}")
    for k in range(4): g(f"v_exp_f32 v{32+k}, v{32+k}")
    for k in range(4): g(f"v_add_f32 v{32+k}, 1.0, v{32+k}")
    for k in range(4): g(f"v_rcp_f32 v{32+k}, v{32+k}")
    for k in range(4): g(f"v_mul_f32 v{32+k}, v{32+k}, v{24+k}")
    for k in range(4): g(f"v_cvt_pk_bf16_f32 v{32+k}, v{32+k}, v{32+k}")
    for k in range(4): g(f"v_and_b32 v{32+k}, 0xffff0000, v{32+k}\nv_mul_f32 v{32+k}, v{32+k}, v{28+k}")
    g("v_cvt_pk_bf16_f32 v24, v32, v33\nv_cvt_pk_bf16_f32 v25, v34, v35")
    for gam in range(3):
        g(f"v_cmp_eq_u32 vcc, {4*gam}, v1\ns_nop 1\nv_cndmask_b32 v{26+2*gam}, 0, v24, vcc\nv_cndmask_b32 v{27+2*gam}, 0, v25, vcc")
    g("s_waitcnt lgkmcnt(0)")
    vOa = 176
    for gam in range(3):
        for q in range(4):
            g(f"v_mfma_f32_16x16x16_bf16 {vr(vOa+4*q,4)}, {vr(26+2*gam,2)}, {ar(aD+(gam*4+q)*2,2)}, {'0' if gam == 0 else vr(vOa+4*q,4)}")
    g("s_waitcnt vmcnt(0)")
    g.stamp('strm')
    for gam in range(3):
        for rho in range(2):
            for q in range(4): g(f"ds_read_b64_tr_b16 {ar(aO+(gam*4+q)*4+2*rho,2)}, v{vTo+q} offset:{gam*4096+rho*2048}")
    for q in range(4): g(f"v_mul_f32 v{204+q}, v{vGate+1}, v{vOa+4*q}")
    g(f"s_mov_b32 {sSpin}, 0\ns_waitcnt lgkmcnt(0)")
    if o.get('DIAGA'): g('s_branch L_fin')
    Lx = g.label("ct")
    g(f"{Lx}:\nbuffer_load_dwordx4 v[24:27], v15, {SWS}, s55 offen sc1\nbuffer_load_dwordx4 v[28:31], v15, {SWS}, s55 offen offset:256 sc1")
    spin_check(g)
    g(f"s_waitcnt vmcnt(1)\nv_xor_b32 v3, {sT[0]}, v24")
    for k in range(1, 8):
        if k == 4: g("s_waitcnt vmcnt(0)")
        g(f"v_bitop3_b32 v3, v3, v{24+k}, {sT[k&3]} bitop3:0xf6")
    g(f"v_and_b32 v3, 0xff, v3\nv_cmp_ne_u32 vcc, 0, v3\ns_cbranch_vccnz {Lx}")
    g.stamp('ct')
    ror_sum(g, 24, 8)
    for k in range(4): g(f"v_cvt_pk_bf16_f32 v{32+k}, v{24+2*k}, v{25+2*k}")
    msk = ['s[50:51]', 's[52:53]', 's[58:59]']
    for k in range(4): g(f"v_cndmask_b32 v{112+k}, 0, v{32+k}, {msk[0]}")
    g(f"v_cndmask_b32 v116, 0, v32, {msk[1]}\nv_cndmask_b32 v117, 0, v33, {msk[1]}")
    fl = [f"v_cndmask_b32 v118, 0, v34, {msk[1]}", f"v_cndmask_b32 v119, 0, v35, {msk[1]}"] + [f"v_cndmask_b32 v{120+k}, 0, v{32+k}, {msk[2]}" for k in range(4)]
    i = 0
    for gam in range(3):
        for q in range(4):
            g(f"v_mfma_f32_16x16x32_bf16 {vr(vOa+4*q,4)}, {vr(112+4*gam,4)}, {ar(aO+(gam*4+q)*4,4)}, {'0' if gam == 0 else vr(vOa+4*q,4)}")
            if i < len(fl): g(fl[i])
            i += 1
    g("s_nop 4")
    for q in range(4):
        g(f"v_pk_add_f32 {vr(vOa+4*q,2)}, {vr(vOa+4*q,2)}, {vr(vOa+4*q+2,2)}")
    for q in range(4): g(f"v_add_f32 v{24+q}, v{vOa+4*q}, v{vOa+4*q+1}")
    for q in range(4): g(f"v_fma_f32 v{24+q}, v{24+q}, v{vGate}, v{204+q}")
    for q in range(4): g(f"v_bfi_b32 v{24+q}, v{vFF}, {sT[q]}, v{24+q}")
    g(f"s_mov_b32 exec_hi, s61\nbuffer_store_dwordx4 v[24:27], v211, {SWS}, s4 offen sc1")
    g.stamp('op')

def build(**opt):
    g = G(**opt)
    g.o.append(HEADER.rstrip('\n'))
    g.o.append("; @launch grid=(256,1,1) block=(256,1,1) lds=163840")
    g.o.append('.amdgcn_target "amdgcn-amd-amdhsa--gfx950"')
    g.o.append(f".text\n.globl {KN}\n.p2align 8\n.type {KN},@function\n{KN}:")
    g.stamp('st')
    g(f"""
    s_load_dwordx2 s[4:5], s[0:1], 0
    s_load_dwordx2 s[32:33], s[0:1], 16
    s_load_dwordx2 s[20:21], s[0:1], 104
    v_lshrrev_b32 v1, 6, v0
    s_cmp_ge_u32 s2, 256
    s_cbranch_scc1 L_end
    v_readfirstlane_b32 {sWAVE}, v1
    v_and_b32 v0, 63, v0
    """)
    if g.opt['CPF']:
        g(f"""
        s_getpc_b64 s[38:39]
        L_pc:
        s_lshr_b32 s49, s2, 1
        s_andn2_b32 s49, s49, 3
        s_add_u32 s49, s49, {sWAVE}
        s_lshl_b32 s49, s49, 7
        v_lshl_add_u32 v3, v0, 14, s49
        v_cmp_gt_u32 vcc, L_end-L_pc, v3
        s_nop 0
        s_and_saveexec_b64 s[36:37], vcc
        s_cbranch_execz L_nopf
        global_load_dword v219, v3, s[38:39]
        L_nopf:
        s_mov_b64 exec, -1
        """)
    g("s_cmp_lt_u32 s2, 128\ns_cbranch_scc1 L_att")
    weight(g)
    g("s_branch L_fin" if g.opt['STAMPS'] else "s_endpgm")
    g.role = 'att'
    attention(g)
    g("L_fin:")
    if g.opt.get('PADTO'):
        g(f"""
        s_lshl_b32 s49, {sWAVE}, 16
        s_or_b32 s49, s2, s49
        s_cmp_lg_u32 s49, {g.opt.get('PADWG', 0)}
        s_cbranch_scc1 L_padend
        L_pad:
        s_memrealtime s[98:99]
        s_waitcnt lgkmcnt(0)
        s_sub_u32 s49, s98, s64
        s_cmp_lt_u32 s49, {g.opt['PADTO']}
        s_cbranch_scc1 L_pad
        L_padend:
        """)
    if g.opt['STAMPS']:
        g(('s_memtime' if g.opt.get('CLK') else 's_memrealtime') + " s[100:101]\ns_waitcnt lgkmcnt(0)\ns_mov_b64 exec, 1")
        g(f"s_lshl_b32 s49, s2, 2\ns_add_u32 s49, s49, {sWAVE}\ns_lshl_b32 s49, s49, 7\ns_add_u32 s49, s49, {STAMP}\nv_mov_b32 v1, 0")
        g.o.append("; STAMPS att " + " ".join(g.names['att']))
        g.o.append("; STAMPS wgt " + " ".join(g.names['wgt']))
        for q in range(5):
            for k in range(4):
                idx = 4*q+k
                g(f"v_mov_b32 v{4+k}, s{64+2*idx}" if idx <= 18 else f"v_mov_b32 v{4+k}, {sSpin}")
            g(f"buffer_store_dwordx4 v[4:7], v1, {SWS}, s49 offen offset:{16*q}\ns_nop 1")
    g("L_end:\ns_endpgm")
    g.o.append(f""".section .rodata,"a"
.p2align 6
.amdhsa_kernel {KN}
  .amdhsa_next_free_vgpr 512
  .amdhsa_next_free_sgpr 102
  .amdhsa_accum_offset 256
  .amdhsa_group_segment_fixed_size 0
  .amdhsa_kernarg_size 112
  .amdhsa_user_sgpr_count 2
  .amdhsa_user_sgpr_kernarg_segment_ptr 1
  .amdhsa_system_sgpr_workgroup_id_x 1
  .amdhsa_float_denorm_mode_32 3
.end_amdhsa_kernel""")
    return g.text()

if __name__ == '__main__':
    out = sys.argv[1]
    opt = {}
    for a in sys.argv[2:]:
        k, v = a.split('=')
        try: v = int(v, 0)
        except ValueError: pass
        opt[k] = v
    t = build(**opt)
    open(out, 'w').write(t)
    import hazard
    for p in hazard.check(t): print("HAZARD", p)
```
